```python
import torch

def _softmax(x, axis=-1):
    return torch.softmax(x, dim=axis)
def _gelu(x):
    return torch.nn.functional.gelu(x, approximate="tanh")
def _silu(x):
    return torch.nn.functional.silu(x)
def _sigmoid(x):
    return torch.sigmoid(x)
def _layernorm(x, axis=-1, eps=1e-5):
    m = x.mean(dim=axis, keepdim=True)
    v = x.var(dim=axis, keepdim=True, unbiased=False)
    return (x - m) / torch.sqrt(v + eps)
def _scatter_add(tgt, idx, src, axis=0):
    return tgt.clone().index_add_(axis, idx, src)
def _segment_sum(src, seg, n):
    out = torch.zeros((n,) + src.shape[1:], dtype=src.dtype)
    return out.index_add_(0, seg, src)
def _pad(x, pw):
    flat = tuple(v for pair in reversed(pw) for v in pair)
    return torch.nn.functional.pad(x, flat)

kernel_name = 'recurrent_scan__gqa_block_cached__mixer_channel_mlp__decode'

def setup_inputs():

    _w = (lambda a: (lambda t: t.to(torch.bfloat16) if t.is_floating_point() else t)(torch.as_tensor(a)))
    def _A_setup():
        B, Sq, D = 4, 1, 512
        Hq, Hkv, Sk, Dh = 32, 8, 8192, 128
        assert Hq % Hkv == 0, (Hq, Hkv)
        return {
            "x": _w((lambda *s: torch.randn(*s, dtype=torch.bfloat16) * 0.1)(B, Sq, D)),
            "k_cache": _w((lambda *s: torch.randn(*s, dtype=torch.bfloat16) * 0.8)(B, Hkv, Sk, Dh)),
            "v_cache": _w((lambda *s: torch.randn(*s, dtype=torch.bfloat16) * 3.2)(B, Hkv, Sk, Dh)),
            "wq": _w((lambda *s: torch.randn(*s, dtype=torch.bfloat16) * 0.8)(D, Hq * Dh) * (D ** -0.5)),
            "wo": _w((lambda *s: torch.randn(*s, dtype=torch.bfloat16) * 3.2)(Hq * Dh, D) * ((Hq * Dh) ** -0.5)),
        }
    _A_in = _A_setup()

    def _B_setup():
        B, S, D, F = 4, 1, 512, 1792
        return {
            "x": _w((lambda *s: torch.randn(*s, dtype=torch.bfloat16) * 0.1)(B, S, D)),
            "w1": _w((lambda *s: torch.randn(*s, dtype=torch.bfloat16) * 3.2)(D, F) * (D ** -0.5)),
            "b1": _w((lambda *s: torch.randn(*s, dtype=torch.bfloat16) * 3.2)(F)),
            "w2": _w((lambda *s: torch.randn(*s, dtype=torch.bfloat16) * 3.2)(F, D) * (F ** -0.5)),
            "b2": _w((lambda *s: torch.randn(*s, dtype=torch.bfloat16) * 3.2)(D)),
        }
    _B_in = _B_setup()

    return {
        "A_x": _A_in["x"],
        "A_k_cache": _A_in["k_cache"],
        "A_v_cache": _A_in["v_cache"],
        "A_wq": _A_in["wq"],
        "A_wo": _A_in["wo"],
        "B_x": _B_in["x"],
        "B_w1": _B_in["w1"],
        "B_b1": _B_in["b1"],
        "B_w2": _B_in["w2"],
        "B_b2": _B_in["b2"],
    }

def reference(A_x, A_k_cache, A_v_cache, A_wq, A_wo, B_x, B_w1, B_b1, B_w2, B_b2):
    def _A_ref(x, k_cache, v_cache, wq, wo):
        B, Sq, D = x.shape
        Hq, Dh = 32, 128
        Hkv = k_cache.shape[1]
        rep = Hq // Hkv
        q = (lambda x, *d: x.permute(*d))((x @ wq).reshape(B, Sq, Hq, Dh), 0, 2, 1, 3)
        k = (lambda x, n, axis: torch.repeat_interleave(x, n, dim=axis))(k_cache, rep, axis=1)
        v = (lambda x, n, axis: torch.repeat_interleave(x, n, dim=axis))(v_cache, rep, axis=1)
        scores = torch.einsum("bhqd,bhkd->bhqk", q, k) * (Dh ** -0.5)
        p = _softmax(scores, axis=-1)
        o = torch.einsum("bhqk,bhkd->bhqd", p, v)
        return (lambda x, *d: x.permute(*d))(o, 0, 2, 1, 3).reshape(B, Sq, Hq * Dh) @ wo

    def _B_ref(x, w1, b1, w2, b2):
        y = _layernorm(x, axis=-1)
        h = _gelu(torch.einsum("bsd,df->bsf", y, w1) + b1)
        return torch.einsum("bsf,fd->bsd", h, w2) + b2

    x = A_x
    xn = _layernorm(x, axis=-1)
    s = _A_ref(xn, A_k_cache, A_v_cache, A_wq, A_wo)
    g = _silu(_B_ref(xn, B_w1, B_b1, B_w2, B_b2))
    return x + s * g
```

```python
import re

def regs_of(op):
    op = op.strip()
    m = re.fullmatch(r'-?\|?(?:abs\()?([vsa])(\d+)\)?\|?', op)
    if m: return {(m.group(1), int(m.group(2)))}
    m = re.fullmatch(r'-?([vsa])\[(\d+):(\d+)\]', op)
    if m: return {(m.group(1), i) for i in range(int(m.group(2)), int(m.group(3)) + 1)}
    if op == 'vcc': return {('x', 'vcc')}
    if op == 'exec': return {('x', 'exec')}
    if op == 'm0': return {('x', 'm0')}
    return set()

TRANS = ('v_exp_', 'v_log_', 'v_rcp_', 'v_rsq_', 'v_sqrt_', 'v_sin_', 'v_cos_')

class Ins:
    def __init__(self, text):
        self.text = text
        t = text.split(';')[0].strip()
        parts = t.split(None, 1)
        self.mn = parts[0]
        rest = parts[1] if len(parts) > 1 else ''
        ops = [o.strip() for o in re.split(r',', rest)]
        mods = ''
        if ops:
            last = ops[-1].split()
            if last:
                ops[-1] = last[0]; mods = ' '.join(last[1:])
        self.ops = ops; self.mods = mods
        mn = self.mn
        R = [regs_of(o) for o in ops]
        self.w = set(); self.r = set()
        self.mfma = mn.startswith('v_mfma')
        self.valu = mn.startswith('v_') and not self.mfma
        self.trans = mn.startswith(TRANS)
        self.dpp = '_dpp' in mn or 'row_' in mods or 'quad_perm' in mods
        self.perm = mn.startswith('v_permlane')
        self.rdlane = mn.startswith('v_readlane') or mn.startswith('v_readfirstlane')
        self.wrlane = mn.startswith('v_writelane')
        self.vmem = mn.startswith('buffer_') or mn.startswith('global_')
        self.ds = mn.startswith('ds_')
        self.salu = mn.startswith('s_')
        self.lds_dma = self.vmem and (' lds' in (' ' + mods) or 'load_lds' in mn)
        self.store = self.vmem and ('store' in mn or 'atomic' in mn)
        self.states = 1
        self.C = set(); self.AB = set(); self.sdata = set()
        if mn == 's_nop': self.states = int(ops[0], 0) + 1
        if self.mfma:
            self.w = R[0]; self.AB = R[1] | R[2]; self.C = R[3]; self.r = self.AB | self.C
        elif self.valu:
            if self.perm:
                self.w = R[0] | R[1]; self.r = R[0] | R[1]
            else:
                self.w = set(R[0])
                for x in R[1:]: self.r |= x
                if mn.startswith('v_cmpx'): self.w |= {('x', 'exec')}
                if mn.startswith(('v_fmac', 'v_dot2c', 'v_writelane')) or self.dpp: self.r |= R[0]
                if mn.startswith(('v_add_co', 'v_sub_co', 'v_addc_co')): self.w |= R[1]
        elif self.vmem:
            if self.store:
                for x in R: self.r |= x
                if 'x4' in mn or 'x3' in mn:
                    self.sdata = R[0] if mn.startswith('buffer_') else R[1]
            elif self.lds_dma:
                for x in R: self.r |= x
                self.r |= {('x', 'm0')}
            else:
                self.w = R[0]
                for x in R[1:]: self.r |= x
        elif self.ds:
            if mn.startswith(('ds_read', 'ds_bpermute', 'ds_permute', 'ds_swizzle')):
                self.w = R[0]
                for x in R[1:]: self.r |= x
            else:
                for x in R: self.r |= x
        elif self.salu:
            if mn.startswith(('s_cmp', 's_cbranch', 's_branch', 's_waitcnt', 's_nop', 's_barrier', 's_endpgm', 's_setprio', 's_sleep', 's_setpc')):
                for x in R: self.r |= x
            else:
                self.w = set(R[0]) if R else set()
                for x in R[1:]: self.r |= x
                if 'saveexec' in mn: self.w |= {('x', 'exec')}; self.r |= {('x', 'exec')}

def isv(s): return {x for x in s if x[0] in 'va'}
def iss(s): return {x for x in s if x[0] == 's' or x == ('x', 'vcc')}

def need(p, c):
    n = 0
    if p.valu:
        wv = isv(p.w); wsg = iss(p.w)
        if c.mfma and wv & c.r: n = max(n, 2)
        if c.valu and (c.dpp or c.perm) and wv & c.r: n = max(n, 2)
        if p.trans and c.valu and wv & (c.r | c.w): n = max(n, 1)
        if c.rdlane and wv & c.r: n = max(n, 1)
        if wsg:
            if c.valu and wsg & c.r: n = max(n, 4 if (c.rdlane or c.wrlane) else 2)
            if c.vmem and wsg & c.r: n = max(n, 5)
            if c.salu and wsg & c.r: n = max(n, 1)
        if ('x', 'exec') in p.w:
            if c.mfma or c.perm or c.rdlane or c.wrlane: n = max(n, 4)
            if c.dpp: n = max(n, 5)
            if c.salu and ('x', 'exec') in c.r: n = max(n, 2)
            if c.valu and ('x', 'exec') in c.r: n = max(n, 2)
    if p.mfma:
        if c.mfma:
            if p.w & c.AB: n = max(n, 8)
            if p.w & c.C and p.w != c.C: n = max(n, 6)
            if p.w & c.w and not (p.w == c.C): n = max(n, 6)
        elif (c.valu or c.vmem or c.ds) and p.w & (c.r | c.w): n = max(n, 8)
        if c.valu and p.C & c.w: n = max(n, 3)
    if p.salu and ('x', 'm0') in p.w and (c.lds_dma or (c.valu and ('x', 'm0') in c.r)): n = max(n, 1)
    if p.sdata and isv(c.w) & p.sdata: n = max(n, 2)
    return n

class Asm:
    def __init__(self):
        self.out = []
    def raw(self, text): self.out.append(('t', text))
    def label(self, name): self.out.append(('l', name))
    def _recent(self):
        d = 0
        for k, x in reversed(self.out):
            if k == 'i':
                yield x, d
                d += x.states
                if d > 12: return
    def __call__(self, text):
        for line in text.split('\n'):
            line = line.strip()
            if not line or line.startswith(';'): continue
            if line.endswith(':'):
                self.label(line[:-1]); continue
            c = Ins(line)
            pad = 0
            for p, d in self._recent():
                if p.mn in ('s_branch', 's_endpgm', 's_setpc_b64'): break
                pad = max(pad, need(p, c) - d)
            if pad > 0: self.out.append(('i', Ins(f's_nop {pad-1}')))
            self.out.append(('i', c))
    def check_branches(self):
        labels = {x: i for i, (k, x) in enumerate(self.out) if k == 'l'}
        errs = []
        for i, (k, x) in enumerate(self.out):
            if k == 'i' and x.mn.startswith(('s_cbranch', 's_branch', 's_call')):
                tgt = x.ops[-1]
                if tgt not in labels: continue
                before = []; d = 0
                for kk, y in reversed(self.out[:i + 1]):
                    if kk == 'i':
                        before.append((y, d)); d += y.states
                        if d > 12: break
                d2 = 0
                for kk, c in self.out[labels[tgt]:]:
                    if kk != 'i': continue
                    for p, d in before:
                        if need(p, c) > d + d2: errs.append(f'hazard across branch to {tgt}: {p.text} -> {c.text}')
                    d2 += c.states
                    if d2 > 12 or c.mn in ('s_branch', 's_endpgm', 's_setpc_b64'): break
        return errs
    def text(self):
        L = []
        for k, x in self.out:
            if k == 'i': L.append('    ' + x.text)
            elif k == 'l': L.append(x + ':')
            else: L.append(x)
        return '\n'.join(L) + '\n'
```

```python
import struct, sys
sys.path.insert(0, "work")
from asmdsl import Asm

NAME = "recurrent_scan__gqa_block_cached__mixer_channel_mlp__decode_kernel"
def f2u(x): return struct.unpack("<I", struct.pack("<f", x))[0]
def hx(x): return "0x%08x" % (x & 0xffffffff)

QBUF, HBUF, MBUF, OBUF, SBUF, STAMPS = 0x1000, 0x20000, 0x30000, 0x60000, 0x100000, 0x200000
WS_SIZE = 0x400000
QAREA, HAREA = 131072, 147456
TB = 24576
OSTR = 528
MLOFF = 2304
TAGC = 0x9E3779B9
SPIN = 20000

HEADER = open("recurrent_scan__gqa_block_cached__mixer_channel_mlp__decode.s.ref").read().split("; Override launch")[0]

def gen(name=NAME, stamps=False, kvf="nt", wf="", G=4, throttle=None, spin=SPIN):
    a = Asm()
    nst = [0]
    def stamp(k):
        if stamps:
            a(f"s_memrealtime s[{70+2*k}:{71+2*k}]\ns_waitcnt lgkmcnt(0)")
    def flush_stamps(n):
        if not stamps: return
        a("s_mov_b64 exec, -1")
        a("v_mov_b32 v200, 0")
        for k in range(n): a(f"v_writelane_b32 v200, s{70+2*k}, {k}")
        a("s_getreg_b32 s68, hwreg(HW_REG_XCC_ID, 0, 4)\nv_writelane_b32 v200, s68, 15")
        a(f"""s_lshl_b32 s68, s2, 3
        s_add_u32 s68, s68, s3
        s_lshl_b32 s68, s68, 6
        s_add_u32 s68, s68, {STAMPS}
        s_mov_b32 s64, s28
        s_mov_b32 s65, s29
        s_mov_b32 s66, {WS_SIZE}
        s_mov_b32 s67, 0x20000
        v_lshlrev_b32 v201, 2, v0
        s_mov_b64 exec, 0xffff
        buffer_store_dword v200, v201, s[64:67], s68 offen
        s_waitcnt vmcnt(0)""")
    def srd(d, lo, off, size):
        if off is None:
            a(f"s_mov_b32 s{d}, s{lo}\ns_mov_b32 s{d+1}, s{lo+1}")
        else:
            a(f"s_add_u32 s{d}, s{lo}, {off}\ns_addc_u32 s{d+1}, s{lo+1}, 0")
        a(f"s_mov_b32 s{d+2}, {size}\ns_mov_b32 s{d+3}, 0x20000")
    def poll(lbl, loads, tags):
        a(f"s_mov_b32 s31, {spin}")
        a(f"{lbl}:")
        for l in loads: a(l)
        a("s_waitcnt vmcnt(0)")
        for t in tags: a(f"v_cmpx_eq_u32 vcc, s30, v{t}")
        a(f"""s_cmp_eq_u64 exec, -1
        s_mov_b64 exec, -1
        s_cbranch_scc1 {lbl}_ok
        s_sub_u32 s31, s31, 1
        s_cbranch_scc0 {lbl}
        {lbl}_ok:""")

    a.raw(HEADER.rstrip("\n"))
    a.raw("; @launch grid=(256,1,1) block=(512,1,1) lds=163840")
    a.raw('.amdgcn_target "amdgcn-amd-amdhsa--gfx950"\n.text')
    a.raw(f".globl {name}\n.p2align 8\n.type {name},@function")
    a.label(name)
    a("""s_load_dwordx16 s[4:19], s[0:1], 0
    s_load_dwordx8 s[20:27], s[0:1], 64
    s_load_dwordx2 s[28:29], s[0:1], 96""")
    if stamps: a("s_memrealtime s[70:71]")
    a("""s_cmp_ge_u32 s2, 256
    s_cbranch_scc1 L_end
    v_lshrrev_b32 v1, 6, v0
    v_and_b32 v0, 63, v0
    v_readfirstlane_b32 s3, v1
    v_lshrrev_b32 v2, 4, v0
    v_and_b32 v3, 15, v0
    s_cmp_ge_u32 s3, 4
    s_cbranch_scc1 L_aux""")
    A_, B_, C_ = (4096, 32768, 16384) if G == 4 else (8192, 32768, 4096)
    a(f"""v_lshlrev_b32 v4, 1, v2
    v_xor_b32 v4, v4, v3
    v_lshlrev_b32 v4, 4, v4
    v_lshl_add_u32 v4, v2, 8, v4
    v_xor_b32 v5, 0x80, v4
    v_xor_b32 v6, 16, v4
    v_xor_b32 v7, 0x90, v4
    s_and_b32 s52, s2, 31
    s_lshl_b32 s52, s52, 21
    s_lshr_b32 s53, s2, 5
    s_lshl_b32 s53, s53, 18
    s_add_u32 s52, s52, s53
    s_mul_i32 s54, s3, {A_}
    s_lshl_b32 s55, s3, 15
    s_add_u32 s56, s54, {C_}
    s_waitcnt lgkmcnt(0)""")
    srd(32, 6, "s52", 262144); srd(36, 8, "s52", 262144)
    def tile_dma(srdname, slot_off, thr=None):
        for u, so in ((0, "s54"), (1, "s56")):
            a(f"s_add_u32 m0, s55, {slot_off + u*4096}")
            if thr is not None: a(f"s_waitcnt vmcnt({thr})")
            for k in range(4):
                a(f"buffer_load_dwordx4 v{4+k}, {srdname}, {so} offen offset:{k*1024} {kvf} lds")
    a("L_pre:")
    tile_dma("s[32:35]", 0, throttle); tile_dma("s[36:39]", 8192, throttle)
    a(f"""s_add_u32 s54, s54, {B_}
    s_add_u32 s56, s56, {B_}
    s_xor_b32 s55, s55, 16384
    s_bitcmp1_b32 s55, 14
    s_cbranch_scc1 L_pre""")
    stamp(1)
    a(f"""v_and_b32 v20, 7, v3
    v_lshlrev_b32 v20, 1, v20
    v_lshrrev_b32 v21, 3, v3
    v_or_b32 v20, v20, v21
    v_lshlrev_b32 v21, 2, v2
    v_xor_b32 v20, v20, v21
    v_lshlrev_b32 v20, 4, v20
    v_lshl_add_u32 v20, v3, 8, v20
    v_add_u32 v8, s55, v20
    v_xor_b32 v9, 16, v8
    v_xor_b32 v10, 32, v8
    v_xor_b32 v11, 48, v8
    v_lshrrev_b32 v20, 2, v0
    v_and_b32 v21, 7, v20
    v_lshlrev_b32 v21, 1, v21
    v_lshrrev_b32 v22, 3, v20
    v_or_b32 v21, v21, v22
    v_bfe_u32 v22, v0, 1, 1
    v_xor_b32 v21, v21, v22
    v_lshlrev_b32 v21, 4, v21
    v_lshl_add_u32 v21, v20, 8, v21
    v_and_b32 v22, 1, v0
    v_lshl_add_u32 v21, v22, 3, v21
    s_add_u32 s57, s55, 8192
    v_add_u32 v12, s57, v21""")
    for t in range(1, 8): a(f"v_xor_b32 v{12+t}, {t*32}, v12")
    a(f"""v_and_b32 v20, 3, v3
    v_lshlrev_b32 v21, 6, v2
    v_lshl_add_u32 v21, v20, 8, v21
    v_add_u32 v23, {QAREA}, v21
    v_mul_u32_u24 v27, {OSTR}, v20
    v_lshl_add_u32 v27, v2, 4, v27
    s_add_u32 s57, s55, {TB}
    v_add_u32 v27, s57, v27
    v_lshlrev_b32 v20, 3, v20
    s_add_u32 s57, s57, {MLOFF}
    v_add_u32 v1, s57, v20
    v_mov_b32 v20, 0xff800000
    v_mov_b32 v21, 0xff800000
    v_mov_b32 v22, 0""")
    for r in range(56, 88, 2): a(f"v_mov_b64 v[{r}:{r+1}], 0")
    a(f"s_mov_b32 s58, {hx(f2u(128**-0.5 * 1.4426950408889634))}")
    a("s_mov_b32 s59, 7")
    a("s_barrier")
    stamp(2)
    for s in range(4): a(f"ds_read_b128 v[{40+4*s}:{43+4*s}], v23 offset:{16*s}")
    a("L_loop:")
    a("s_waitcnt vmcnt(24)")
    for s in range(4):
        for t in range(2): a(f"ds_read_b128 v[{88+(s*2+t)*4}:{91+(s*2+t)*4}], v{8+s} offset:{t*4096}")
    for s in range(4):
        a(f"s_waitcnt lgkmcnt({6-2*s})")
        for t in range(2):
            c = "0" if s == 0 else f"v[{32+4*t}:{35+4*t}]"
            a(f"v_mfma_f32_16x16x32_bf16 v[{32+4*t}:{35+4*t}], v[{88+(s*2+t)*4}:{91+(s*2+t)*4}], v[{40+4*s}:{43+4*s}], {c}")
    tile_dma("s[32:35]", 0)
    a("""v_max3_f32 v23, v32, v33, v34
    v_max3_f32 v23, v23, v35, v36
    v_max3_f32 v23, v23, v37, v38
    v_max3_f32 v23, v23, v39, v20
    v_mov_b32 v24, v23
    v_permlane32_swap_b32 v23, v24
    v_max_f32 v23, v23, v24
    v_mov_b32 v24, v23
    v_permlane16_swap_b32 v23, v24
    v_max_f32 v20, v23, v24
    v_mul_f32 v26, s58, v20
    v_sub_f32 v25, v21, v26
    v_exp_f32 v25, v25
    v_mov_b32 v21, v26""")
    for i in range(8): a(f"v_fma_f32 v{32+i}, v{32+i}, s58, -v26")
    for i in range(8): a(f"v_exp_f32 v{32+i}, v{32+i}")
    for r in range(56, 88): a(f"v_mul_f32 v{r}, v25, v{r}")
    a("v_fma_f32 v22, v22, v25, v32")
    for i in range(1, 8): a(f"v_add_f32 v22, v22, v{32+i}")
    for i in range(4): a(f"v_cvt_pk_bf16_f32 v{28+i}, v{32+2*i}, v{33+2*i}")
    for s in range(4): a(f"v_xor_b32 v{8+s}, 0x4000, v{8+s}")
    a("s_waitcnt vmcnt(24)")
    for t in range(8):
        for u in range(2): a(f"ds_read_b64_tr_b16 v[{120+4*t+2*u}:{121+4*t+2*u}], v{12+t} offset:{u*4096}")
    for t in range(8):
        a(f"s_waitcnt lgkmcnt({14-2*t})")
        a(f"v_mfma_f32_16x16x32_bf16 v[{56+4*t}:{59+4*t}], v[{120+4*t}:{123+4*t}], v[28:31], v[{56+4*t}:{59+4*t}]")
    a("""s_sub_u32 s59, s59, 1
    s_cbranch_scc1 L_sdone""")
    tile_dma("s[36:39]", 8192)
    for t in range(8): a(f"v_xor_b32 v{12+t}, 0x4000, v{12+t}")
    a(f"""s_add_u32 s54, s54, {B_}
    s_add_u32 s56, s56, {B_}
    s_xor_b32 s55, s55, 16384
    s_branch L_loop
    L_sdone:""")
    a("""v_mov_b32 v24, v22
    v_permlane32_swap_b32 v22, v24
    v_add_f32 v22, v22, v24
    v_mov_b32 v24, v22
    v_permlane16_swap_b32 v22, v24
    v_add_f32 v23, v22, v24
    v_mov_b32 v22, v21
    s_mov_b32 exec_lo, 0x000f000f
    s_mov_b32 exec_hi, 0x000f000f
    ds_write_b64 v1, v[22:23]""")
    for t in range(8): a(f"ds_write_b128 v27, v[{56+4*t}:{59+4*t}] offset:{t*64}")
    a("s_waitcnt lgkmcnt(0)")
    stamp(3)
    a("s_barrier")
    flush_stamps(4)
    a("s_endpgm")

    a("""L_aux:
    s_sub_u32 s52, s3, 4
    s_and_b32 s53, s2, 7
    s_lshr_b32 s54, s2, 3
    s_and_b32 s55, s54, 3
    s_lshr_b32 s56, s54, 2
    s_mov_b32 s58, 0x3f803f80
    s_mov_b32 s59, 0x3f803f80""")
    for r in range(32, 96, 2): a(f"v_mov_b64 v[{r}:{r+1}], s[58:59]")
    a(f"""v_lshlrev_b32 v4, 10, v3
    v_lshl_add_u32 v4, v2, 4, v4
    v_lshrrev_b32 v5, 1, v0
    v_and_b32 v6, 1, v0
    v_lshlrev_b32 v6, 4, v6
    v_lshlrev_b32 v7, 3, v3
    v_lshl_add_u32 v7, v2, 8, v7
    s_movk_i32 s57, 3584
    s_cmp_eq_u32 s52, 0
    s_cmov_b32 s57, 8192
    s_lshr_b32 s58, s57, 3
    s_lshl_b32 s62, s57, 9
    s_lshl_b32 s60, s52, 14
    s_add_u32 s60, s60, {QAREA}
    s_mul_i32 s58, s58, s53
    s_lshl_b32 s59, s54, 5
    s_add_u32 s58, s58, s59
    v_mad_u32_u24 v8, v5, s57, v6
    v_add_u32 v9, s60, v7
    v_lshlrev_b32 v30, 1, v3
    v_lshl_add_u32 v31, v2, 10, v30
    s_waitcnt lgkmcnt(0)
    s_load_dword s30, s[28:29], 0""")
    srd(40, 28, None, WS_SIZE)
    a("""s_cmp_ge_u32 s52, 2
    s_cbranch_scc1 L_bar0
    s_cmp_eq_u32 s52, 0
    s_cbranch_scc1 L_qh
    s_cmp_ge_u32 s54, 14
    s_cbranch_scc1 L_bar0
    s_mov_b32 s10, s16
    s_mov_b32 s11, s17
    L_qh:""")
    srd(32, 4, None, 4096)
    a("""s_add_u32 s36, s10, s58
    s_addc_u32 s37, s11, 0
    s_sub_u32 s38, s62, s58
    s_mov_b32 s39, 0x20000
    s_mov_b32 exec_lo, 0x000f000f
    s_mov_b32 exec_hi, 0x000f000f""")
    for s in range(16): a(f"buffer_load_dwordx4 v[{32+4*s}:{35+4*s}], v4, s[32:35], 0 offen offset:{64*s}")
    a("""s_mov_b64 exec, -1
    s_lshl_b32 s61, s57, 5
    s_mov_b32 s62, 0
    s_mov_b32 m0, s60""")
    for k in range(16):
        a(f"buffer_load_dwordx4 v8, s[36:39], s62 offen {wf} lds")
        if k < 15: a("s_add_u32 s62, s62, s61\ns_add_u32 m0, m0, 1024")
    srd(44, 18, None, 3584)
    a("""v_lshlrev_b32 v10, 3, v2
    buffer_load_dwordx2 v[12:13], v10, s[44:47], s58 offen
    s_waitcnt vmcnt(17)""")
    stamp(1)
    for s in range(16):
        c = "0" if s == 0 else "v[160:163]"
        a(f"v_mfma_f32_16x16x32_bf16 v[160:163], v[{32+4*s}:{35+4*s}], v[{32+4*s}:{35+4*s}], {c}")
    a("s_waitcnt vmcnt(1)")
    stamp(2)
    def trq(s):
        for u in range(2): a(f"ds_read_b64_tr_b16 v[{96+4*s+2*u}:{97+4*s+2*u}], v9 offset:{s*1024+u*128}")
    for s in range(6): trq(s)
    a("""v_cmp_eq_u32 vcc, 1, v3
    v_cndmask_b32 v14, v160, v161, vcc
    v_cmp_eq_u32 vcc, 2, v3
    v_cndmask_b32 v14, v14, v162, vcc
    v_cmp_eq_u32 vcc, 3, v3
    v_cndmask_b32 v14, v14, v163, vcc
    v_lshlrev_b32 v15, 2, v3
    v_add_u32 v16, 64, v15""")
    for s in range(16):
        a(f"s_waitcnt lgkmcnt({min(10, 2*(15-s))})")
        c = "0" if s == 0 else "v[164:167]"
        a(f"v_mfma_f32_16x16x32_bf16 v[164:167], v[{96+4*s}:{99+4*s}], v[{32+4*s}:{35+4*s}], {c}")
        if s + 6 < 16: trq(s + 6)
    a(f"""ds_bpermute_b32 v14, v15, v14
    ds_bpermute_b32 v15, v16, v160
    s_mov_b32 s62, {hx(f2u(1/512))}
    s_mov_b32 s63, {hx(f2u(1e-5))}
    s_waitcnt lgkmcnt(0)
    s_add_u32 s30, s30, {hx(TAGC)}
    v_mul_f32 v15, s62, v15
    v_mul_f32 v14, s62, v14
    v_fma_f32 v14, -v15, v15, v14
    v_max_f32 v14, 0, v14
    v_add_f32 v16, s63, v14
    v_rsq_f32 v16, v16
    v_sub_f32 v15, 0, v15""")
    for i in range(4): a(f"v_fmac_f32_dpp v{164+i}, v{164+i}, v15 row_shl:4 row_mask:0xf bank_mask:0xf bound_ctrl:1")
    a("""s_cmp_eq_u32 s52, 0
    s_cbranch_scc1 L_qep
    v_mul_f32 v17, v16, v16
    v_fma_f32 v17, v17, v14, s63
    v_rsq_f32 v17, v17
    s_waitcnt vmcnt(0)
    v_lshlrev_b32 v18, 16, v12
    v_and_b32 v19, 0xffff0000, v12
    v_mul_f32 v16, v16, v17
    v_lshlrev_b32 v20, 16, v13
    v_and_b32 v21, 0xffff0000, v13""")
    k1 = -2 * 1.4426950408889634 * 0.7978845608028654
    a(f"s_mov_b32 s62, {hx(f2u(k1))}\ns_mov_b32 s63, {hx(f2u(k1*0.044715))}")
    for i in range(4): a(f"v_fma_f32 v{164+i}, v{164+i}, v16, v{18+i}")
    for i in range(4): a(f"v_mul_f32 v{18+i}, v{164+i}, v{164+i}")
    a("v_mov_b32 v22, s62")
    for i in range(4): a(f"v_fma_f32 v{18+i}, v{18+i}, s63, v22")
    for i in range(4): a(f"v_mul_f32 v{18+i}, v{18+i}, v{164+i}")
    for i in range(4): a(f"v_exp_f32 v{18+i}, v{18+i}")
    for i in range(4): a(f"v_add_f32 v{18+i}, 1.0, v{18+i}")
    for i in range(4): a(f"v_rcp_f32 v{18+i}, v{18+i}")
    for i in range(4): a(f"v_mul_f32 v{164+i}, v{164+i}, v{18+i}")
    a(f"""v_mul_u32_u24 v10, 896, v3
    s_lshl_b32 s62, s53, 12
    s_add_u32 s62, s62, {HBUF}
    s_branch L_pub
    L_qep:""")
    for i in range(4): a(f"v_mul_f32 v{164+i}, v{164+i}, v16")
    a(f"""v_lshlrev_b32 v10, 14, v3
    s_lshl_b32 s62, s53, 11
    s_add_u32 s62, s62, {QBUF}
    L_pub:
    v_cvt_pk_bf16_f32 v20, v164, v165
    v_cvt_pk_bf16_f32 v21, v166, v167
    v_mov_b32 v22, s30
    v_mov_b32 v23, s30
    v_lshl_add_u32 v10, v2, 4, v10
    s_lshl_b32 s63, s54, 6
    s_add_u32 s62, s62, s63
    s_mov_b32 exec_lo, 0x000f000f
    s_mov_b32 exec_hi, 0x000f000f
    buffer_store_dwordx4 v[20:23], v10, s[40:43], s62 offen sc1
    s_mov_b64 exec, -1""")
    stamp(3)
    a(f"""s_cmp_eq_u32 s52, 0
    s_cbranch_scc0 L_bar0b
    s_and_b32 s62, s2, 31
    s_lshl_b32 s62, s62, 11
    s_add_u32 s62, s62, {QBUF}
    v_lshlrev_b32 v10, 4, v0""")
    poll("L_pq", ["buffer_load_dwordx4 v[96:99], v10, s[40:43], s62 offen sc1",
                  "buffer_load_dwordx4 v[100:103], v10, s[40:43], s62 offen offset:1024 sc1"], [98, 99, 102, 103])
    a(f"""v_lshlrev_b32 v10, 3, v0
    v_add_u32 v10, {QAREA}, v10
    ds_write_b64 v10, v[96:97]
    ds_write_b64 v10, v[100:101] offset:512
    s_branch L_bar0b
    L_bar0:
    s_waitcnt lgkmcnt(0)
    s_add_u32 s30, s30, {hx(TAGC)}
    L_bar0b:
    s_waitcnt lgkmcnt(0)""")
    stamp(4)
    a("s_barrier")
    a("""s_lshl_b32 s57, s53, 2
    s_add_u32 s57, s57, s52
    s_lshl_b32 s57, s57, 17
    s_lshl_b32 s58, s56, 7
    s_add_u32 s57, s57, s58
    s_add_u32 s32, s12, s57
    s_addc_u32 s33, s13, 0
    s_sub_u32 s34, 131072, s58
    s_mov_b32 s35, 0x20000
    v_lshrrev_b32 v10, 3, v0
    v_and_b32 v11, 7, v0
    v_lshlrev_b32 v11, 4, v11
    v_lshl_add_u32 v10, v10, 10, v11
    s_mov_b32 s57, 0""")
    for k in range(16):
        a(f"buffer_load_dwordx4 v[{96+4*k}:{99+4*k}], v10, s[32:35], s57 offen {wf}")
        if k < 15: a("s_add_u32 s57, s57, 8192")
    a(f"""s_lshl_b32 s57, s52, 12
    s_add_u32 s57, s57, {HAREA}
    v_lshlrev_b32 v10, 4, v0
    v_add_u32 v10, s57, v10
    v_bfe_u32 v11, v0, 2, 2
    v_lshlrev_b32 v11, 7, v11
    v_lshl_add_u32 v11, v2, 10, v11
    v_and_b32 v12, 3, v0
    v_lshl_add_u32 v11, v12, 3, v11
    v_add_u32 v11, s57, v11""")
    for s in range(4):
        a(f"s_waitcnt vmcnt({12-4*s})")
        for k in range(4): a(f"ds_write_b128 v10, v[{96+16*s+4*k}:{99+16*s+4*k}] offset:{k*1024}")
        for t in range(4):
            for u in range(2):
                r = 32 + (s*4+t)*4 + 2*u
                a(f"ds_read_b64_tr_b16 v[{r}:{r+1}], v11 offset:{u*512+t*32}")
        a("s_waitcnt lgkmcnt(0)")
    stamp(5)
    a("""s_cmp_eq_u32 s52, 2
    s_cbranch_scc0 L_not2""")
    a(f"""s_mul_i32 s57, s53, {224*1024}
    s_lshl_b32 s58, s54, 5
    s_add_u32 s57, s57, s58
    s_add_u32 s36, s20, s57
    s_addc_u32 s37, s21, 0
    s_sub_u32 s38, {224*1024}, s58
    s_mov_b32 s39, 0x20000
    v_lshl_add_u32 v8, v5, 10, v6
    s_mov_b32 s57, 0
    s_mov_b32 m0, {QAREA+8192}""")
    for k in range(7):
        a(f"buffer_load_dwordx4 v8, s[36:39], s57 offen {wf} lds")
        if k < 6: a("s_add_u32 s57, s57, 32768\ns_add_u32 m0, m0, 1024")
    a(f"""v_and_b32 v10, 3, v0
    v_mul_u32_u24 v10, 896, v10
    v_lshl_add_u32 v10, v2, 5, v10
    s_lshl_b32 s57, s53, 12
    s_add_u32 s57, s57, {HBUF}""")
    poll("L_ph", [f"buffer_load_dwordx4 v[{96+4*i}:{99+4*i}], v10, s[40:43], s57 offen offset:{(i//2)*128+(i%2)*16} sc1" for i in range(14)],
         [98 + 4*i for i in range(14)])
    a(f"v_add_u32 v9, {QAREA+8192}, v7")
    for s in range(7):
        for u in range(2): a(f"ds_read_b64_tr_b16 v[{176+4*s+2*u}:{177+4*s+2*u}], v9 offset:{s*1024+u*128}")
    for s in range(7): a(f"v_mov_b64 v[{98+8*s}:{99+8*s}], v[{100+8*s}:{101+8*s}]")
    a("s_waitcnt lgkmcnt(0)")
    for s in range(7):
        c = "0" if s == 0 else "v[164:167]"
        a(f"v_mfma_f32_16x16x32_bf16 v[164:167], v[{176+4*s}:{179+4*s}], v[{96+8*s}:{99+8*s}], {c}")
    a(f"""v_lshlrev_b32 v10, 10, v3
    v_lshl_add_u32 v10, v2, 5, v10
    s_lshl_b32 s57, s54, 12
    s_lshl_b32 s58, s53, 7
    s_add_u32 s57, s57, s58
    s_add_u32 s57, s57, {MBUF}
    v_mov_b32 v21, s30
    v_mov_b32 v23, s30
    v_mov_b32 v25, s30
    v_mov_b32 v27, s30
    v_mov_b32 v20, v164
    v_mov_b32 v22, v165
    v_mov_b32 v24, v166
    v_mov_b32 v26, v167
    s_mov_b32 exec_lo, 0x000f000f
    s_mov_b32 exec_hi, 0x000f000f
    buffer_store_dwordx4 v[20:23], v10, s[40:43], s57 offen sc1
    buffer_store_dwordx4 v[24:27], v10, s[40:43], s57 offen offset:16 sc1
    s_mov_b64 exec, -1
    s_branch L_bar1
    L_not2:
    s_cmp_eq_u32 s52, 3
    s_cbranch_scc0 L_bar1
    s_and_b32 s57, s54, 7
    s_cmp_eq_u32 s57, s53
    s_cbranch_scc0 L_bar1""")
    srd(44, 22, None, 1024); srd(48, 4, None, 4096)
    a(f"""s_lshl_b32 s57, s54, 5
    buffer_load_ushort v28, v30, s[44:47], s57 offen
    buffer_load_ushort v29, v31, s[48:51], s57 offen
    s_lshl_b32 s60, s54, 12
    s_add_u32 s60, s60, {MBUF}
    s_call_b64 s[62:63], L_gather
    v_lshlrev_b32 v28, 16, v28
    v_lshlrev_b32 v29, 16, v29
    v_add_f32 v28, v28, v112
    v_mul_f32 v30, {hx(f2u(-1.4426950408889634))}, v28
    v_exp_f32 v30, v30
    v_add_f32 v30, 1.0, v30
    v_rcp_f32 v30, v30
    v_mul_f32 v28, v28, v30
    L_bar1:""")
    a(f"""v_and_b32 v10, 31, v0
    v_lshlrev_b32 v10, 4, v10
    s_mul_i32 s57, s52, {OSTR}
    s_add_u32 s57, s57, {TB}
    v_add_u32 v11, s57, v10
    v_add_u32 v12, 0x10000, v11
    s_lshl_b32 s57, s52, 3
    s_add_u32 s57, s57, {TB+MLOFF}
    v_mov_b32 v13, s57
    v_add_u32 v14, 0x10000, v13
    s_and_b32 s57, s2, 31
    s_lshl_b32 s57, s57, 14
    s_lshl_b32 s58, s52, 12
    s_add_u32 s57, s57, s58
    s_add_u32 s57, s57, {OBUF}
    s_lshl_b32 s58, s56, 9
    s_add_u32 s58, s58, s57
    v_and_b32 v15, 7, v0
    v_lshlrev_b32 v15, 9, v15
    v_lshl_add_u32 v15, v2, 5, v15
    s_lshl_b32 s59, s52, 8
    s_add_u32 s59, s59, {QAREA+2048}
    v_lshlrev_b32 v16, 2, v0
    v_add_u32 v17, s59, v16
    v_add_u32 v16, {QAREA+2048}, v16
    v_mov_b32 v123, s30""")
    stamp(6)
    a("s_barrier")
    stamp(7)
    a("""ds_read_b64 v[112:113], v13
    ds_read_b64 v[114:115], v13 offset:32768
    ds_read_b64 v[116:117], v14
    ds_read_b64 v[118:119], v14 offset:32768
    ds_read_b128 v[96:99], v11
    ds_read_b128 v[100:103], v11 offset:32768
    ds_read_b128 v[104:107], v12
    ds_read_b128 v[108:111], v12 offset:32768
    s_waitcnt lgkmcnt(4)
    v_max3_f32 v122, v112, v114, v116
    v_max_f32 v122, v122, v118""")
    for w in range(4): a(f"v_sub_f32 v{112+2*w}, v{112+2*w}, v122")
    for w in range(4): a(f"v_exp_f32 v{112+2*w}, v{112+2*w}")
    a("""v_mul_f32 v124, v112, v113
    v_fmac_f32 v124, v114, v115
    v_fmac_f32 v124, v116, v117
    v_fmac_f32 v124, v118, v119
    v_rcp_f32 v125, v124
    v_log_f32 v124, v124
    s_waitcnt lgkmcnt(0)""")
    for i in range(4): a(f"v_mul_f32 v{96+i}, v112, v{96+i}")
    for w in range(1, 4):
        for i in range(4): a(f"v_fmac_f32 v{96+i}, v{112+2*w}, v{96+4*w+i}")
    a("v_add_f32 v122, v122, v124")
    for i in range(4): a(f"v_mul_f32 v{96+i}, v125, v{96+i}")
    a("""v_cvt_pk_bf16_f32 v120, v96, v97
    v_cvt_pk_bf16_f32 v121, v98, v99
    s_mov_b32 exec_hi, 0
    buffer_store_dwordx4 v[120:123], v10, s[40:43], s58 offen sc1
    s_mov_b64 exec, -1""")
    stamp(8)
    poll("L_po", [f"buffer_load_dwordx4 v[{96+4*i}:{99+4*i}], v15, s[40:43], s57 offen offset:{(i//2)*128+(i%2)*16} sc1" for i in range(8)],
         [99 + 4*i for i in range(8)])
    stamp(9)
    a("v_mov_b32 v18, v98")
    for s in range(4): a(f"v_mov_b64 v[{98+8*s}:{99+8*s}], v[{100+8*s}:{101+8*s}]")
    mf = []
    for s in range(4):
        for t in range(4):
            c = "0" if s == 0 else f"v[{160+4*t}:{163+4*t}]"
            r = 32 + (s*4+t)*4
            mf.append(f"v_mfma_f32_16x16x32_bf16 v[{160+4*t}:{163+4*t}], v[{96+8*s}:{99+8*s}], v[{r}:{r+3}], {c}")
    dp = "row_mask:0xf bank_mask:0xf"
    wv = [f"v_max_f32_dpp v19, v18, v18 row_ror:4 {dp}", f"v_max_f32_dpp v19, v19, v19 row_ror:2 {dp}", f"v_max_f32_dpp v19, v19, v19 row_ror:1 {dp}",
          "v_sub_f32 v18, v18, v19", "v_exp_f32 v18, v18",
          f"v_add_f32_dpp v19, v18, v18 row_ror:4 {dp}", f"v_add_f32_dpp v19, v19, v19 row_ror:2 {dp}", f"v_add_f32_dpp v19, v19, v19 row_ror:1 {dp}",
          "v_rcp_f32 v19, v19", "v_mul_f32 v18, v18, v19"]
    for i in range(4):
        wv.append(f"v_mov_b32_dpp v{20+i}, v18 row_newbcast:{i} row_mask:0x5 bank_mask:0xf\nv_mov_b32_dpp v{20+i}, v18 row_newbcast:{4+i} row_mask:0xa bank_mask:0xf")
    for i, m in enumerate(mf):
        a(m)
        if i < len(wv): a(wv[i])
    for t in range(4): a(f"v_mul_f32 v{24+t}, v20, v{160+4*t}")
    for i in range(1, 4):
        for t in range(4): a(f"v_fmac_f32 v{24+t}, v{20+i}, v{160+4*t+i}")
    a("""v_permlane16_swap_b32 v24, v25
    v_permlane16_swap_b32 v26, v27
    v_add_f32 v24, v24, v25
    v_add_f32 v26, v26, v27
    s_mov_b32 exec_lo, 0
    v_mov_b32 v24, v26
    s_mov_b64 exec, -1
    ds_write_b32 v17, v24
    s_waitcnt lgkmcnt(0)
    s_barrier
    s_cmp_eq_u32 s52, 3
    s_cbranch_scc0 L_auxend""")
    a(f"""ds_read2st64_b32 v[20:21], v16 offset0:0 offset1:1
    ds_read2st64_b32 v[22:23], v16 offset0:2 offset1:3
    v_lshlrev_b32 v10, 3, v3
    v_lshl_add_u32 v10, v2, 12, v10
    s_lshl_b32 s57, s56, 14
    s_lshl_b32 s58, s55, 10
    s_add_u32 s57, s57, s58
    s_lshl_b32 s58, s53, 7
    s_add_u32 s57, s57, s58
    s_add_u32 s57, s57, {SBUF}
    v_mov_b32 v25, s30
    s_waitcnt lgkmcnt(0)
    v_add_f32 v20, v20, v21
    v_add_f32 v22, v22, v23
    v_add_f32 v24, v20, v22
    buffer_store_dwordx2 v[24:25], v10, s[40:43], s57 offen sc1""")
    stamp(10)
    a(f"""s_and_b32 s57, s54, 7
    s_cmp_eq_u32 s57, s53
    s_cbranch_scc0 L_auxend
    s_lshl_b32 s60, s54, 12
    s_add_u32 s60, s60, {SBUF}
    s_call_b64 s[62:63], L_gather
    v_fma_f32 v28, v28, v112, v29
    v_cvt_pk_bf16_f32 v28, v28, v28""")
    srd(44, 24, None, 4096)
    a("""s_lshl_b32 s57, s54, 5
    buffer_store_short v28, v31, s[44:47], s57 offen""")
    stamp(11)
    a("""s_cmp_eq_u32 s54, 0
    s_cbranch_scc0 L_auxend
    v_mov_b32 v10, 0
    s_mov_b64 exec, 1
    buffer_store_dword v25, v10, s[40:43], 0 offen sc1
    L_auxend:""")
    flush_stamps(12)
    a("L_end:\ns_endpgm")
    a("""L_gather:
    v_lshlrev_b32 v10, 3, v3
    v_lshl_add_u32 v10, v2, 10, v10""")
    poll("L_pg", [f"buffer_load_dwordx2 v[{96+2*i}:{97+2*i}], v10, s[40:43], s60 offen offset:{i*128} sc1" for i in range(8)],
         [97 + 2*i for i in range(8)])
    a("""v_add_f32 v96, v96, v98
    v_add_f32 v100, v100, v102
    v_add_f32 v104, v104, v106
    v_add_f32 v108, v108, v110
    v_add_f32 v96, v96, v100
    v_add_f32 v104, v104, v108
    v_add_f32 v112, v96, v104
    s_setpc_b64 s[62:63]""")
    errs = a.check_branches()
    assert not errs, "\n".join(errs)
    a.raw(f""".section .rodata,"a"
.p2align 6
.amdhsa_kernel {name}
  .amdhsa_next_free_vgpr 208
  .amdhsa_next_free_sgpr 96
  .amdhsa_accum_offset 208
  .amdhsa_group_segment_fixed_size 0
  .amdhsa_kernarg_size 104
  .amdhsa_user_sgpr_count 2
  .amdhsa_user_sgpr_kernarg_segment_ptr 1
  .amdhsa_system_sgpr_workgroup_id_x 1
.end_amdhsa_kernel""")
    return a.text()

if __name__ == "__main__":
    out = sys.argv[1]
    kw = eval("dict(%s)" % (sys.argv[2] if len(sys.argv) > 2 else ""))
    open(out, "w").write(gen(**kw))
```

```python
import struct, sys
sys.path.insert(0, "work")
from asmdsl import Asm

NAME = "recurrent_scan__gqa_block_cached__mixer_channel_mlp__decode_kernel"
def f2u(x): return struct.unpack("<I", struct.pack("<f", x))[0]
def hx(x): return "0x%08x" % (x & 0xffffffff)

QBUF, HBUF, MBUF, OBUF, SBUF, STAMPS = 0x1000, 0x20000, 0x30000, 0x60000, 0x100000, 0x200000
WS_SIZE = 0x400000
QAREA, HAREA = 131072, 147456
TB = 24576
OSTR = 528
MLOFF = 2304
TAGC = 0x9E3779B9
SPIN = 20000

HEADER = open("recurrent_scan__gqa_block_cached__mixer_channel_mlp__decode.s.ref").read().split("; Override launch")[0]

def gen(name=NAME, stamps=False, kvf="nt", wf="", G=4, throttle=None, spin=SPIN, dbg=False, poison=None):
    a = Asm()
    nst = [0]
    def stamp(k):
        if stamps:
            a(f"s_memrealtime s[{70+2*k}:{71+2*k}]\ns_waitcnt lgkmcnt(0)")
    def flush_stamps(n):
        if not stamps: return
        a("s_mov_b64 exec, -1")
        a("v_mov_b32 v200, 0")
        for k in range(n): a(f"v_writelane_b32 v200, s{70+2*k}, {k}")
        a("s_getreg_b32 s68, hwreg(HW_REG_XCC_ID, 0, 4)\nv_writelane_b32 v200, s68, 15")
        a(f"""s_lshl_b32 s68, s2, 3
        s_add_u32 s68, s68, s3
        s_lshl_b32 s68, s68, 6
        s_add_u32 s68, s68, {STAMPS}
        s_mov_b32 s64, s28
        s_mov_b32 s65, s29
        s_mov_b32 s66, {WS_SIZE}
        s_mov_b32 s67, 0x20000
        v_lshlrev_b32 v201, 2, v0
        s_mov_b64 exec, 0xffff
        buffer_store_dword v200, v201, s[64:67], s68 offen
        s_waitcnt vmcnt(0)""")
    def dbgmax(k, neg=False):
        if not dbg: return
        a(f"""s_memrealtime s[68:69]
        s_mov_b32 s64, s26
        s_mov_b32 s65, s27
        s_mov_b32 s66, 256
        s_mov_b32 s67, 0x20000
        s_mov_b64 s[94:95], exec
        s_mov_b64 exec, 1
        s_waitcnt lgkmcnt(0)""")
        if neg: a("s_not_b32 s68, s68")
        a(f"""v_mov_b32 v202, s68
        v_mov_b32 v203, 0
        buffer_atomic_umax v202, v203, s[64:67], 0 offen offset:{4*k}
        s_mov_b64 exec, s[94:95]""")
    def srd(d, lo, off, size):
        if off is None:
            a(f"s_mov_b32 s{d}, s{lo}\ns_mov_b32 s{d+1}, s{lo+1}")
        else:
            a(f"s_add_u32 s{d}, s{lo}, {off}\ns_addc_u32 s{d+1}, s{lo+1}, 0")
        a(f"s_mov_b32 s{d+2}, {size}\ns_mov_b32 s{d+3}, 0x20000")
    def poll(lbl, loads, tags):
        a(f"s_mov_b32 s31, {spin}")
        a(f"{lbl}:")
        for l in loads: a(l)
        a("s_waitcnt vmcnt(0)")
        for t in tags: a(f"v_cmpx_eq_u32 vcc, s30, v{t}")
        a(f"""s_cmp_eq_u64 exec, -1
        s_mov_b64 exec, -1
        s_cbranch_scc1 {lbl}_ok
        s_sub_u32 s31, s31, 1
        s_cbranch_scc0 {lbl}
        {lbl}_ok:""")

    a.raw(HEADER.rstrip("\n"))
    a.raw("; @launch grid=(256,1,1) block=(512,1,1) lds=163840")
    a.raw('.amdgcn_target "amdgcn-amd-amdhsa--gfx950"\n.text')
    a.raw(f".globl {name}\n.p2align 8\n.type {name},@function")
    a.label(name)
    a("""s_load_dwordx16 s[4:19], s[0:1], 0
    s_load_dwordx8 s[20:27], s[0:1], 64
    s_load_dwordx2 s[28:29], s[0:1], 96""")
    if stamps: a("s_memrealtime s[70:71]")
    a("""s_cmp_ge_u32 s2, 256
    s_cbranch_scc1 L_end
    v_lshrrev_b32 v1, 6, v0
    v_and_b32 v0, 63, v0
    v_readfirstlane_b32 s3, v1
    v_lshrrev_b32 v2, 4, v0
    v_and_b32 v3, 15, v0
    s_cmp_ge_u32 s3, 4
    s_cbranch_scc1 L_aux""")
    A_, B_, C_ = (4096, 32768, 16384) if G == 4 else (8192, 32768, 4096)
    a(f"""v_lshlrev_b32 v4, 1, v2
    v_xor_b32 v4, v4, v3
    v_lshlrev_b32 v4, 4, v4
    v_lshl_add_u32 v4, v2, 8, v4
    v_xor_b32 v5, 0x80, v4
    v_xor_b32 v6, 16, v4
    v_xor_b32 v7, 0x90, v4
    s_and_b32 s52, s2, 31
    s_lshl_b32 s52, s52, 21
    s_lshr_b32 s53, s2, 5
    s_lshl_b32 s53, s53, 18
    s_add_u32 s52, s52, s53
    s_mul_i32 s54, s3, {A_}
    s_lshl_b32 s55, s3, 15
    s_add_u32 s56, s54, {C_}
    s_waitcnt lgkmcnt(0)""")
    srd(32, 6, "s52", 262144); srd(36, 8, "s52", 262144)
    def tile_dma(srdname, slot_off, thr=None):
        for u, so in ((0, "s54"), (1, "s56")):
            a(f"s_add_u32 m0, s55, {slot_off + u*4096}")
            if thr is not None: a(f"s_waitcnt vmcnt({thr})")
            for k in range(4):
                a(f"buffer_load_dwordx4 v{4+k}, {srdname}, {so} offen offset:{k*1024} {kvf} lds")
    a("L_pre:")
    tile_dma("s[32:35]", 0, throttle); tile_dma("s[36:39]", 8192, throttle)
    a(f"""s_add_u32 s54, s54, {B_}
    s_add_u32 s56, s56, {B_}
    s_xor_b32 s55, s55, 16384
    s_bitcmp1_b32 s55, 14
    s_cbranch_scc1 L_pre""")
    stamp(1)
    a(f"""v_and_b32 v20, 7, v3
    v_lshlrev_b32 v20, 1, v20
    v_lshrrev_b32 v21, 3, v3
    v_or_b32 v20, v20, v21
    v_lshlrev_b32 v21, 2, v2
    v_xor_b32 v20, v20, v21
    v_lshlrev_b32 v20, 4, v20
    v_lshl_add_u32 v20, v3, 8, v20
    v_add_u32 v8, s55, v20
    v_xor_b32 v9, 16, v8
    v_xor_b32 v10, 32, v8
    v_xor_b32 v11, 48, v8
    v_lshrrev_b32 v20, 2, v0
    v_and_b32 v21, 7, v20
    v_lshlrev_b32 v21, 1, v21
    v_lshrrev_b32 v22, 3, v20
    v_or_b32 v21, v21, v22
    v_bfe_u32 v22, v0, 1, 1
    v_xor_b32 v21, v21, v22
    v_lshlrev_b32 v21, 4, v21
    v_lshl_add_u32 v21, v20, 8, v21
    v_and_b32 v22, 1, v0
    v_lshl_add_u32 v21, v22, 3, v21
    s_add_u32 s57, s55, 8192
    v_add_u32 v12, s57, v21""")
    for t in range(1, 8): a(f"v_xor_b32 v{12+t}, {t*32}, v12")
    a(f"""v_and_b32 v20, 3, v3
    v_lshlrev_b32 v21, 6, v2
    v_lshl_add_u32 v21, v20, 8, v21
    v_add_u32 v23, {QAREA}, v21
    v_mul_u32_u24 v27, {OSTR}, v20
    v_lshl_add_u32 v27, v2, 4, v27
    s_add_u32 s57, s55, {TB}
    v_add_u32 v27, s57, v27
    v_lshlrev_b32 v20, 3, v20
    s_add_u32 s57, s57, {MLOFF}
    v_add_u32 v1, s57, v20
    v_mov_b32 v20, 0xff800000
    v_mov_b32 v21, 0xff800000
    v_mov_b32 v22, 0""")
    for r in range(56, 88, 2): a(f"v_mov_b64 v[{r}:{r+1}], 0")
    a(f"s_mov_b32 s58, {hx(f2u(128**-0.5 * 1.4426950408889634))}")
    a("s_mov_b32 s59, 7")
    a("s_barrier")
    stamp(2)
    for s in range(4): a(f"ds_read_b128 v[{40+4*s}:{43+4*s}], v23 offset:{16*s}")
    a("L_loop:")
    a("s_waitcnt vmcnt(24)")
    for s in range(4):
        for t in range(2): a(f"ds_read_b128 v[{88+(s*2+t)*4}:{91+(s*2+t)*4}], v{8+s} offset:{t*4096}")
    for s in range(4):
        a(f"s_waitcnt lgkmcnt({6-2*s})")
        for t in range(2):
            c = "0" if s == 0 else f"v[{32+4*t}:{35+4*t}]"
            a(f"v_mfma_f32_16x16x32_bf16 v[{32+4*t}:{35+4*t}], v[{88+(s*2+t)*4}:{91+(s*2+t)*4}], v[{40+4*s}:{43+4*s}], {c}")
    tile_dma("s[32:35]", 0)
    a("""v_max3_f32 v23, v32, v33, v34
    v_max3_f32 v23, v23, v35, v36
    v_max3_f32 v23, v23, v37, v38
    v_max3_f32 v23, v23, v39, v20
    v_mov_b32 v24, v23
    v_permlane32_swap_b32 v23, v24
    v_max_f32 v23, v23, v24
    v_mov_b32 v24, v23
    v_permlane16_swap_b32 v23, v24
    v_max_f32 v20, v23, v24
    v_mul_f32 v26, s58, v20
    v_sub_f32 v25, v21, v26
    v_exp_f32 v25, v25
    v_mov_b32 v21, v26""")
    for i in range(8): a(f"v_fma_f32 v{32+i}, v{32+i}, s58, -v26")
    for i in range(8): a(f"v_exp_f32 v{32+i}, v{32+i}")
    for r in range(56, 88): a(f"v_mul_f32 v{r}, v25, v{r}")
    a("v_fma_f32 v22, v22, v25, v32")
    for i in range(1, 8): a(f"v_add_f32 v22, v22, v{32+i}")
    for i in range(4): a(f"v_cvt_pk_bf16_f32 v{28+i}, v{32+2*i}, v{33+2*i}")
    for s in range(4): a(f"v_xor_b32 v{8+s}, 0x4000, v{8+s}")
    a("s_waitcnt vmcnt(24)")
    for t in range(8):
        for u in range(2): a(f"ds_read_b64_tr_b16 v[{120+4*t+2*u}:{121+4*t+2*u}], v{12+t} offset:{u*4096}")
    for t in range(8):
        a(f"s_waitcnt lgkmcnt({14-2*t})")
        a(f"v_mfma_f32_16x16x32_bf16 v[{56+4*t}:{59+4*t}], v[{120+4*t}:{123+4*t}], v[28:31], v[{56+4*t}:{59+4*t}]")
    a("""s_sub_u32 s59, s59, 1
    s_cbranch_scc1 L_sdone""")
    tile_dma("s[36:39]", 8192)
    for t in range(8): a(f"v_xor_b32 v{12+t}, 0x4000, v{12+t}")
    a(f"""s_add_u32 s54, s54, {B_}
    s_add_u32 s56, s56, {B_}
    s_xor_b32 s55, s55, 16384
    s_branch L_loop
    L_sdone:""")
    a("""v_mov_b32 v24, v22
    v_permlane32_swap_b32 v22, v24
    v_add_f32 v22, v22, v24
    v_mov_b32 v24, v22
    v_permlane16_swap_b32 v22, v24
    v_add_f32 v23, v22, v24
    v_mov_b32 v22, v21
    s_mov_b32 exec_lo, 0x000f000f
    s_mov_b32 exec_hi, 0x000f000f
    ds_write_b64 v1, v[22:23]""")
    for t in range(8): a(f"ds_write_b128 v27, v[{56+4*t}:{59+4*t}] offset:{t*64}")
    a("s_waitcnt lgkmcnt(0)")
    stamp(3)
    a("s_barrier")
    flush_stamps(4)
    a("s_endpgm")

    a("""L_aux:
    s_sub_u32 s52, s3, 4
    s_and_b32 s53, s2, 7
    s_lshr_b32 s54, s2, 3
    s_and_b32 s55, s54, 3
    s_lshr_b32 s56, s54, 2
    s_mov_b32 s58, 0x3f803f80
    s_mov_b32 s59, 0x3f803f80""")
    for r in range(32, 96, 2): a(f"v_mov_b64 v[{r}:{r+1}], s[58:59]")
    a(f"""v_lshlrev_b32 v4, 10, v3
    v_lshl_add_u32 v4, v2, 4, v4
    v_lshrrev_b32 v5, 1, v0
    v_and_b32 v6, 1, v0
    v_lshlrev_b32 v6, 4, v6
    v_lshlrev_b32 v7, 3, v3
    v_lshl_add_u32 v7, v2, 8, v7
    s_movk_i32 s57, 3584
    s_cmp_eq_u32 s52, 0
    s_cmov_b32 s57, 8192
    s_lshr_b32 s58, s57, 3
    s_lshl_b32 s62, s57, 9
    s_lshl_b32 s60, s52, 14
    s_add_u32 s60, s60, {QAREA}
    s_mul_i32 s58, s58, s53
    s_lshl_b32 s59, s54, 5
    s_add_u32 s58, s58, s59
    v_mad_u32_u24 v8, v5, s57, v6
    v_add_u32 v9, s60, v7
    v_lshlrev_b32 v30, 1, v3
    v_lshl_add_u32 v31, v2, 10, v30
    s_waitcnt lgkmcnt(0)
    s_load_dword s30, s[28:29], 0""")
    srd(40, 28, None, WS_SIZE)
    if dbg:
        a("s_cmp_eq_u32 s52, 3\ns_cbranch_scc0 L_d0"); dbgmax(0, True); dbgmax(1); a("L_d0:")
    a("""s_cmp_ge_u32 s52, 2
    s_cbranch_scc1 L_bar0
    s_cmp_eq_u32 s52, 0
    s_cbranch_scc1 L_qh
    s_cmp_ge_u32 s54, 14
    s_cbranch_scc1 L_bar0
    s_mov_b32 s10, s16
    s_mov_b32 s11, s17
    L_qh:""")
    srd(32, 4, None, 4096)
    a("""s_add_u32 s36, s10, s58
    s_addc_u32 s37, s11, 0
    s_sub_u32 s38, s62, s58
    s_mov_b32 s39, 0x20000
    s_mov_b32 exec_lo, 0x000f000f
    s_mov_b32 exec_hi, 0x000f000f""")
    for s in range(16): a(f"buffer_load_dwordx4 v[{32+4*s}:{35+4*s}], v4, s[32:35], 0 offen offset:{64*s}")
    a("""s_mov_b64 exec, -1
    s_lshl_b32 s61, s57, 5
    s_mov_b32 s62, 0
    s_mov_b32 m0, s60""")
    for k in range(16):
        a(f"buffer_load_dwordx4 v8, s[36:39], s62 offen {wf} lds")
        if k < 15: a("s_add_u32 s62, s62, s61\ns_add_u32 m0, m0, 1024")
    srd(44, 18, None, 3584)
    a("""v_lshlrev_b32 v10, 3, v2
    buffer_load_dwordx2 v[12:13], v10, s[44:47], s58 offen
    s_waitcnt vmcnt(17)""")
    stamp(1)
    for s in range(16):
        c = "0" if s == 0 else "v[160:163]"
        a(f"v_mfma_f32_16x16x32_bf16 v[160:163], v[{32+4*s}:{35+4*s}], v[{32+4*s}:{35+4*s}], {c}")
    a("s_waitcnt vmcnt(1)")
    stamp(2)
    def trq(s):
        for u in range(2): a(f"ds_read_b64_tr_b16 v[{96+4*s+2*u}:{97+4*s+2*u}], v9 offset:{s*1024+u*128}")
    for s in range(6): trq(s)
    a("""v_cmp_eq_u32 vcc, 1, v3
    v_cndmask_b32 v14, v160, v161, vcc
    v_cmp_eq_u32 vcc, 2, v3
    v_cndmask_b32 v14, v14, v162, vcc
    v_cmp_eq_u32 vcc, 3, v3
    v_cndmask_b32 v14, v14, v163, vcc
    v_lshlrev_b32 v15, 2, v3
    v_add_u32 v16, 64, v15""")
    for s in range(16):
        a(f"s_waitcnt lgkmcnt({min(10, 2*(15-s))})")
        c = "0" if s == 0 else "v[164:167]"
        a(f"v_mfma_f32_16x16x32_bf16 v[164:167], v[{96+4*s}:{99+4*s}], v[{32+4*s}:{35+4*s}], {c}")
        if s + 6 < 16: trq(s + 6)
    a(f"""ds_bpermute_b32 v14, v15, v14
    ds_bpermute_b32 v15, v16, v160
    s_mov_b32 s62, {hx(f2u(1/512))}
    s_mov_b32 s63, {hx(f2u(1e-5))}
    s_waitcnt lgkmcnt(0)
    s_add_u32 s30, s30, {hx(TAGC)}
    v_mul_f32 v15, s62, v15
    v_mul_f32 v14, s62, v14
    v_fma_f32 v14, -v15, v15, v14
    v_max_f32 v14, 0, v14
    v_add_f32 v16, s63, v14
    v_rsq_f32 v16, v16
    v_sub_f32 v15, 0, v15""")
    for i in range(4): a(f"v_fmac_f32_dpp v{164+i}, v{164+i}, v15 row_shl:4 row_mask:0xf bank_mask:0xf bound_ctrl:1")
    a("""s_cmp_eq_u32 s52, 0
    s_cbranch_scc1 L_qep
    v_mul_f32 v17, v16, v16
    v_fma_f32 v17, v17, v14, s63
    v_rsq_f32 v17, v17
    s_waitcnt vmcnt(0)
    v_lshlrev_b32 v18, 16, v12
    v_and_b32 v19, 0xffff0000, v12
    v_mul_f32 v16, v16, v17
    v_lshlrev_b32 v20, 16, v13
    v_and_b32 v21, 0xffff0000, v13""")
    k1 = -2 * 1.4426950408889634 * 0.7978845608028654
    a(f"s_mov_b32 s62, {hx(f2u(k1))}\ns_mov_b32 s63, {hx(f2u(k1*0.044715))}")
    for i in range(4): a(f"v_fma_f32 v{164+i}, v{164+i}, v16, v{18+i}")
    for i in range(4): a(f"v_mul_f32 v{18+i}, v{164+i}, v{164+i}")
    a("v_mov_b32 v22, s62")
    for i in range(4): a(f"v_fma_f32 v{18+i}, v{18+i}, s63, v22")
    for i in range(4): a(f"v_mul_f32 v{18+i}, v{18+i}, v{164+i}")
    for i in range(4): a(f"v_exp_f32 v{18+i}, v{18+i}")
    for i in range(4): a(f"v_add_f32 v{18+i}, 1.0, v{18+i}")
    for i in range(4): a(f"v_rcp_f32 v{18+i}, v{18+i}")
    for i in range(4): a(f"v_mul_f32 v{164+i}, v{164+i}, v{18+i}")
    a(f"""v_mul_u32_u24 v10, 896, v3
    s_lshl_b32 s62, s53, 12
    s_add_u32 s62, s62, {HBUF}
    s_branch L_pub
    L_qep:""")
    for i in range(4): a(f"v_mul_f32 v{164+i}, v{164+i}, v16")
    a(f"""v_lshlrev_b32 v10, 14, v3
    s_lshl_b32 s62, s53, 11
    s_add_u32 s62, s62, {QBUF}
    L_pub:
    v_cvt_pk_bf16_f32 v20, v164, v165
    v_cvt_pk_bf16_f32 v21, v166, v167
    v_mov_b32 v22, s30
    v_mov_b32 v23, s30
    v_lshl_add_u32 v10, v2, 4, v10
    s_lshl_b32 s63, s54, 6
    s_add_u32 s62, s62, s63
    s_mov_b32 exec_lo, 0x000f000f
    s_mov_b32 exec_hi, 0x000f000f
    buffer_store_dwordx4 v[20:23], v10, s[40:43], s62 offen sc1
    s_mov_b64 exec, -1""")
    stamp(3)
    a(f"""s_cmp_eq_u32 s52, 0
    s_cbranch_scc0 L_bar0b
    s_and_b32 s62, s2, 31
    s_lshl_b32 s62, s62, 11
    s_add_u32 s62, s62, {QBUF}
    v_lshlrev_b32 v10, 4, v0""")
    poll("L_pq", ["buffer_load_dwordx4 v[96:99], v10, s[40:43], s62 offen sc1",
                  "buffer_load_dwordx4 v[100:103], v10, s[40:43], s62 offen offset:1024 sc1"], [98, 99, 102, 103])
    a(f"""v_lshlrev_b32 v10, 3, v0
    v_add_u32 v10, {QAREA}, v10
    ds_write_b64 v10, v[96:97]
    ds_write_b64 v10, v[100:101] offset:512
    s_branch L_bar0b
    L_bar0:
    s_waitcnt lgkmcnt(0)
    s_add_u32 s30, s30, {hx(TAGC)}
    L_bar0b:
    s_waitcnt lgkmcnt(0)""")
    stamp(4)
    a("s_barrier")
    if dbg:
        a("s_cmp_eq_u32 s52, 3\ns_cbranch_scc0 L_d1"); dbgmax(2, True); dbgmax(3); a("L_d1:")
    a("""s_lshl_b32 s57, s53, 2
    s_add_u32 s57, s57, s52
    s_lshl_b32 s57, s57, 17
    s_lshl_b32 s58, s56, 7
    s_add_u32 s57, s57, s58
    s_add_u32 s32, s12, s57
    s_addc_u32 s33, s13, 0
    s_sub_u32 s34, 131072, s58
    s_mov_b32 s35, 0x20000
    v_lshrrev_b32 v10, 3, v0
    v_and_b32 v11, 7, v0
    v_lshlrev_b32 v11, 4, v11
    v_lshl_add_u32 v10, v10, 10, v11
    s_mov_b32 s57, 0""")
    for k in range(16):
        a(f"buffer_load_dwordx4 v[{96+4*k}:{99+4*k}], v10, s[32:35], s57 offen {wf}")
        if k < 15: a("s_add_u32 s57, s57, 8192")
    a(f"""s_lshl_b32 s57, s52, 12
    s_add_u32 s57, s57, {HAREA}
    v_lshlrev_b32 v10, 4, v0
    v_add_u32 v10, s57, v10
    v_bfe_u32 v11, v0, 2, 2
    v_lshlrev_b32 v11, 7, v11
    v_lshl_add_u32 v11, v2, 10, v11
    v_and_b32 v12, 3, v0
    v_lshl_add_u32 v11, v12, 3, v11
    v_add_u32 v11, s57, v11""")
    for s in range(4):
        a(f"s_waitcnt vmcnt({12-4*s})")
        for k in range(4): a(f"ds_write_b128 v10, v[{96+16*s+4*k}:{99+16*s+4*k}] offset:{k*1024}")
        for t in range(4):
            for u in range(2):
                r = 32 + (s*4+t)*4 + 2*u
                a(f"ds_read_b64_tr_b16 v[{r}:{r+1}], v11 offset:{u*512+t*32}")
        a("s_waitcnt lgkmcnt(0)")
    stamp(5)
    a("""s_cmp_eq_u32 s52, 2
    s_cbranch_scc0 L_not2""")
    a(f"""s_mul_i32 s57, s53, {224*1024}
    s_lshl_b32 s58, s54, 5
    s_add_u32 s57, s57, s58
    s_add_u32 s36, s20, s57
    s_addc_u32 s37, s21, 0
    s_sub_u32 s38, {224*1024}, s58
    s_mov_b32 s39, 0x20000
    v_lshl_add_u32 v8, v5, 10, v6
    s_mov_b32 s57, 0
    s_mov_b32 m0, {QAREA+8192}""")
    for k in range(7):
        a(f"buffer_load_dwordx4 v8, s[36:39], s57 offen {wf} lds")
        if k < 6: a("s_add_u32 s57, s57, 32768\ns_add_u32 m0, m0, 1024")
    a(f"""v_and_b32 v10, 3, v0
    v_mul_u32_u24 v10, 896, v10
    v_lshl_add_u32 v10, v2, 5, v10
    s_lshl_b32 s57, s53, 12
    s_add_u32 s57, s57, {HBUF}""")
    poll("L_ph", [f"buffer_load_dwordx4 v[{96+4*i}:{99+4*i}], v10, s[40:43], s57 offen offset:{(i//2)*128+(i%2)*16} sc1" for i in range(14)],
         [98 + 4*i for i in range(14)])
    a(f"v_add_u32 v9, {QAREA+8192}, v7")
    for s in range(7):
        for u in range(2): a(f"ds_read_b64_tr_b16 v[{176+4*s+2*u}:{177+4*s+2*u}], v9 offset:{s*1024+u*128}")
    for s in range(7): a(f"v_mov_b64 v[{98+8*s}:{99+8*s}], v[{100+8*s}:{101+8*s}]")
    a("s_waitcnt lgkmcnt(0)")
    for s in range(7):
        c = "0" if s == 0 else "v[164:167]"
        a(f"v_mfma_f32_16x16x32_bf16 v[164:167], v[{176+4*s}:{179+4*s}], v[{96+8*s}:{99+8*s}], {c}")
    a(f"""v_lshlrev_b32 v10, 10, v3
    v_lshl_add_u32 v10, v2, 5, v10
    s_lshl_b32 s57, s54, 12
    s_lshl_b32 s58, s53, 7
    s_add_u32 s57, s57, s58
    s_add_u32 s57, s57, {MBUF}
    v_mov_b32 v21, s30
    v_mov_b32 v23, s30
    v_mov_b32 v25, s30
    v_mov_b32 v27, s30
    v_mov_b32 v20, v164
    v_mov_b32 v22, v165
    v_mov_b32 v24, v166
    v_mov_b32 v26, v167
    s_mov_b32 exec_lo, 0x000f000f
    s_mov_b32 exec_hi, 0x000f000f
    buffer_store_dwordx4 v[20:23], v10, s[40:43], s57 offen sc1
    buffer_store_dwordx4 v[24:27], v10, s[40:43], s57 offen offset:16 sc1
    s_mov_b64 exec, -1
    s_branch L_bar1
    L_not2:
    s_cmp_eq_u32 s52, 3
    s_cbranch_scc0 L_bar1
    s_and_b32 s57, s54, 7
    s_cmp_eq_u32 s57, s53
    s_cbranch_scc0 L_bar1""")
    srd(44, 22, None, 1024); srd(48, 4, None, 4096)
    a(f"""s_lshl_b32 s57, s54, 5
    buffer_load_ushort v28, v30, s[44:47], s57 offen
    buffer_load_ushort v29, v31, s[48:51], s57 offen
    s_lshl_b32 s60, s54, 12
    s_add_u32 s60, s60, {MBUF}
    s_call_b64 s[62:63], L_gather
    v_lshlrev_b32 v28, 16, v28
    v_lshlrev_b32 v29, 16, v29
    v_add_f32 v28, v28, v112
    v_mul_f32 v30, {hx(f2u(-1.4426950408889634))}, v28
    v_exp_f32 v30, v30
    v_add_f32 v30, 1.0, v30
    v_rcp_f32 v30, v30
    v_mul_f32 v28, v28, v30
    L_bar1:""")
    a(f"""v_and_b32 v10, 31, v0
    v_lshlrev_b32 v10, 4, v10
    s_mul_i32 s57, s52, {OSTR}
    s_add_u32 s57, s57, {TB}
    v_add_u32 v11, s57, v10
    v_add_u32 v12, 0x10000, v11
    s_lshl_b32 s57, s52, 3
    s_add_u32 s57, s57, {TB+MLOFF}
    v_mov_b32 v13, s57
    v_add_u32 v14, 0x10000, v13
    s_and_b32 s57, s2, 31
    s_lshl_b32 s57, s57, 14
    s_lshl_b32 s58, s52, 12
    s_add_u32 s57, s57, s58
    s_add_u32 s57, s57, {OBUF}
    s_lshl_b32 s58, s56, 9
    s_add_u32 s58, s58, s57
    v_and_b32 v15, 7, v0
    v_lshlrev_b32 v15, 9, v15
    v_lshl_add_u32 v15, v2, 5, v15
    s_lshl_b32 s59, s52, 8
    s_add_u32 s59, s59, {QAREA+2048}
    v_lshlrev_b32 v16, 2, v0
    v_add_u32 v17, s59, v16
    v_add_u32 v16, {QAREA+2048}, v16
    v_mov_b32 v123, s30""")
    stamp(6)
    a("s_barrier")
    stamp(7)
    if dbg:
        a("s_cmp_eq_u32 s52, 3\ns_cbranch_scc0 L_d2"); dbgmax(4, True); dbgmax(5); a("L_d2:")
    a("""ds_read_b64 v[112:113], v13
    ds_read_b64 v[114:115], v13 offset:32768
    ds_read_b64 v[116:117], v14
    ds_read_b64 v[118:119], v14 offset:32768
    ds_read_b128 v[96:99], v11
    ds_read_b128 v[100:103], v11 offset:32768
    ds_read_b128 v[104:107], v12
    ds_read_b128 v[108:111], v12 offset:32768
    s_waitcnt lgkmcnt(4)
    v_max3_f32 v122, v112, v114, v116
    v_max_f32 v122, v122, v118""")
    for w in range(4): a(f"v_sub_f32 v{112+2*w}, v{112+2*w}, v122")
    for w in range(4): a(f"v_exp_f32 v{112+2*w}, v{112+2*w}")
    a("""v_mul_f32 v124, v112, v113
    v_fmac_f32 v124, v114, v115
    v_fmac_f32 v124, v116, v117
    v_fmac_f32 v124, v118, v119
    v_rcp_f32 v125, v124
    v_log_f32 v124, v124
    s_waitcnt lgkmcnt(0)""")
    for i in range(4): a(f"v_mul_f32 v{96+i}, v112, v{96+i}")
    for w in range(1, 4):
        for i in range(4): a(f"v_fmac_f32 v{96+i}, v{112+2*w}, v{96+4*w+i}")
    a("v_add_f32 v122, v122, v124")
    for i in range(4): a(f"v_mul_f32 v{96+i}, v125, v{96+i}")
    a("""v_cvt_pk_bf16_f32 v120, v96, v97
    v_cvt_pk_bf16_f32 v121, v98, v99
    s_mov_b32 exec_hi, 0
    buffer_store_dwordx4 v[120:123], v10, s[40:43], s58 offen sc1
    s_mov_b64 exec, -1""")
    stamp(8)
    poll("L_po", [f"buffer_load_dwordx4 v[{96+4*i}:{99+4*i}], v15, s[40:43], s57 offen offset:{(i//2)*128+(i%2)*16} sc1" for i in range(8)],
         [99 + 4*i for i in range(8)])
    stamp(9)
    a("v_mov_b32 v18, v98")
    for s in range(4): a(f"v_mov_b64 v[{98+8*s}:{99+8*s}], v[{100+8*s}:{101+8*s}]")
    mf = []
    for s in range(4):
        for t in range(4):
            c = "0" if s == 0 else f"v[{160+4*t}:{163+4*t}]"
            r = 32 + (s*4+t)*4
            mf.append(f"v_mfma_f32_16x16x32_bf16 v[{160+4*t}:{163+4*t}], v[{96+8*s}:{99+8*s}], v[{r}:{r+3}], {c}")
    dp = "row_mask:0xf bank_mask:0xf"
    wv = [f"v_max_f32_dpp v19, v18, v18 row_ror:4 {dp}", f"v_max_f32_dpp v19, v19, v19 row_ror:2 {dp}", f"v_max_f32_dpp v19, v19, v19 row_ror:1 {dp}",
          "v_sub_f32 v18, v18, v19", "v_exp_f32 v18, v18",
          f"v_add_f32_dpp v19, v18, v18 row_ror:4 {dp}", f"v_add_f32_dpp v19, v19, v19 row_ror:2 {dp}", f"v_add_f32_dpp v19, v19, v19 row_ror:1 {dp}",
          "v_rcp_f32 v19, v19", "v_mul_f32 v18, v18, v19"]
    for i in range(4):
        wv.append(f"v_mov_b32_dpp v{20+i}, v18 row_newbcast:{i} row_mask:0x5 bank_mask:0xf\nv_mov_b32_dpp v{20+i}, v18 row_newbcast:{4+i} row_mask:0xa bank_mask:0xf")
    for i, m in enumerate(mf):
        a(m)
        if i < len(wv): a(wv[i])
    for t in range(4): a(f"v_mul_f32 v{24+t}, v20, v{160+4*t}")
    for i in range(1, 4):
        for t in range(4): a(f"v_fmac_f32 v{24+t}, v{20+i}, v{160+4*t+i}")
    a("""v_permlane16_swap_b32 v24, v25
    v_permlane16_swap_b32 v26, v27
    v_add_f32 v24, v24, v25
    v_add_f32 v26, v26, v27
    s_mov_b32 exec_lo, 0
    v_mov_b32 v24, v26
    s_mov_b64 exec, -1
    ds_write_b32 v17, v24
    s_waitcnt lgkmcnt(0)
    s_barrier
    s_cmp_eq_u32 s52, 3
    s_cbranch_scc0 L_auxend""")
    a(f"""ds_read2st64_b32 v[20:21], v16 offset0:0 offset1:1
    ds_read2st64_b32 v[22:23], v16 offset0:2 offset1:3
    v_lshlrev_b32 v10, 3, v3
    v_lshl_add_u32 v10, v2, 12, v10
    s_lshl_b32 s57, s56, 14
    s_lshl_b32 s58, s55, 10
    s_add_u32 s57, s57, s58
    s_lshl_b32 s58, s53, 7
    s_add_u32 s57, s57, s58
    s_add_u32 s57, s57, {SBUF}
    v_mov_b32 v25, s30
    s_waitcnt lgkmcnt(0)
    v_add_f32 v20, v20, v21
    v_add_f32 v22, v22, v23
    v_add_f32 v24, v20, v22
    buffer_store_dwordx2 v[24:25], v10, s[40:43], s57 offen sc1""")
    stamp(10)
    a(f"""s_and_b32 s57, s54, 7
    s_cmp_eq_u32 s57, s53
    s_cbranch_scc0 L_auxend
    s_lshl_b32 s60, s54, 12
    s_add_u32 s60, s60, {SBUF}
    s_call_b64 s[62:63], L_gather
    v_fma_f32 v28, v28, v112, v29
    v_cvt_pk_bf16_f32 v28, v28, v28""")
    srd(44, 24, None, 4096)
    a("""s_lshl_b32 s57, s54, 5
    buffer_store_short v28, v31, s[44:47], s57 offen""")
    stamp(11)
    dbgmax(6, True); dbgmax(7)
    a("""s_cmp_eq_u32 s54, 0
    s_cbranch_scc0 L_auxend
    v_mov_b32 v10, 0
    s_mov_b64 exec, 1
    buffer_store_dword v25, v10, s[40:43], 0 offen sc1
    L_auxend:""")
    flush_stamps(12)
    a("L_end:\ns_endpgm")
    a("""L_gather:
    v_lshlrev_b32 v10, 3, v3
    v_lshl_add_u32 v10, v2, 10, v10""")
    poll("L_pg", [f"buffer_load_dwordx2 v[{96+2*i}:{97+2*i}], v10, s[40:43], s60 offen offset:{i*128} sc1" for i in range(8)],
         [97 + 2*i for i in range(8)])
    a("""v_add_f32 v96, v96, v98
    v_add_f32 v100, v100, v102
    v_add_f32 v104, v104, v106
    v_add_f32 v108, v108, v110
    v_add_f32 v96, v96, v100
    v_add_f32 v104, v104, v108
    v_add_f32 v112, v96, v104
    s_setpc_b64 s[62:63]""")
    errs = a.check_branches()
    assert not errs, "\n".join(errs)
    a.raw(f""".section .rodata,"a"
.p2align 6
.amdhsa_kernel {name}
  .amdhsa_next_free_vgpr 208
  .amdhsa_next_free_sgpr 96
  .amdhsa_accum_offset 208
  .amdhsa_group_segment_fixed_size 0
  .amdhsa_kernarg_size 104
  .amdhsa_user_sgpr_count 2
  .amdhsa_user_sgpr_kernarg_segment_ptr 1
  .amdhsa_system_sgpr_workgroup_id_x 1
.end_amdhsa_kernel""")
    return a.text()

if __name__ == "__main__":
    out = sys.argv[1]
    kw = eval("dict(%s)" % (sys.argv[2] if len(sys.argv) > 2 else ""))
    open(out, "w").write(gen(**kw))
```

```python
import re

def regs_of(op):
    op = op.strip()
    m = re.fullmatch(r'-?\|?(?:abs\()?([vsa])(\d+)\)?\|?', op)
    if m: return {(m.group(1), int(m.group(2)))}
    m = re.fullmatch(r'-?([vsa])\[(\d+):(\d+)\]', op)
    if m: return {(m.group(1), i) for i in range(int(m.group(2)), int(m.group(3)) + 1)}
    if op == 'vcc': return {('x', 'vcc')}
    if op == 'exec': return {('x', 'exec')}
    if op == 'm0': return {('x', 'm0')}
    return set()

TRANS = ('v_exp_', 'v_log_', 'v_rcp_', 'v_rsq_', 'v_sqrt_', 'v_sin_', 'v_cos_')

class Ins:
    def __init__(self, text):
        self.text = text
        t = text.split(';')[0].strip()
        parts = t.split(None, 1)
        self.mn = parts[0]
        rest = parts[1] if len(parts) > 1 else ''
        rest = re.sub(r':\[([^\]]*)\]', lambda m: ':[' + m.group(1).replace(',', '.') + ']', rest)
        rest = re.sub(r'hwreg\([^)]*\)', 'hwreg', rest)
        ops = [o.strip() for o in re.split(r',', rest)]
        mods = ''
        if ops:
            last = ops[-1].split()
            if last:
                ops[-1] = last[0]; mods = ' '.join(last[1:])
        self.ops = ops; self.mods = mods
        mn = self.mn
        R = [regs_of(o) for o in ops]
        self.w = set(); self.r = set()
        self.mfma = mn.startswith('v_mfma')
        self.valu = mn.startswith('v_') and not self.mfma
        self.trans = mn.startswith(TRANS)
        self.dpp = '_dpp' in mn or 'row_' in mods or 'quad_perm' in mods or 'row_' in ' '.join(ops)
        self.perm = mn.startswith('v_permlane')
        self.rdlane = mn.startswith('v_readlane') or mn.startswith('v_readfirstlane')
        self.wrlane = mn.startswith('v_writelane')
        self.vmem = mn.startswith('buffer_') or mn.startswith('global_')
        self.ds = mn.startswith('ds_')
        self.salu = mn.startswith('s_')
        self.lds_dma = self.vmem and (' lds' in (' ' + mods) or 'load_lds' in mn)
        self.store = self.vmem and ('store' in mn or 'atomic' in mn)
        self.states = 1
        self.dot = mn.startswith('v_dot')
        self.C = set(); self.AB = set(); self.sdata = set()
        if mn == 's_nop': self.states = int(ops[0], 0) + 1
        if self.mfma:
            self.w = R[0]; self.AB = R[1] | R[2]; self.C = R[3]; self.r = self.AB | self.C
        elif self.valu:
            if self.perm:
                self.w = R[0] | R[1]; self.r = R[0] | R[1]
            else:
                self.w = set(R[0])
                for x in R[1:]: self.r |= x
                if mn.startswith('v_cmpx'): self.w |= {('x', 'exec')}
                if mn.startswith(('v_fmac', 'v_dot2c', 'v_writelane')) or self.dpp: self.r |= R[0]
                if mn.startswith(('v_add_co', 'v_sub_co', 'v_addc_co')): self.w |= R[1]
        elif self.vmem:
            if self.store:
                for x in R: self.r |= x
                if 'x4' in mn or 'x3' in mn:
                    self.sdata = R[0] if mn.startswith('buffer_') else R[1]
            elif self.lds_dma:
                for x in R: self.r |= x
                self.r |= {('x', 'm0')}
            else:
                self.w = R[0]
                for x in R[1:]: self.r |= x
        elif self.ds:
            if mn.startswith(('ds_read', 'ds_bpermute', 'ds_permute', 'ds_swizzle')):
                self.w = R[0]
                for x in R[1:]: self.r |= x
            else:
                for x in R: self.r |= x
        elif self.salu:
            if mn.startswith(('s_cmp', 's_cbranch', 's_branch', 's_waitcnt', 's_nop', 's_barrier', 's_endpgm', 's_setprio', 's_sleep', 's_setpc')):
                for x in R: self.r |= x
            else:
                self.w = set(R[0]) if R else set()
                for x in R[1:]: self.r |= x
                if 'saveexec' in mn: self.w |= {('x', 'exec')}; self.r |= {('x', 'exec')}

def isv(s): return {x for x in s if x[0] in 'va'}
def iss(s): return {x for x in s if x[0] == 's' or x == ('x', 'vcc')}

def need(p, c):
    n = 0
    if p.valu:
        wv = isv(p.w); wsg = iss(p.w)
        if c.mfma and wv & c.r: n = max(n, 2)
        if c.valu and (c.dpp or c.perm) and wv & c.r: n = max(n, 2)
        if p.trans and c.valu and wv & (c.r | c.w): n = max(n, 1)
        if c.rdlane and wv & c.r: n = max(n, 1)
        if wsg:
            if c.valu and wsg & c.r: n = max(n, 4 if (c.rdlane or c.wrlane) else 2)
            if c.vmem and wsg & c.r: n = max(n, 5)
            if c.salu and wsg & c.r: n = max(n, 1)
        if ('x', 'exec') in p.w:
            if c.mfma or c.perm or c.rdlane or c.wrlane: n = max(n, 4)
            if c.dpp: n = max(n, 5)
            if c.salu and ('x', 'exec') in c.r: n = max(n, 2)
            if c.valu and ('x', 'exec') in c.r: n = max(n, 2)
    if p.dot and isv(p.w) & (c.r | c.w):
        srcc_only = c.mn == p.mn and not (isv(p.w) & (regs_of(c.ops[1]) | regs_of(c.ops[2])))
        if not srcc_only: n = max(n, 3)
    if p.mfma:
        if c.mfma:
            if p.w & c.AB: n = max(n, 8)
            if p.w & c.C and p.w != c.C: n = max(n, 6)
            if p.w & c.w and not (p.w == c.C): n = max(n, 6)
        elif (c.valu or c.vmem or c.ds) and p.w & (c.r | c.w): n = max(n, 8)
        if c.valu and p.C & c.w: n = max(n, 3)
    if p.salu and ('x', 'm0') in p.w and (c.lds_dma or (c.valu and ('x', 'm0') in c.r)): n = max(n, 1)
    if p.sdata and isv(c.w) & p.sdata: n = max(n, 2)
    return n

def isize(x):
    mn = x.mn
    if x.vmem or x.ds or x.mfma or x.dpp or mn.startswith(('s_load', 's_memrealtime', 's_memtime')): return 8
    if mn.startswith(('v_fma_', 'v_mad_', 'v_lshl_add', 'v_max3', 'v_bfe', 'v_cvt_pk', 'v_dot2', 'v_writelane', 'v_readlane', 'v_mul_lo', 'v_add3', 'v_pk_')): return 8
    for o in x.ops:
        try:
            v = int(o, 0)
            if not -16 <= v <= 64 and not mn.startswith(('s_movk', 's_waitcnt', 's_nop', 's_sleep', 's_setprio')): return 8
        except ValueError: pass
    return 4

class Asm:
    def __init__(self):
        self.out = []
        self.chains = {}
    def pad(self, chain, step, force=False):
        if not step: return
        d = 0
        for k, x in reversed(self.out):
            if k == 'l' and x.startswith('Lpad_'): break
            if k == 'i': d += isize(x)
        if d < step and not force: return
        n = self.chains.get(chain, 0); self.chains[chain] = n + 1
        self.label(f'Lpad_{chain}_{n}')
        self.out.append(('i', Ins(f's_cbranch_execz Lpad_{chain}_{n+1}')))
    def warm(self, chain):
        self(f's_mov_b64 exec, 0\ns_branch Lpad_{chain}_0\nLret_{chain}:\ns_mov_b64 exec, -1')
    def close_chains(self):
        for c, n in self.chains.items():
            for i, (k, x) in enumerate(self.out):
                if k == 'i' and x.text == f's_cbranch_execz Lpad_{c}_{n}': self.out[i] = ('i', Ins(f's_cbranch_execz Lret_{c}'))
    def raw(self, text): self.out.append(('t', text))
    def label(self, name): self.out.append(('l', name))
    def _recent(self):
        d = 0
        for k, x in reversed(self.out):
            if k == 'i':
                yield x, d
                d += x.states
                if d > 12: return
    def __call__(self, text):
        for line in text.split('\n'):
            line = line.strip()
            if not line or line.startswith(';'): continue
            if line.endswith(':'):
                self.label(line[:-1]); continue
            c = Ins(line)
            pad = 0
            for p, d in self._recent():
                if p.mn in ('s_branch', 's_endpgm', 's_setpc_b64'): break
                pad = max(pad, need(p, c) - d)
            if pad > 0: self.out.append(('i', Ins(f's_nop {pad-1}')))
            self.out.append(('i', c))
    def check_branches(self):
        labels = {x: i for i, (k, x) in enumerate(self.out) if k == 'l'}
        errs = []
        for i, (k, x) in enumerate(self.out):
            if k == 'i' and x.mn.startswith(('s_cbranch', 's_branch', 's_call')):
                tgt = x.ops[-1]
                if tgt not in labels or tgt.startswith(('Lpad_', 'Lret_')): continue
                before = []; d = 0
                for kk, y in reversed(self.out[:i + 1]):
                    if kk == 'i':
                        before.append((y, d)); d += y.states
                        if d > 12: break
                d2 = 0
                for kk, c in self.out[labels[tgt]:]:
                    if kk != 'i': continue
                    for p, d in before:
                        if need(p, c) > d + d2: errs.append(f'hazard across branch to {tgt}: {p.text} -> {c.text}')
                    d2 += c.states
                    if d2 > 12 or c.mn in ('s_branch', 's_endpgm', 's_setpc_b64'): break
        return errs
    def text(self):
        L = []
        for k, x in self.out:
            if k == 'i': L.append('    ' + x.text)
            elif k == 'l': L.append(x + ':')
            else: L.append(x)
        return '\n'.join(L) + '\n'
```

```python
import struct, sys
sys.path.insert(0, "work")
from asmdsl import Asm

NAME = "recurrent_scan__gqa_block_cached__mixer_channel_mlp__decode_kernel"
def f2u(x): return struct.unpack("<I", struct.pack("<f", x))[0]
def hx(x): return "0x%08x" % (x & 0xffffffff)

QBUF, HBUF, MBUF, OBUF, SBUF, STAMPS, CTR, SBUF2, OBUF2 = 0x10000, 0x50000, 0x80000, 0x100000, 0x180000, 0x200000, 0x280000, 0x300000, 0x380000
WS_SIZE = 0x400000
QAREA, HAREA = 131072, 147456
QIMG, TAGL, STATL, HIMG, W2A = QAREA, QAREA + 1024, QAREA + 1056, QAREA + 2048, QAREA + 8192
TB = 24576
OSTR = 528
MLOFF = 2304
TAGC = 0x9E3779B9
SPIN = 20479
LOG2E = 1.4426950408889634
M4 = "s_mov_b32 exec_lo, 0x000f000f\ns_mov_b32 exec_hi, 0x000f000f"
J, HEAD, HKV, B = "s52", "s53", "s54", "s55"
TAG, CNT = "s30", "s31"

HEADER = open("recurrent_scan__gqa_block_cached__mixer_channel_mlp__decode.s.ref").read().split("; Override launch")[0]

def gen(name=NAME, stamps=False, kvf="nt", wf="nt", spin=SPIN, prio=2, npre=3, slp=8, warm=0, padstep=256,
        qdelay=24, mapping="mod", dyn=False, wolate=True, T0=3, fast2=0, rot=0, thr=None, abl=0, fast1=1, nodummy=True):
    a = Asm()
    def pad(c, force=False):
        if warm & {'S': 1, 'Q': 2, 'R': 2, 'T': 4}[c]: a.pad(c, padstep, force)
    def stamp(k, val=None):
        if stamps:
            if val is None:
                a(f"s_memrealtime s[98:99]\ns_waitcnt lgkmcnt(0)"); val = "s98"
            a(f"v_writelane_b32 v220, {val}, {k}")
    def flush_stamps():
        if not stamps: return
        stamp(0, "s96")
        a("s_mov_b64 exec, -1")
        a("s_getreg_b32 s64, hwreg(HW_REG_XCC_ID, 0, 4)\nv_writelane_b32 v220, s64, 15")
        a("s_memtime s[98:99]\ns_waitcnt lgkmcnt(0)\ns_sub_u32 s98, s98, s100\nv_writelane_b32 v220, s98, 14")
        a("s_memrealtime s[98:99]\ns_waitcnt lgkmcnt(0)\nv_writelane_b32 v220, s98, 13")
        a(f"""s_lshl_b32 s64, s2, 3
        s_add_u32 s64, s64, s3
        s_lshl_b32 s64, s64, 7
        s_add_u32 s64, s64, {STAMPS}
        s_mov_b32 s48, s28
        s_mov_b32 s49, s29
        s_mov_b32 s50, {WS_SIZE}
        s_mov_b32 s51, 0x20000
        v_lshlrev_b32 v221, 2, v0
        s_mov_b32 exec_hi, 0
        buffer_store_dword v220, v221, s[48:51], s64 offen
        s_waitcnt vmcnt(0)""")
    def srd(d, lo, off, size):
        if off is None:
            a(f"s_mov_b32 s{d}, s{lo}\ns_mov_b32 s{d+1}, s{lo+1}")
        else:
            a(f"s_add_u32 s{d}, s{lo}, {off}\ns_addc_u32 s{d+1}, s{lo+1}, 0")
        a(f"s_mov_b32 s{d+2}, {size}\ns_mov_b32 s{d+3}, 0x20000")
    def check(tags):
        for t in tags: a(f"v_cmpx_eq_u32 vcc, {TAG}, v{t}")
        a("s_cmp_eq_u64 exec, -1\ns_mov_b64 exec, -1")
    def poll(lbl, loads, tags, sleep=0):
        a(f"s_mov_b32 {CNT}, {spin}")
        a(f"{lbl}:")
        for l in loads: a(l)
        a("s_waitcnt vmcnt(0)")
        check(tags)
        a(f"s_cbranch_scc1 {lbl}_ok")
        if sleep: a(f"s_sleep {sleep}")
        a(f"""s_sub_u32 {CNT}, {CNT}, 1
        s_cbranch_scc0 {lbl}
        {lbl}_ok:""")
    def tile_issue(srdn, n, dstep, flags, ve=8):
        for k in range(n):
            a(f"buffer_load_dwordx4 v{ve + (k & 1)}, {srdn}, s62 offen {flags} lds")
            if k < n - 1: a(f"s_add_u32 m0, m0, 1024\ns_add_u32 s62, s62, {dstep}")
    def tr(s, t, base=96):
        r = base + (s * 4 + t) * 4
        for u in range(2): a(f"ds_read_b64_tr_b16 v[{r+2*u}:{r+2*u+1}], v{12+t} offset:{s*4096+u*512}")
    def tr_addr(area):
        a(f"""v_add_u32 v12, {area}, v7
        v_xor_b32 v13, 32, v12
        v_xor_b32 v14, 64, v12
        v_xor_b32 v15, 0x60, v12""")
    def lanebase():
        a("""v_and_b32 v10, 1, v2
        v_bfe_u32 v7, v0, 3, 1
        v_lshl_add_u32 v7, v10, 1, v7
        v_lshlrev_b32 v7, 5, v7
        v_and_b32 v10, 3, v0
        v_lshl_add_u32 v7, v10, 3, v7
        v_bfe_u32 v10, v0, 2, 2
        v_lshl_add_u32 v7, v10, 7, v7
        v_lshl_add_u32 v7, v2, 10, v7
        v_lshlrev_b32 v30, 3, v3
        v_lshl_add_u32 v31, v2, 12, v30
        v_lshl_add_u32 v29, v2, 10, v30""")
    def hjob(skip):
        a(f"""s_sub_u32 s58, {HEAD}, 16
        s_cmp_ge_u32 s58, 14
        s_cbranch_scc1 {skip}
        s_lshl_b32 s58, s58, 3
        s_add_u32 s58, s58, {J}
        s_and_b32 s57, s58, 3
        s_lshr_b32 s58, s58, 2""")

    a.raw(HEADER.rstrip("\n"))
    a.raw("; @launch grid=(256,1,1) block=(512,1,1) lds=163840")
    a.raw('.amdgcn_target "amdgcn-amd-amdhsa--gfx950"\n.text')
    a.raw(f".globl {name}\n.p2align 8\n.type {name},@function")
    a.label(name)
    a("""s_load_dwordx16 s[4:19], s[0:1], 0
    s_load_dwordx8 s[20:27], s[0:1], 64
    s_load_dwordx2 s[28:29], s[0:1], 96""")
    if stamps: a("s_memrealtime s[96:97]\ns_memtime s[100:101]")
    a("""s_cmp_ge_u32 s2, 256
    s_cbranch_scc1 L_end
    v_lshrrev_b32 v1, 6, v0
    v_and_b32 v0, 63, v0
    v_readfirstlane_b32 s3, v1
    v_lshrrev_b32 v2, 4, v0
    v_and_b32 v3, 15, v0""")
    if mapping == "div": a(f"s_and_b32 {J}, s2, 7\ns_lshr_b32 {HEAD}, s2, 3")
    else: a(f"s_lshr_b32 {J}, s2, 5\ns_and_b32 {HEAD}, s2, 31")
    a(f"""s_and_b32 {HKV}, {HEAD}, 7
    s_lshr_b32 {B}, {HEAD}, 3
    v_lshrrev_b32 v5, 3, v0
    v_and_b32 v6, 7, v0
    v_and_b32 v10, 1, v2
    v_lshlrev_b32 v10, 1, v10
    v_xor_b32 v6, v6, v10
    v_lshlrev_b32 v6, 4, v6
    s_cmp_lt_u32 s3, 4
    s_cbranch_scc1 L_aux""")
    SW, OA, OB, RING, VM, LEFT, TK, SC, WOF = "s56", "s44", "s45", "s46", "s47", "s59", "s60", "s61", "s63"
    a(f"""s_sub_u32 {SW}, s3, 4
    v_lshlrev_b32 v16, 1, v2
    v_xor_b32 v16, v16, v3
    v_lshlrev_b32 v16, 4, v16
    v_lshl_add_u32 v16, v2, 8, v16
    v_xor_b32 v17, 0x80, v16
    v_xor_b32 v18, 16, v16
    v_xor_b32 v19, 0x90, v16
    v_lshl_add_u32 v8, v5, 13, v6
    v_xor_b32 v9, 64, v8
    s_lshl_b32 s58, {B}, 13
    s_add_u32 s58, s58, {J}
    s_lshl_b32 s59, {HKV}, 3
    s_add_u32 s58, s58, s59
    s_lshl_b32 s58, s58, 7
    s_lshl_b32 s62, {SW}, 18
    s_lshl_b32 s59, {SW}, 12
    s_add_u32 m0, s59, {QAREA}
    s_lshl_b32 s60, {HEAD}, 21
    s_add_u32 s57, {J}, {HEAD if rot else 0}
    s_and_b32 s64, s57, 7
    s_lshl_b32 {OA}, s64, 18
    s_add_u32 {OA}, {OA}, s59
    s_add_u32 {OB}, {OA}, 16384
    s_lshl_b32 {RING}, {SW}, 15
    s_waitcnt lgkmcnt(0)""")
    srd(40, 10, "s58", 127*8192+128)
    if not abl & 2: tile_issue("s[40:43]", 4, "0x10000", wf)
    srd(32, 6, "s60", 1 << 21); srd(36, 8, "s60", 1 << 21)
    def grp_dma(srdname, slot_off, u, thr=None):
        if isinstance(slot_off, str): a(f"s_add_u32 m0, {slot_off}, {u*4096}" if u else f"s_mov_b32 m0, {slot_off}")
        else: a(f"s_add_u32 m0, {RING}, {slot_off + u*4096}")
        for k in range(4):
            if thr is not None: a(f"s_waitcnt vmcnt({thr-1})")
            a(f"buffer_load_dwordx4 v{16+k}, {srdname}, {(OA,OB)[u]} offen offset:{k*1024} {kvf} lds")
    groups = [("s[32:35]", 0, 0), ("s[32:35]", 0, 1), ("s[36:39]", 8192, 0), ("s[36:39]", 8192, 1)]
    for gsel in groups[:npre]: grp_dma(*gsel)
    a(f"""s_waitcnt vmcnt({4*npre})
    s_barrier
    s_branch L_S2""")

    a("L_aux:")
    if abl & 1:
        if stamps: a("s_waitcnt lgkmcnt(0)"); flush_stamps()
        a("s_endpgm")
    if prio: a(f"s_setprio {prio}")
    if warm & 2:
        a("s_cmp_eq_u32 s3, 2\ns_cbranch_scc0 L_nw2"); a.warm('Q'); a("s_branch L_skipqh\nL_nw2:")
        a("s_cmp_eq_u32 s3, 3\ns_cbranch_scc0 L_nw3"); a.warm('R'); a("s_branch L_skipqh\nL_nw3:")
    else:
        a("s_cmp_ge_u32 s3, 2\ns_cbranch_scc1 L_skipqh")
    a(f"""s_mov_b32 s57, {B}
    s_cmp_eq_u32 s3, 0
    s_cbranch_scc1 L_q0""")
    hjob("L_skipqh")
    a("""L_q0:
    s_mov_b32 s60, 0x3f803f80
    s_mov_b32 s61, 0x3f803f80""")
    for r in range(32, 96, 2):
        a(f"v_mov_b64 v[{r}:{r+1}], s[60:61]")
    pad('Q', True)
    a(f"""v_lshlrev_b32 v4, 10, v3
    v_lshl_add_u32 v4, v2, 4, v4
    s_lshl_b32 s62, s57, 8
    s_mov_b32 s34, 4096
    s_mov_b32 s35, 0x20000
    s_waitcnt lgkmcnt(0)
    s_mov_b32 s32, s4
    s_mov_b32 s33, s5
    s_load_dword {TAG}, s[28:29], 0""")
    a(M4)
    for s in range(16):
        a(f"buffer_load_dwordx4 v[{32+4*s}:{35+4*s}], v4, s[32:35], s62 offen offset:{64*(s&3)}")
        if s % 4 == 3 and s < 15: a("s_add_u32 s62, s62, 256\ns_and_b32 s62, s62, 0x3ff")
    a("s_mov_b64 exec, -1")
    stamp(1)
    pad('Q')
    if dyn:
        a(f"""s_or_b32 s60, s3, {J}
        s_cbranch_scc1 L_noinit
        s_lshl_b32 s60, {HEAD}, 12
        s_add_u32 s60, s60, {CTR}
        s_add_u32 s60, s28, s60
        s_addc_u32 s61, s29, 0
        s_mov_b32 s63, 0
        s_atomic_swap s63, s[60:61], 0 glc
        L_noinit:""")
    lanebase()
    srd(40, 28, None, WS_SIZE)
    a(f"""s_lshl_b32 s59, s3, 14
    s_add_u32 s59, s59, {QAREA}""")
    tr_addr("s59")
    pad('Q')
    a(f"""v_and_b32 v10, 3, v3
    v_lshlrev_b32 v17, 2, v10
    v_add_u32 v17, 64, v17
    v_lshlrev_b32 v11, 16, v10
    s_lshl_b32 s62, s57, 11
    s_lshl_b32 s59, {HKV}, 13
    s_add_u32 s62, s62, s59
    s_add_u32 s62, s62, {QBUF}
    s_mov_b32 s59, {J}
    s_cmp_eq_u32 s3, 0
    s_cbranch_scc1 L_q1
    v_mul_u32_u24 v11, 7168, v10
    s_mul_i32 s62, s57, 28672
    s_add_u32 s62, s62, {HBUF}
    s_mov_b32 s59, s58
    L_q1:
    v_lshrrev_b32 v10, 2, v3
    v_lshl_add_u32 v11, v10, 6, v11
    v_lshl_add_u32 v11, v2, 4, v11
    s_lshl_b32 s59, s59, 8
    s_add_u32 s62, s62, s59
    s_waitcnt vmcnt(0)""")
    stamp(2)
    for s in range(16):
        c = "0" if s == 0 else "v[160:163]"
        a(f"v_mfma_f32_16x16x32_bf16 v[160:163], v[{32+4*s}:{35+4*s}], v[{32+4*s}:{35+4*s}], {c}")
    pad('Q')
    a(f"""s_waitcnt lgkmcnt(0)
    s_add_u32 {TAG}, {TAG}, {hx(TAGC)}
    s_barrier
    s_cmp_eq_u32 s3, 0
    s_cbranch_scc1 L_q2
    s_barrier
    L_q2:""")
    stamp(16)
    for t in range(4): tr(0, t)
    a("ds_bpermute_b32 v19, v17, v160")
    for t in range(3): tr(1, t)
    pad('Q')
    def dmf(s, t):
        c = "0" if s == 0 else f"v[{164+4*t}:{167+4*t}]"
        r = 96 + (s*4+t)*4
        return f"v_mfma_f32_16x16x32_bf16 v[{164+4*t}:{167+4*t}], v[{r}:{r+3}], v[{32+4*s}:{35+4*s}], {c}"
    order = [(s, t) for s in range(4) for t in range(4)]
    issued = 7
    for i, (s, t) in enumerate(order):
        pend = 2 * (issued - i - 1) + (1 if i < 4 else 0)
        a(f"s_waitcnt lgkmcnt({pend})")
        a(dmf(s, t))
        if issued < 16: tr(*order[issued]); issued += 1
        pad('R')
    a(f"""v_mul_f32 v24, {hx(f2u(-1/512))}, v19
    s_getreg_b32 s63, hwreg(HW_REG_XCC_ID, 0, 4)
    v_mov_b32 v22, {TAG}
    v_mov_b32 v23, s63""")
    for r in range(164, 180): a(f"v_fmac_f32_dpp v{r}, v{r}, v24 row_shl:4 row_mask:0xf bank_mask:0xf bound_ctrl:1")
    pad('R')
    a("v_cvt_pk_bf16_f32 v20, v164, v165\nv_cvt_pk_bf16_f32 v21, v166, v167")
    for t in range(1, 4): a(f"v_cvt_pk_bf16_f32 v{164+4*t}, v{164+4*t}, v{165+4*t}\nv_cvt_pk_bf16_f32 v{165+4*t}, v{166+4*t}, v{167+4*t}")
    for t in range(1, 4):
        a(f"v_mov_b32_dpp v20, v{164+4*t} row_shr:{4*t} row_mask:0xf bank_mask:{hex(1<<t)}")
        a(f"v_mov_b32_dpp v21, v{165+4*t} row_shr:{4*t} row_mask:0xf bank_mask:{hex(1<<t)}")
    a("buffer_store_dwordx4 v[20:23], v11, s[40:43], s62 offen sc1")
    stamp(3)
    pad('R')
    a(f"""s_cmp_eq_u32 s3, 0
    s_cbranch_scc0 L_post0
    v_cmp_eq_u32 vcc, 1, v3
    v_cndmask_b32 v18, v160, v161, vcc
    v_cmp_eq_u32 vcc, 2, v3
    v_cndmask_b32 v18, v18, v162, vcc
    v_cmp_eq_u32 vcc, 3, v3
    v_cndmask_b32 v18, v18, v163, vcc
    s_mov_b32 s61, {hx(f2u(1e-5))}
    v_mul_f32 v18, {hx(f2u(1/512))}, v18
    v_fma_f32 v18, -v24, v24, v18
    v_max_f32 v18, 0, v18
    v_add_f32 v26, s61, v18
    v_rsq_f32 v26, v26
    v_lshlrev_b32 v10, 3, v0
    v_mul_f32 v27, v26, v26
    v_fma_f32 v27, v27, v18, s61
    v_rsq_f32 v27, v27
    v_add_u32 v11, {STATL}, v10
    v_add_u32 v10, {QIMG}, v10
    v_mul_f32 v27, v26, v27
    v_mul_f32 v26, {hx(f2u(128**-0.5 * LOG2E))}, v26
    s_mov_b64 exec, 15
    ds_write_b64 v11, v[26:27]
    s_mov_b64 exec, -1
    s_lshl_b32 s62, {HEAD}, 13
    s_add_u32 s62, s62, {QBUF}
    s_add_u32 s61, s62, 4096
    v_lshlrev_b32 v11, 4, v0""")
    pad('R')
    if abl & 8: a("s_waitcnt lgkmcnt(0)\ns_branch L_bar0")
    if qdelay: a(f"s_sleep {qdelay}")
    a("""s_mov_b32 s58, 0x3f80
    s_mov_b32 s59, 0x3f800000""")
    poll("L_pq", [f"buffer_load_dwordx4 v[{96+4*i}:{99+4*i}], v11, s[40:43], {('s62','s61')[i//4]} offen offset:{(i%4)*1024} sc1" for i in range(8)],
         [98 + 4*i for i in range(8)])
    if stamps: a(f"s_sub_u32 s98, {spin}, {CNT}"); stamp(5, "s98")
    for kq in range(4):
        pad('R')
        for x in range(2):
            for d in range(2):
                for h in range(2):
                    acc = 128 + x*4 + d*2 + h
                    a(f"v_dot2_f32_bf16 v{acc}, v{96 + (kq*2+x)*4 + d}, s{58+h}, " + ("0" if kq == 0 else f"v{acc}"))
    for i in range(4): a(f"v_cvt_pk_bf16_f32 v{128+i}, v{128+2*i}, v{129+2*i}")
    a("""ds_write_b64 v10, v[128:129]
    ds_write_b64 v10, v[130:131] offset:512""")
    for i in range(8): a(f"v_cmpx_eq_u32 vcc, s63, v{99+4*i}")
    a(f"""s_cmp_eq_u64 exec, -1
    s_mov_b64 exec, -1
    s_cselect_b32 s63, 1, 0
    v_mov_b32 v11, {TAGL}
    v_mov_b32 v23, s63
    ds_write_b64 v11, v[22:23]
    s_waitcnt lgkmcnt(0)
    s_branch L_bar0
    L_skipqh:
    s_waitcnt lgkmcnt(0)
    s_barrier""")
    lanebase()
    srd(40, 28, None, WS_SIZE)
    if warm & 4:
        a("s_cmp_eq_u32 s3, 3\ns_cbranch_scc0 L_nw4"); a.warm('T'); a("L_nw4:")
    a("L_bar0:")
    stamp(4)
    a("""s_barrier
    s_branch L_post0""")

    a("L_S2:")
    hjob("L_now1")
    a(f"""s_mul_i32 s57, s57, 3584
    s_add_u32 s58, s58, s57
    s_lshl_b32 s58, s58, 7
    s_mul_i32 s62, {SW}, {32*3584}
    s_add_u32 m0, s59, {HAREA}
    v_mul_u32_u24 v8, 3584, v5
    v_add_u32 v8, v8, v6
    v_xor_b32 v9, 64, v8""")
    srd(40, 16, "s58", 127*3584+128)
    if not abl & 2: tile_issue("s[40:43]", 4, str(8*3584), wf)
    a("L_now1:")
    for gsel in groups[npre:]: grp_dma(*gsel, thr)
    a(f"""s_add_u32 {OA}, {OA}, 32768
    s_add_u32 {OB}, {OB}, 32768
    s_xor_b32 {RING}, {RING}, 16384""")
    for gsel in groups: grp_dma(*gsel, thr)
    a(f"s_xor_b32 {RING}, {RING}, 16384")
    stamp(1)
    if wolate:
        a(f"""v_lshl_add_u32 v152, v5, 10, v6
        v_xor_b32 v153, 64, v152
        s_lshl_b32 s57, {HKV}, 2
        s_add_u32 s57, s57, {B}
        s_lshl_b32 s57, s57, 17
        s_lshl_b32 s58, {J}, 7
        s_add_u32 s57, s57, s58""")
        srd(40, 12, "s57", 0 if abl & 2 else 127*1024+128)
    VA = [4, 5, 6, 7, 12, 13, 14, 15]
    a(f"""v_and_b32 v20, 7, v3
    v_lshlrev_b32 v20, 1, v20
    v_lshrrev_b32 v21, 3, v3
    v_or_b32 v20, v20, v21
    v_lshlrev_b32 v21, 2, v2
    v_xor_b32 v20, v20, v21
    v_lshlrev_b32 v20, 4, v20
    v_lshl_add_u32 v20, v3, 8, v20
    v_add_u32 v8, {RING}, v20
    v_xor_b32 v9, 16, v8
    v_xor_b32 v10, 32, v8
    v_xor_b32 v11, 48, v8
    v_lshrrev_b32 v20, 2, v0
    v_and_b32 v21, 7, v20
    v_lshlrev_b32 v21, 1, v21
    v_lshrrev_b32 v22, 3, v20
    v_or_b32 v21, v21, v22
    v_bfe_u32 v22, v0, 1, 1
    v_xor_b32 v21, v21, v22
    v_lshlrev_b32 v21, 4, v21
    v_lshl_add_u32 v21, v20, 8, v21
    v_and_b32 v22, 1, v0
    v_lshl_add_u32 v21, v22, 3, v21
    s_add_u32 s57, {RING}, 8192
    v_add_u32 v4, s57, v21""")
    for t in range(1, 8): a(f"v_xor_b32 v{VA[t]}, {t*32}, v4")
    a(f"""v_and_b32 v20, 3, v3
    v_lshlrev_b32 v21, 6, v2
    v_lshl_add_u32 v21, v20, 8, v21
    v_add_u32 v23, {QIMG}, v21
    v_mul_u32_u24 v27, {OSTR}, v20
    v_lshl_add_u32 v27, v2, 4, v27
    s_add_u32 s57, {RING}, {TB}
    v_add_u32 v27, s57, v27
    v_lshlrev_b32 v20, 3, v20
    s_add_u32 s57, s57, {MLOFF}
    v_add_u32 v1, s57, v20
    v_mov_b32 v20, 0xff800000
    v_mov_b32 v21, 0xff800000
    v_mov_b32 v22, 0""")
    for r in range(56, 88, 2): a(f"v_mov_b64 v[{r}:{r+1}], 0")
    a(f"""s_lshl_b32 s57, {B}, 3
    s_add_u32 s57, s57, {STATL}
    v_mov_b32 v24, s57
    s_mov_b32 {LEFT}, 2
    s_mov_b32 {WOF}, 0
    s_lshl_b32 {TK}, {SW}, 3
    s_add_u32 {TK}, {TK}, s64
    s_sub_u32 {TK}, {TK}, {32*(T0-2)}
    s_lshl_b32 s57, {HEAD}, 12
    s_add_u32 s57, s57, {CTR}
    s_add_u32 s48, s28, s57
    s_addc_u32 s49, s29, 0""")
    if stamps: a("s_mov_b32 s95, 0")
    if warm & 1: a.warm('S')
    a(f"s_waitcnt vmcnt({32 - 4*npre})")
    a("s_barrier")
    stamp(2)
    a("ds_read_b32 v24, v24")
    for s in range(4): a(f"ds_read_b128 v[{40+4*s}:{43+4*s}], v23 offset:{16*s}")
    a(f"s_waitcnt lgkmcnt(4)\nv_readfirstlane_b32 {SC}, v24")
    NT = 32 * (8 - T0)
    a("L_loop:")
    pad('S', True)
    a("s_waitcnt vmcnt(24)")
    WX = 4 if wolate else 0
    if nodummy: a(f"s_cmp_eq_u32 {LEFT}, 1\ns_cbranch_scc0 L_w1\ns_waitcnt vmcnt({8+WX})\nL_w1:")
    for s in range(4):
        for t in range(2): a(f"ds_read_b128 v[{88+(s*2+t)*4}:{91+(s*2+t)*4}], v{8+s} offset:{t*4096}")
    for s in range(4):
        a(f"s_waitcnt lgkmcnt({6-2*s})")
        for t in range(2):
            c = "0" if s == 0 else f"v[{32+4*t}:{35+4*t}]"
            a(f"v_mfma_f32_16x16x32_bf16 v[{32+4*t}:{35+4*t}], v[{88+(s*2+t)*4}:{91+(s*2+t)*4}], v[{40+4*s}:{43+4*s}], {c}")
    pad('S')
    a(f"""s_cmp_lt_i32 {TK}, {NT}
    s_cbranch_scc0 L_inval
    s_and_b32 {OA}, {TK}, 7
    s_lshl_b32 {OA}, {OA}, 18
    s_ashr_i32 s57, {TK}, 5
    s_add_u32 s57, s57, {T0}
    s_lshl_b32 s57, s57, 15
    s_add_u32 {OA}, {OA}, s57
    s_bfe_u32 s57, {TK}, 0x20003
    s_lshl_b32 s57, s57, 12
    s_add_u32 {OA}, {OA}, s57
    s_add_u32 {OB}, {OA}, 16384
    s_add_u32 {VM}, {RING}, 8192
    s_add_u32 {LEFT}, {LEFT}, 1
    L_kdma:""")
    grp_dma("s[32:35]", 0, 0); a("L_kdma2:"); grp_dma("s[32:35]", 0, 1)
    a("L_kdone:")
    for s in range(4): a(f"v_xor_b32 v{8+s}, 0x4000, v{8+s}")
    pad('S')
    if abl & 4: a("s_branch L_nosm")
    a(f"""v_max3_f32 v23, v32, v33, v34
    v_max3_f32 v23, v23, v35, v36
    v_max3_f32 v23, v23, v37, v38
    v_max3_f32 v23, v23, v39, v20
    v_mov_b32 v24, v23
    v_permlane32_swap_b32 v23, v24
    v_max_f32 v23, v23, v24
    v_mov_b32 v24, v23
    v_permlane16_swap_b32 v23, v24
    v_max_f32 v20, v23, v24
    v_mul_f32 v26, {SC}, v20
    v_sub_f32 v25, v21, v26
    v_exp_f32 v25, v25
    v_mov_b32 v21, v26""")
    for i in range(8): a(f"v_fma_f32 v{32+i}, v{32+i}, {SC}, -v26")
    for i in range(8): a(f"v_exp_f32 v{32+i}, v{32+i}")
    pad('S')
    for r in range(56, 88): a(f"v_mul_f32 v{r}, v25, v{r}")
    pad('S')
    a("v_fma_f32 v22, v22, v25, v32")
    for i in range(1, 8): a(f"v_add_f32 v22, v22, v{32+i}")
    for i in range(4): a(f"v_cvt_pk_bf16_f32 v{28+i}, v{32+2*i}, v{33+2*i}")
    pad('S')
    a("L_nosm:")
    a("s_waitcnt vmcnt(24)")
    if nodummy: a(f"""s_cmp_eq_u32 {WOF}, 0
        s_cbranch_scc1 L_w2
        s_waitcnt vmcnt({16+WX})
        s_cmp_eq_u32 {LEFT}, 1
        s_cbranch_scc0 L_w2
        s_waitcnt vmcnt({WX})
        L_w2:""")
    for t in range(8):
        for u in range(2): a(f"ds_read_b64_tr_b16 v[{120+4*t+2*u}:{121+4*t+2*u}], v{VA[t]} offset:{u*4096}")
    pad('S')
    for t in range(8):
        a(f"s_waitcnt lgkmcnt({14-2*t})")
        a(f"v_mfma_f32_16x16x32_bf16 v[{56+4*t}:{59+4*t}], v[{120+4*t}:{123+4*t}], v[28:31], v[{56+4*t}:{59+4*t}]")
    if stamps: a("s_add_u32 s95, s95, 1")
    a(f"""s_sub_u32 {LEFT}, {LEFT}, 1
    s_cmp_eq_u32 {LEFT}, 0
    s_cbranch_scc1 L_sdone""")
    pad('S')
    if dyn:
        a(f"""s_cmp_lt_i32 {TK}, {NT}
        s_cbranch_scc0 L_noclaim""")
        if T0 > 3: a(f"s_add_u32 {TK}, {TK}, 32\ns_cmp_lt_i32 {TK}, 0\ns_cbranch_scc1 L_noclaim")
        a(f"""s_mov_b32 {TK}, 1
        s_atomic_add {TK}, s[48:49], 0 glc
        L_noclaim:""")
    else:
        a(f"s_add_u32 {TK}, {TK}, 32")
    if nodummy: a(f"s_cmp_eq_u32 {WOF}, 0\ns_cbranch_scc0 L_vdone")
    grp_dma("s[36:39]", VM, 0); grp_dma("s[36:39]", VM, 1)
    a("L_vdone:")
    for t in range(8): a(f"v_xor_b32 v{VA[t]}, 0x4000, v{VA[t]}")
    a(f"""s_xor_b32 {RING}, {RING}, 16384
    s_branch L_loop
    L_inval:
    s_mov_b32 {OA}, 0x200000
    s_mov_b32 {OB}, 0x200000
    s_mov_b32 {VM}, {RING}""")
    if nodummy:
        a(f"""s_cmp_eq_u32 {WOF}, 0
        s_mov_b32 {WOF}, 1
        s_cbranch_scc0 L_kdone""")
        if wolate:
            a(f"""s_lshl_b32 s62, {SW}, 15
            s_lshl_b32 s57, {SW}, 12
            s_add_u32 m0, s57, {HAREA}""")
            tile_issue("s[40:43]", 4, "8192", wf, ve=152)
        a("s_nop 3\ns_branch L_kdone")
    elif wolate:
        a(f"""s_cmp_eq_u32 {WOF}, 0
        s_cbranch_scc0 L_kdma
        s_mov_b32 {WOF}, 1
        s_lshl_b32 s62, {SW}, 15
        s_lshl_b32 s57, {SW}, 12
        s_add_u32 m0, s57, {HAREA}""")
        tile_issue("s[40:43]", 4, "8192", wf, ve=152)
        a("s_branch L_kdma2")
    else:
        a("s_branch L_kdma")
    a("L_sdone:")
    pad('S')
    a("""v_mov_b32 v24, v22
    v_permlane32_swap_b32 v22, v24
    v_add_f32 v22, v22, v24
    v_mov_b32 v24, v22
    v_permlane16_swap_b32 v22, v24
    v_add_f32 v23, v22, v24
    v_mov_b32 v22, v21""")
    a(M4)
    a("ds_write_b64 v1, v[22:23]")
    for t in range(8): a(f"ds_write_b128 v27, v[{56+4*t}:{59+4*t}] offset:{t*64}")
    pad('S', True)
    a("s_waitcnt lgkmcnt(0)")
    stamp(3); stamp(5, "s95")
    a("s_barrier")
    if wolate:
        a("s_waitcnt vmcnt(0)"); stamp(4); a("s_barrier")
    flush_stamps()
    a("s_endpgm")

    a(f"""L_post0:
    v_mov_b32 v10, {TAGL}
    ds_read_b64 v[10:11], v10
    v_lshl_add_u32 v8, v5, 10, v6
    v_xor_b32 v9, 64, v8
    s_mov_b32 s62, 0
    s_waitcnt lgkmcnt(0)
    v_readfirstlane_b32 {TAG}, v10
    v_readfirstlane_b32 s72, v11""")
    if not wolate:
        a(f"""s_cmp_eq_u32 s3, 1
        s_cbranch_scc0 L_not1
        s_lshl_b32 s57, {HKV}, 2
        s_add_u32 s57, s57, {B}
        s_lshl_b32 s57, s57, 17
        s_lshl_b32 s58, {J}, 7
        s_add_u32 s57, s57, s58
        s_mov_b32 m0, {HAREA}""")
        srd(32, 12, "s57", 127*1024+128)
        tile_issue("s[32:35]", 16, "8192", wf)
        a("""s_waitcnt vmcnt(0)
        s_branch L_bar1
        L_not1:""")
    if abl & 16: a("s_lshl_b32 s64, s2, 12\ns_mov_b32 s65, 0\ns_branch L_bar1")
    a("""s_cmp_eq_u32 s3, 2
    s_cbranch_scc0 L_not2""")
    a(f"""s_mul_i32 s57, {HEAD}, {56*1024}
    s_lshl_b32 s58, {J}, 7
    s_add_u32 s57, s57, s58
    s_mov_b32 m0, {W2A}""")
    srd(36, 20, "s57", 55*1024+128)
    tile_issue("s[36:39]", 8, "8192", wf)
    srd(44, 18, None, 3584)
    a(f"""s_mul_i32 s57, {HEAD}, 112
    buffer_load_dwordx2 v[26:27], v30, s[44:47], s57 offen
    v_min_u32 v10, 13, v3
    v_lshlrev_b32 v10, 4, v10
    v_mov_b32 v11, 7168
    v_mad_u32_u24 v10, v2, v11, v10
    s_lshl_b32 s57, s57, 1
    s_add_u32 s57, s57, {HBUF}
    s_add_u32 s58, s57, 28672
    s_add_u32 s59, s58, 28672
    s_add_u32 s60, s59, 28672""")
    poll("L_ph", [f"buffer_load_dwordx4 v[{160+4*i}:{163+4*i}], v10, s[40:43], s{57+i} offen sc1" for i in range(4)],
         [162 + 4*i for i in range(4)], sleep=slp)
    tr_addr(str(W2A))
    for s in range(2):
        for t in range(4):
            if (s, t) == (1, 3): a("s_waitcnt lgkmcnt(12)")
            tr(s, t)
    a("""s_mov_b32 s58, 0x3f80
    s_mov_b32 s59, 0x3f800000""")
    a(f"v_lshlrev_b32 v28, 3, v2\nv_add_u32 v28, {STATL+4}, v28\nds_read_b32 v28, v28")
    for d in range(2):
        for h in range(2): a(f"v_dot2_f32_bf16 v{16+d*2+h}, v{26+d}, s{58+h}, 0")
    for kq in range(4):
        for d in range(2):
            for h in range(2): a(f"v_dot2_f32_bf16 v{20+d*2+h}, v{160+4*kq+d}, s{58+h}, " + ("0" if kq == 0 else f"v{20+d*2+h}"))
    a("s_waitcnt lgkmcnt(0)")
    for i in range(4): a(f"v_fma_f32 v{20+i}, v{20+i}, v28, v{16+i}")
    k1 = -2 * LOG2E * 0.7978845608028654
    a(f"s_mov_b32 s58, {hx(f2u(k1*0.044715))}\nv_mov_b32 v28, {hx(f2u(k1))}")
    for i in range(4): a(f"v_mul_f32 v{24+i}, v{20+i}, v{20+i}")
    for i in range(4): a(f"v_fma_f32 v{24+i}, v{24+i}, s58, v28")
    for i in range(4): a(f"v_mul_f32 v{24+i}, v{24+i}, v{20+i}")
    for i in range(4): a(f"v_exp_f32 v{24+i}, v{24+i}")
    for i in range(4): a(f"v_add_f32 v{24+i}, 1.0, v{24+i}")
    for i in range(4): a(f"v_rcp_f32 v{24+i}, v{24+i}")
    for i in range(4): a(f"v_mul_f32 v{20+i}, v{20+i}, v{24+i}")
    a(f"""v_cvt_pk_bf16_f32 v20, v20, v21
    v_cvt_pk_bf16_f32 v21, v22, v23
    v_cmp_gt_u32 vcc, 14, v3
    v_lshlrev_b32 v10, 3, v0
    v_add_u32 v10, {HIMG}, v10
    v_cndmask_b32 v20, 0, v20, vcc
    v_cndmask_b32 v21, 0, v21, vcc
    v_and_b32 v11, 3, v0
    v_lshlrev_b32 v11, 7, v11
    v_lshl_add_u32 v11, v2, 4, v11
    v_add_u32 v11, {HIMG}, v11
    ds_write_b64 v10, v[20:21]
    ds_read_b128 v[20:23], v11
    ds_read_b128 v[24:27], v11 offset:64
    s_lshl_b32 s57, {J}, 14
    s_lshl_b32 s58, {HEAD}, 7
    s_add_u32 s57, s57, s58
    s_add_u32 s57, s57, {MBUF}
    s_waitcnt lgkmcnt(0)""")
    for s in range(2):
        for t in range(4):
            c = "0" if s == 0 else f"v[{160+4*t}:{163+4*t}]"
            r = 96 + (s*4+t)*4
            a(f"v_mfma_f32_16x16x32_bf16 v[{160+4*t}:{163+4*t}], v[{20+4*s}:{23+4*s}], v[{r}:{r+3}], {c}")
    for b in range(4): a(f"v_mov_b32 v{97+2*b}, {TAG}")
    for b in range(4): a(f"v_mov_b32 v{96+2*b}, v{160+b}")
    for t in range(1, 4):
        for b in range(4): a(f"v_mov_b32_dpp v{96+2*b}, v{160+4*t+b} quad_perm:[0,1,2,3] row_mask:{hex(1<<t)} bank_mask:0xf")
    for b in range(4):
        a(f"buffer_store_dwordx2 v[{96+2*b}:{97+2*b}], v31, s[40:43], s57 offen sc1")
        if b < 3: a("s_add_u32 s57, s57, 131072")
    a(f"""s_branch L_bar1
    L_not2:
    s_cmp_eq_u32 s3, 3
    s_cbranch_scc0 L_bar1
    s_cmp_lt_u32 {HEAD}, 16
    s_cbranch_scc0 L_bar1""")
    srd(44, 22, None, 1024); srd(48, 4, None, 4096)
    a(f"""s_lshr_b32 s57, {HEAD}, 2
    s_lshl_b32 s58, {J}, 2
    s_add_u32 s57, s57, s58
    s_and_b32 s58, {HEAD}, 3
    s_lshl_b32 s58, s58, 5
    s_add_u32 s58, s58, s57
    s_lshl_b32 s65, s58, 5
    s_lshl_b32 s57, s57, 5
    v_lshlrev_b32 v1, 1, v3
    buffer_load_ushort v28, v1, s[44:47], s57 offen
    buffer_load_ushort v4, v1, s[48:51], s65 offen
    s_lshl_b32 s64, s58, 12
    s_add_u32 s60, s64, {MBUF}
    s_mov_b32 s66, s60
    s_mov_b32 s61, 1
    s_call_b64 s[62:63], L_gather
    v_lshlrev_b32 v28, 16, v28
    v_lshlrev_b32 v4, 16, v4
    v_add_f32 v28, v28, v112
    v_mul_f32 v10, {hx(f2u(-LOG2E))}, v28
    v_exp_f32 v10, v10
    v_add_f32 v10, 1.0, v10
    v_rcp_f32 v10, v10
    v_mul_f32 v28, v28, v10
    L_bar1:""")
    a(f"""v_and_b32 v10, 31, v0
    v_lshlrev_b32 v10, 4, v10
    s_mul_i32 s57, s3, {OSTR}
    s_add_u32 s57, s57, {TB}
    v_add_u32 v11, s57, v10
    v_add_u32 v16, 0x10000, v11
    s_lshl_b32 s57, s3, 3
    s_add_u32 s57, s57, {TB+MLOFF}
    v_mov_b32 v17, s57
    v_add_u32 v18, 0x10000, v17
    s_lshl_b32 s58, {HEAD}, 14
    s_lshl_b32 s57, s3, 12
    s_add_u32 s58, s58, s57
    s_lshl_b32 s57, {J}, 4
    s_add_u32 s58, s58, s57
    s_add_u32 s58, s58, {OBUF}
    s_lshl_b32 s57, s3, 3
    s_add_u32 s57, s57, {HKV}
    s_lshl_b32 s57, s57, 2
    s_add_u32 s57, s57, {B}
    s_lshl_b32 s57, s57, 12
    s_add_u32 s57, s57, {OBUF}
    s_lshl_b32 s59, s3, 17
    s_lshl_b32 s60, {J}, 14
    s_add_u32 s59, s59, s60
    s_lshl_b32 s60, {HEAD}, 7
    s_add_u32 s59, s59, s60
    s_add_u32 s67, s59, {SBUF2}
    s_add_u32 s59, s59, {SBUF}
    v_and_b32 v19, 7, v0
    v_lshlrev_b32 v19, 4, v19
    v_lshl_add_u32 v19, v2, 7, v19
    v_mov_b32 v159, {TAG}
    v_mov_b32 v25, {TAG}
    v_bfe_u32 v6, v0, 3, 2
    v_lshlrev_b32 v6, 10, v6
    v_and_b32 v20, 1, v0
    v_lshl_add_u32 v6, v20, 9, v6
    v_bfe_u32 v20, v0, 1, 2
    v_lshl_add_u32 v6, v20, 7, v6
    s_mov_b32 {CNT}, {spin}""")
    tr_addr(str(HAREA))
    stamp(6)
    a("s_barrier")
    stamp(7)
    if abl & 32:
        if wolate: a("s_barrier")
        a("s_branch L_auxend")
    pad('T', True)
    a("""ds_read_b64 v[144:145], v17
    ds_read_b64 v[146:147], v17 offset:32768
    ds_read_b64 v[148:149], v18
    ds_read_b64 v[150:151], v18 offset:32768
    ds_read_b128 v[128:131], v11
    ds_read_b128 v[132:135], v11 offset:32768
    ds_read_b128 v[136:139], v16
    ds_read_b128 v[140:143], v16 offset:32768
    s_waitcnt lgkmcnt(4)
    v_max3_f32 v158, v144, v146, v148
    v_max_f32 v158, v158, v150""")
    for w in range(4): a(f"v_sub_f32 v{144+2*w}, v{144+2*w}, v158")
    for w in range(4): a(f"v_exp_f32 v{144+2*w}, v{144+2*w}")
    a("""v_mul_f32 v152, v144, v145
    v_fmac_f32 v152, v146, v147
    v_fmac_f32 v152, v148, v149
    v_fmac_f32 v152, v150, v151
    v_rcp_f32 v153, v152
    v_log_f32 v152, v152
    s_waitcnt lgkmcnt(0)""")
    pad('T')
    for i in range(4): a(f"v_mul_f32 v{128+i}, v144, v{128+i}")
    for w in range(1, 4):
        for i in range(4): a(f"v_fmac_f32 v{128+i}, v{144+2*w}, v{128+4*w+i}")
    a("v_add_f32 v158, v158, v152")
    for i in range(4): a(f"v_mul_f32 v{128+i}, v153, v{128+i}")
    a("""v_cvt_pk_bf16_f32 v156, v128, v129
    v_cvt_pk_bf16_f32 v157, v130, v131
    s_mov_b32 exec_hi, 0""")
    if fast1:
        a("""s_cmp_eq_u32 s72, 1
        s_cbranch_scc0 L_ofar
        buffer_store_dwordx4 v[156:159], v6, s[40:43], s58 offen
        L_onear:""")
    else: a("buffer_store_dwordx4 v[156:159], v6, s[40:43], s58 offen sc1")
    a("s_mov_b64 exec, -1")
    stamp(8)
    old = [f"buffer_load_dwordx4 v[{96+4*i}:{99+4*i}], v19, s[40:43], s57 offen offset:{i*512} sc1" for i in range(8)]
    if wolate:
        for l in old: a(l)
        a("s_barrier")
    n = 0
    for s in range(4):
        for t in range(4):
            if n >= 14: a("s_waitcnt lgkmcnt(12)")
            tr(s, t, 32); n += 2
            pad('T')
    if wolate: a("s_branch L_po1")
    a("L_po:")
    for l in old: a(l)
    a("L_po1:")
    a("s_waitcnt vmcnt(0)")
    check([99 + 4*i for i in range(8)])
    a(f"""s_cbranch_scc1 L_po_ok
    s_sub_u32 {CNT}, {CNT}, 1
    s_cbranch_scc0 L_po
    L_po_ok:""")
    pad('T')
    stamp(9)
    if stamps: a(f"s_sub_u32 s98, {spin}, {CNT}"); stamp(12, "s98")
    a("v_mov_b32 v18, v98")
    for s in range(4): a(f"v_mov_b64 v[{98+8*s}:{99+8*s}], v[{100+8*s}:{101+8*s}]")
    a("s_waitcnt lgkmcnt(0)")
    mf = []
    for s in range(4):
        for t in range(4):
            c = "0" if s == 0 else f"v[{160+4*t}:{163+4*t}]"
            r = 32 + (s*4+t)*4
            mf.append(f"v_mfma_f32_16x16x32_bf16 v[{160+4*t}:{163+4*t}], v[{96+8*s}:{99+8*s}], v[{r}:{r+3}], {c}")
    dp = "row_mask:0xf bank_mask:0xf"
    wv = [f"v_max_f32_dpp v19, v18, v18 row_ror:4 {dp}", f"v_max_f32_dpp v19, v19, v19 row_ror:2 {dp}", f"v_max_f32_dpp v19, v19, v19 row_ror:1 {dp}",
          "v_sub_f32 v18, v18, v19", "v_exp_f32 v18, v18",
          f"v_add_f32_dpp v19, v18, v18 row_ror:4 {dp}", f"v_add_f32_dpp v19, v19, v19 row_ror:2 {dp}", f"v_add_f32_dpp v19, v19, v19 row_ror:1 {dp}",
          "v_rcp_f32 v19, v19", "v_mul_f32 v18, v18, v19"]
    for i in range(4):
        wv.append(f"v_mov_b32_dpp v{20+i}, v18 row_newbcast:{i} row_mask:0x5 bank_mask:0xf\nv_mov_b32_dpp v{20+i}, v18 row_newbcast:{4+i} row_mask:0xa bank_mask:0xf")
    for i, m in enumerate(mf):
        a(m)
        if i < len(wv): a(wv[i])
        pad('T')
    T = [24, 16, 26, 17]
    for t in range(4): a(f"v_mul_f32 v{T[t]}, v20, v{160+4*t}")
    for i in range(1, 4):
        for t in range(4): a(f"v_fmac_f32 v{T[t]}, v{20+i}, v{160+4*t+i}")
    pad('T')
    a("""v_permlane16_swap_b32 v24, v16
    v_permlane16_swap_b32 v26, v17
    v_add_f32 v24, v24, v16
    s_mov_b32 exec_lo, 0
    v_add_f32 v24, v26, v17
    s_mov_b64 exec, -1""")
    if fast2: a("buffer_store_dwordx2 v[24:25], v31, s[40:43], s67 offen")
    a("buffer_store_dwordx2 v[24:25], v31, s[40:43], s59 offen sc1")
    stamp(10)
    pad('T')
    a(f"""s_cmp_eq_u32 s3, 3
    s_cbranch_scc0 L_auxend
    s_cmp_lt_u32 {HEAD}, 16
    s_cbranch_scc0 L_auxend
    s_add_u32 s66, s64, {SBUF}
    s_add_u32 s60, s64, {SBUF2 if fast2 else SBUF}
    s_mov_b32 s61, 0
    s_call_b64 s[62:63], L_gather
    v_fma_f32 v28, v28, v112, v4
    v_cvt_pk_bf16_f32 v28, v28, v28
    v_lshlrev_b32 v1, 1, v3""")
    srd(44, 24, None, 4096)
    a("""s_mov_b64 exec, 0xffff
    buffer_store_short v28, v1, s[44:47], s65 offen""")
    stamp(11)
    pad('T', True)
    a("""s_cmp_eq_u32 s2, 0
    s_cbranch_scc0 L_auxend
    v_mov_b32 v10, 0
    s_mov_b64 exec, 1
    buffer_store_dword v25, v10, s[40:43], 0 offen sc1
    L_auxend:""")
    flush_stamps()
    a("L_end:\ns_endpgm")
    if fast1: a("L_ofar:\nbuffer_store_dwordx4 v[156:159], v6, s[40:43], s58 offen sc1\ns_branch L_onear")
    a(f"""L_gather:
    s_mov_b32 {CNT}, {spin}
    s_mov_b32 s68, s60
    L_pg:""")
    for i in range(8): a(f"buffer_load_dwordx2 v[{96+2*i}:{97+2*i}], v29, s[40:43], s68 offen offset:{i*128} sc1")
    if fast2: a(f"s_and_b32 s68, {CNT}, {fast2-1}\ns_cselect_b32 s68, s60, s66")
    a("s_waitcnt vmcnt(0)")
    check([97 + 2*i for i in range(8)])
    a(f"""s_cbranch_scc1 L_pg_ok
    s_cmp_eq_u32 s61, 0
    s_cbranch_scc1 L_pg_ns
    s_sleep {max(slp,1)}
    L_pg_ns:
    s_sub_u32 {CNT}, {CNT}, 1
    s_cbranch_scc0 L_pg
    L_pg_ok:
    v_add_f32 v96, v96, v98
    v_add_f32 v100, v100, v102
    v_add_f32 v104, v104, v106
    v_add_f32 v108, v108, v110
    v_add_f32 v96, v96, v100
    v_add_f32 v104, v104, v108
    v_add_f32 v112, v96, v104
    v_mov_b32 v96, v112
    v_permlane32_swap_b32 v112, v96
    v_add_f32 v112, v112, v96
    v_mov_b32 v96, v112
    v_permlane16_swap_b32 v112, v96
    v_add_f32 v112, v112, v96
    s_setpc_b64 s[62:63]""")
    a.close_chains()
    errs = a.check_branches()
    assert not errs, "\n".join(errs)
    nv = 224 if stamps else 184
    a.raw(f""".section .rodata,"a"
.p2align 6
.amdhsa_kernel {name}
  .amdhsa_next_free_vgpr {nv}
  .amdhsa_next_free_sgpr 102
  .amdhsa_accum_offset {nv}
  .amdhsa_group_segment_fixed_size 0
  .amdhsa_kernarg_size 104
  .amdhsa_user_sgpr_count 2
  .amdhsa_user_sgpr_kernarg_segment_ptr 1
  .amdhsa_system_sgpr_workgroup_id_x 1
.end_amdhsa_kernel""")
    return a.text()

if __name__ == "__main__":
    out = sys.argv[1]
    kw = eval("dict(%s)" % (sys.argv[2] if len(sys.argv) > 2 else ""))
    open(out, "w").write(gen(**kw))
```

```python
import struct, sys
sys.path.insert(0, "work")
from asmdsl import Asm

NAME = "recurrent_scan__gqa_block_cached__mixer_channel_mlp__decode_kernel"
def f2u(x): return struct.unpack("<I", struct.pack("<f", x))[0]
def hx(x): return "0x%08x" % (x & 0xffffffff)

QBUF, HBUF, MBUF, OBUF, SBUF, STAMPS = 0x10000, 0x50000, 0x80000, 0x100000, 0x180000, 0x200000
WS_SIZE = 0x400000
QAREA, HAREA = 131072, 147456
FL = HAREA
TAGL, STATL, QIMG, HIMG, XIMG, W2A = HAREA + 32, HAREA + 64, HAREA + 1024, HAREA + 2048, HAREA + 4096, HAREA + 8192
TB = 16384
OSTR = 528
MLOFF = 2304
TAGC = 0x9E3779B9
SPIN = 20479
LOG2E = 1.4426950408889634
M4 = "s_mov_b32 exec_lo, 0x000f000f\ns_mov_b32 exec_hi, 0x000f000f"
J, HEAD, HKV, B = "s52", "s53", "s54", "s55"
TAG, CNT, LOC = "s30", "s31", "s72"

HEADER = open("recurrent_scan__gqa_block_cached__mixer_channel_mlp__decode.s.ref").read().split("; Override launch")[0]

def gen(name=NAME, stamps=False, lite=False, kvf="nt", wf="nt", spin=SPIN, N=23, rot=1, slp=8, qdelay=4, mapping="mod",
        qlocal=3, s2delay=0, s3delay=1, pw1=8, pw2=12, pwo=52, csl=1, abl=0, lprio=3, aprio=2, pipe2=3, gran=1, burst=True, cpre=True, ilw=True):
    a = Asm()
    LA, LR = (N - 1) // 8, (N - 1) % 8
    def stamp(k, val=None):
        if stamps or (lite and k == 0):
            if val is None:
                a(f"s_memrealtime s[98:99]\ns_waitcnt lgkmcnt(0)"); val = "s98"
            a(f"v_writelane_b32 v230, {val}, {k}")
    def flush_stamps():
        if not (stamps or lite): return
        stamp(0, "s96")
        a("s_mov_b64 exec, -1")
        a("s_getreg_b32 s64, hwreg(HW_REG_XCC_ID, 0, 4)\nv_writelane_b32 v230, s64, 15")
        if stamps: a("s_memtime s[98:99]\ns_waitcnt lgkmcnt(0)\ns_sub_u32 s98, s98, s100\nv_writelane_b32 v230, s98, 14")
        a("s_memrealtime s[98:99]\ns_waitcnt lgkmcnt(0)\nv_writelane_b32 v230, s98, 13")
        a(f"""s_lshl_b32 s64, s2, 3
        s_add_u32 s64, s64, s3
        s_lshl_b32 s64, s64, 7
        s_add_u32 s64, s64, {STAMPS}
        s_mov_b32 s48, s28
        s_mov_b32 s49, s29
        s_mov_b32 s50, {WS_SIZE}
        s_mov_b32 s51, 0x20000
        v_lshlrev_b32 v231, 2, v0
        s_mov_b32 exec_hi, 0
        buffer_store_dword v230, v231, s[48:51], s64 offen""")
    def end():
        flush_stamps(); a("s_endpgm")
    def srd(d, lo, off, size):
        if off is None:
            a(f"s_mov_b32 s{d}, s{lo}\ns_mov_b32 s{d+1}, s{lo+1}")
        else:
            a(f"s_add_u32 s{d}, s{lo}, {off}\ns_addc_u32 s{d+1}, s{lo+1}, 0")
        a(f"s_mov_b32 s{d+2}, {size}\ns_mov_b32 s{d+3}, 0x20000")
    def check(tags):
        for t in tags: a(f"v_cmpx_eq_u32 vcc, {TAG}, v{t}")
        a("s_cmp_eq_u64 exec, -1\ns_mov_b64 exec, -1")
    uid = [0]
    def ldswait(off, thr, cache="s56", sleep=csl, vt=20, cached=False):
        uid[0] += 1; u = uid[0]
        if cached: a(f"s_cmp_ge_i32 {cache}, {thr}\ns_cbranch_scc1 L_lw{u}_ok")
        a(f"""L_lw{u}:
        ds_read_b32 v{vt}, v21 offset:{off}
        s_waitcnt lgkmcnt(0)
        v_readfirstlane_b32 {cache}, v{vt}
        s_cmp_ge_i32 {cache}, {thr}
        s_cbranch_scc1 L_lw{u}_ok""")
        if sleep: a(f"s_sleep {sleep}")
        a(f"s_sub_u32 s71, s71, 1\ns_cbranch_scc0 L_lw{u}\ns_endpgm\nL_lw{u}_ok:")
    def setflag(off, val, vt=20):
        a(f"v_mov_b32 v{vt}, {val}\nds_write_b32 v21, v{vt} offset:{off}")
    def tr(s, t, base=96):
        r = base + (s * 4 + t) * 4
        for u in range(2): a(f"ds_read_b64_tr_b16 v[{r+2*u}:{r+2*u+1}], v{12+t} offset:{s*4096+u*512}")
    def tr_addr(area):
        a(f"""v_add_u32 v12, {area}, v7
        v_xor_b32 v13, 32, v12
        v_xor_b32 v14, 64, v12
        v_xor_b32 v15, 0x60, v12""")
    def trbase():
        a("""v_and_b32 v10, 1, v2
        v_bfe_u32 v7, v0, 3, 1
        v_lshl_add_u32 v7, v10, 1, v7
        v_lshlrev_b32 v7, 5, v7
        v_and_b32 v10, 3, v0
        v_lshl_add_u32 v7, v10, 3, v7
        v_bfe_u32 v10, v0, 2, 2
        v_lshl_add_u32 v7, v10, 7, v7
        v_lshl_add_u32 v7, v2, 10, v7""")
    def hjob(skip):
        a(f"""s_sub_u32 s58, {J}, 4
        s_lshl_b32 s58, s58, 5
        s_add_u32 s58, s58, {HEAD}
        s_cmp_ge_u32 s58, 112
        s_cbranch_scc1 {skip}
        s_and_b32 s57, s58, 3
        s_lshr_b32 s58, s58, 2""")
    def gettag():
        a(f"""ds_read_b64 v[22:23], v21 offset:{TAGL-FL}
        s_waitcnt lgkmcnt(0)
        v_readfirstlane_b32 {TAG}, v22
        v_readfirstlane_b32 {LOC}, v23""")

    a.raw(HEADER.rstrip("\n"))
    a.raw("; @launch grid=(256,1,1) block=(512,1,1) lds=163840")
    a.raw('.amdgcn_target "amdgcn-amd-amdhsa--gfx950"\n.text')
    a.raw(f".globl {name}\n.p2align 8\n.type {name},@function")
    a.label(name)
    a("""s_load_dwordx16 s[4:19], s[0:1], 0
    s_load_dwordx8 s[20:27], s[0:1], 64
    s_load_dwordx2 s[28:29], s[0:1], 96""")
    if stamps or lite: a("s_memrealtime s[96:97]\ns_memtime s[100:101]")
    a(f"""s_cmp_ge_u32 s2, 256
    s_cbranch_scc1 L_end
    v_lshrrev_b32 v1, 6, v0
    v_and_b32 v0, 63, v0
    v_readfirstlane_b32 s3, v1
    v_lshrrev_b32 v2, 4, v0
    v_and_b32 v3, 15, v0
    v_mov_b32 v21, {FL}
    s_mov_b32 s71, 0x40000""")
    if mapping == "div": a(f"s_and_b32 {J}, s2, 7\ns_lshr_b32 {HEAD}, s2, 3")
    else: a(f"s_lshr_b32 {J}, s2, 5\ns_and_b32 {HEAD}, s2, 31")
    a(f"""s_and_b32 {HKV}, {HEAD}, 7
    s_lshr_b32 {B}, {HEAD}, 3
    s_cmp_eq_u32 s3, 0
    s_cbranch_scc0 L_notL""")
    NN, PV, HR, OA, OB, RR, CV = "s59", "s60", "s61", "s63", "s64", "s65", "s66"
    a(f"""s_setprio {lprio}
    v_mov_b64 v[24:25], 0
    v_mov_b64 v[26:27], 0
    ds_write_b128 v21, v[24:27]
    ds_write_b128 v21, v[24:27] offset:16
    v_lshrrev_b32 v5, 3, v0
    v_and_b32 v6, 7, v0
    v_and_b32 v10, 1, v2
    v_lshlrev_b32 v10, 1, v10
    v_xor_b32 v6, v6, v10
    v_lshlrev_b32 v6, 4, v6
    v_lshl_add_u32 v8, v5, 13, v6
    v_xor_b32 v9, 64, v8
    v_lshlrev_b32 v4, 4, v0
    v_lshlrev_b32 v16, 1, v2
    v_xor_b32 v16, v16, v3
    v_lshlrev_b32 v16, 4, v16
    v_lshl_add_u32 v16, v2, 8, v16
    v_xor_b32 v17, 0x80, v16
    v_xor_b32 v18, 16, v16
    v_xor_b32 v19, 0x90, v16
    s_lshl_b32 s58, {B}, 13
    s_add_u32 s58, s58, {J}
    s_lshl_b32 s57, {HKV}, 3
    s_add_u32 s58, s58, s57
    s_lshl_b32 s58, s58, 7
    s_lshl_b32 s67, {HEAD}, 21
    s_lshl_b32 s57, {J}, 18
    s_add_u32 s67, s67, s57
    s_mov_b32 s62, 0
    s_mov_b32 m0, {QAREA}
    s_waitcnt lgkmcnt(0)
    s_barrier""")
    srd(40, 10, "s58", 127*8192+128)
    for k in range(0 if abl & 2 else 16):
        a(f"buffer_load_dwordx4 v{8+(k&1)}, s[40:43], s62 offen {wf} lds")
        if k < 15: a("s_add_u32 m0, m0, 1024\ns_add_u32 s62, s62, 0x10000")
    a(f"s_mov_b32 m0, {XIMG}")
    srd(44, 4, None, 4096)
    for k in range(4): a(f"buffer_load_dwordx4 v4, s[44:47], 0 offen offset:{k*1024} lds")
    a(f"""s_add_u32 s32, s6, s67
    s_addc_u32 s33, s7, 0
    s_add_u32 s34, s8, s67
    s_addc_u32 s35, s9, 0
    s_mov_b32 s46, 0x40000
    s_mov_b32 {NN}, 0
    s_mov_b32 {PV}, 0
    s_mov_b32 {HR}, {1 << LA}
    s_mov_b32 {CV}, 0""")
    if rot == 1: a(f"s_lshr_b32 {RR}, s2, 3\ns_and_b32 {RR}, {RR}, 7\ns_lshl_b32 {RR}, {RR}, 12")
    else: a(f"s_mov_b32 {RR}, 0")
    assert LA >= 1
    def publish(isk):
        a(f"""s_and_b32 s57, {HR}, 1
        s_add_u32 {PV}, {PV}, s57
        s_lshr_b32 {HR}, {HR}, 1
        v_mov_b32 v20, {PV}
        ds_write_b32 v21, v20""")
    def thr(k):
        if k % gran == 0: a(f"s_waitcnt vmcnt({N-gran})")
    if burst:
        assert LA <= 3
        a("s_mov_b64 s[44:45], s[32:33]")
        for n in range(LA + 1):
            a(f"s_xor_b32 {OA}, {RR}, {n << 13}\ns_xor_b32 {OB}, {OA}, 4096\ns_mov_b32 m0, {n << 15}")
            for k in range(8):
                if k == 4: a(f"s_mov_b32 m0, {(n << 15) + 4096}")
                a(f"buffer_load_dwordx4 v{16+(k&3)}, s[44:47], {(OA,OB)[k//4]} offen offset:{(k&3)*1024} {kvf} lds")
        a(f"""s_mov_b32 {NN}, {LA+1}
        s_mov_b32 {PV}, 1
        s_mov_b32 {HR}, {(2 << LA) - 1}
        v_mov_b32 v20, 1
        s_waitcnt vmcnt({8*(LA+1)})
        ds_write_b32 v21, v20""")
    a(f"""L_step:
    s_and_b32 s57, {NN}, 3
    s_lshl_b32 s58, s57, 2
    v_add_u32 v22, s58, v21
    s_lshr_b32 s67, {NN}, 2
    s_sub_u32 s67, s67, 3
    s_cmp_gt_i32 s67, 0
    s_cbranch_scc0 L_free""")
    if cpre: a("s_branch L_cons1")
    a(f"""L_cons:
    ds_read_b32 v23, v22 offset:16
    L_cons1:
    s_waitcnt lgkmcnt(0)
    v_readfirstlane_b32 {CV}, v23
    s_cmp_ge_i32 {CV}, s67
    s_cbranch_scc0 L_stall
    L_free:
    s_lshl_b32 {OA}, s57, 13
    s_xor_b32 {OA}, {OA}, {RR}
    s_lshr_b32 s58, {NN}, 3
    s_lshl_b32 s58, s58, 15
    s_add_u32 {OA}, {OA}, s58
    s_xor_b32 {OB}, {OA}, 4096
    s_lshl_b32 s57, s57, 15
    s_bfe_u32 s58, {NN}, 0x20002
    s_lshl_b32 s58, s58, 13
    s_add_u32 s68, s57, s58
    s_bitcmp1_b32 {NN}, 2
    s_cselect_b64 s[44:45], s[34:35], s[32:33]
    s_mov_b32 m0, s68""")
    for k in range(8):
        if k == 4: a("s_add_u32 m0, s68, 4096")
        thr(k)
        if k == LR:
            publish(1); a(f"s_bitset1_b32 {HR}, {LA}")
        a(f"buffer_load_dwordx4 v{16+(k&3)}, s[44:47], {(OA,OB)[k//4]} offen offset:{(k&3)*1024} {kvf} lds")
        if cpre and k == 6:
            a(f"s_add_u32 s58, {NN}, 1\ns_and_b32 s58, s58, 3\ns_lshl_b32 s58, s58, 2\nv_add_u32 v24, s58, v21\nds_read_b32 v23, v24 offset:16")
    a(f"""s_add_u32 {NN}, {NN}, 1
    s_cmp_eq_u32 {NN}, {pw1}
    s_cbranch_scc1 L_w1
    s_cmp_eq_u32 {NN}, {pw2}
    s_cbranch_scc1 L_w2
    s_cmp_eq_u32 {NN}, {pwo}
    s_cbranch_scc1 L_wo
    s_cmp_lt_u32 {NN}, 64
    s_cbranch_scc1 L_step""")
    stamp(1)
    for q in range(LA, -1, -1):
        a(f"s_waitcnt vmcnt({8*q})"); publish(0)
    a("s_waitcnt lgkmcnt(0)")
    stamp(2)
    end()
    a("L_stall:")
    for p in range(LA + 1):
        a(f"""s_waitcnt vmcnt({8*(LA-p)})
        s_bfe_u32 s58, {HR}, {hex(0x10000 + p)}
        s_add_u32 {PV}, {PV}, s58
        s_bitset0_b32 {HR}, {p}
        v_mov_b32 v20, {PV}
        ds_write_b32 v21, v20
        ds_read_b32 v23, v22 offset:16
        s_waitcnt lgkmcnt(0)
        v_readfirstlane_b32 {CV}, v23
        s_cmp_ge_i32 {CV}, s67
        s_cbranch_scc1 L_free""")
    a("s_sleep 1\ns_sub_u32 s71, s71, 1\ns_cbranch_scc0 L_cons\ns_endpgm")
    a("L_wtile:")
    for k in range(8):
        thr(k)
        if k == LR: publish(0)
        a(f"buffer_load_dwordx4 v{8+(k&1)}, s[40:43], s62 offen {wf} lds")
        a("s_add_u32 m0, m0, 1024\ns_add_u32 s62, s62, s70")
    a("""s_sub_u32 s69, s69, 1
    s_cbranch_scc0 L_wtile
    s_branch L_step
    L_w1:""")
    if abl & 2: a("s_branch L_step")
    hjob("L_step")
    if not abl & 1: ldswait(8, 1, cache="s70")
    a(f"""s_mul_i32 s57, s57, 3584
    s_add_u32 s58, s58, s57
    s_lshl_b32 s58, s58, 7
    v_mul_u32_u24 v8, 3584, v5
    v_add_u32 v8, v8, v6
    v_xor_b32 v9, 64, v8
    s_mov_b32 s62, 0
    s_mov_b32 s69, 1
    s_mov_b32 s70, {8*3584}
    s_mov_b32 m0, {QAREA}""")
    srd(40, 16, "s58", 127*3584+128)
    a(f"""s_branch L_wtile
    L_w2:""")
    if abl & (2 | 64): a("s_branch L_step")
    a(f"""s_lshl_b32 s57, {B}, 3
    s_add_u32 s57, s57, {J}
    s_mul_i32 s57, s57, {56*1024}
    s_lshl_b32 s58, {HKV}, 7
    s_add_u32 s57, s57, s58
    v_lshl_add_u32 v8, v5, 10, v6
    v_xor_b32 v9, 64, v8
    s_mov_b32 s62, 0
    s_mov_b32 s69, 0
    s_mov_b32 s70, 8192
    s_mov_b32 m0, {W2A}""")
    srd(40, 20, "s57", 55*1024+128)
    a("s_branch L_wtile\nL_wo:")
    if abl & 2: a("s_branch L_step")
    if not abl & 1: ldswait(12, 1, cache="s70")
    a(f"""s_lshl_b32 s57, {HKV}, 2
    s_add_u32 s57, s57, {B}
    s_lshl_b32 s57, s57, 17
    s_lshl_b32 s58, {J}, 7
    s_add_u32 s57, s57, s58
    s_mov_b32 s62, 0
    s_mov_b32 s69, 1
    s_mov_b32 s70, 8192
    s_mov_b32 m0, {QAREA}""")
    srd(40, 12, "s57", 127*1024+128)
    a("s_branch L_wtile")

    a("""L_notL:
    s_barrier
    s_cmp_ge_u32 s3, 4
    s_cbranch_scc1 L_C""")
    if abl & 1:
        a("s_waitcnt lgkmcnt(0)"); end()
    a(f"s_setprio {aprio}")
    trbase()
    a("""v_and_b32 v1, 7, v0
    v_lshlrev_b32 v1, 2, v1
    v_and_b32 v10, 1, v2
    v_lshl_add_u32 v1, v10, 1, v1
    v_lshlrev_b32 v30, 3, v3
    v_lshl_add_u32 v31, v2, 12, v30
    v_lshlrev_b32 v29, 4, v0
    s_waitcnt lgkmcnt(0)""")
    srd(40, 28, None, WS_SIZE)
    a(f"""s_cmp_eq_u32 s3, 3
    s_cbranch_scc1 L_A2
    s_mov_b32 s57, {B}
    s_mov_b32 s59, 1
    s_cmp_eq_u32 s3, 1
    s_cbranch_scc0 L_A1
    s_load_dword {TAG}, s[28:29], 0
    L_qh:
    s_mov_b32 s60, 0x3f803f80
    s_mov_b32 s61, 0x3f803f80""")
    for r in range(32, 96, 2): a(f"v_mov_b64 v[{r}:{r+1}], s[60:61]")
    tr_addr(str(QAREA))
    a(f"""v_lshlrev_b32 v4, 10, v3
    v_lshl_add_u32 v4, v2, 4, v4
    v_add_u32 v4, {XIMG}, v4
    s_lshl_b32 s62, s57, 8""")
    for gq in range(4):
        a(f"v_add_u32 v{24+gq}, s62, v4")
        if gq < 3: a("s_add_u32 s62, s62, 256\ns_and_b32 s62, s62, 0x3ff")
    a(f"""v_and_b32 v10, 3, v3
    v_lshlrev_b32 v17, 2, v10
    v_add_u32 v17, 64, v17
    v_lshlrev_b32 v11, 16, v10
    s_lshl_b32 s62, s57, 11
    s_lshl_b32 s60, {HKV}, 13
    s_add_u32 s62, s62, s60
    s_add_u32 s62, s62, {QBUF}
    s_mov_b32 s60, {J}
    s_cmp_eq_u32 s3, 1
    s_cbranch_scc1 L_q1
    v_mul_u32_u24 v11, 7168, v10
    s_mul_i32 s62, s57, 28672
    s_add_u32 s62, s62, {HBUF}
    s_mov_b32 s60, s58
    L_q1:
    v_lshrrev_b32 v10, 2, v3
    v_lshl_add_u32 v11, v10, 6, v11
    v_lshl_add_u32 v16, v2, 4, v11
    s_lshl_b32 s60, s60, 8
    s_add_u32 s73, s62, s60
    s_getreg_b32 s63, hwreg(HW_REG_XCC_ID, 0, 4)""")
    ldswait(0, "s59", sleep=0)
    stamp(2)
    a(M4)
    for s in range(4): a(f"ds_read_b128 v[{32+4*s}:{35+4*s}], v24 offset:{64*s}")
    a("s_mov_b64 exec, -1")
    for t in range(4): tr(0, t)
    def gram(s):
        c = "0" if s == 0 else "v[160:163]"
        return f"v_mfma_f32_16x16x32_bf16 v[160:163], v[{32+4*s}:{35+4*s}], v[{32+4*s}:{35+4*s}], {c}"
    def dmf(s, t):
        c = "0" if s == 0 else f"v[{164+4*t}:{167+4*t}]"
        r = 96 + (s*4+t)*4
        return f"v_mfma_f32_16x16x32_bf16 v[{164+4*t}:{167+4*t}], v[{r}:{r+3}], v[{32+4*s}:{35+4*s}], {c}"
    for s in range(4):
        a("s_waitcnt lgkmcnt(0)")
        if s < 3:
            a(M4)
            for q in range(4): a(f"ds_read_b128 v[{48+16*s+4*q}:{51+16*s+4*q}], v{25+s} offset:{64*q}")
            a("s_mov_b64 exec, -1")
            for t in range(4): tr(s+1, t)
        else:
            a(f"s_sub_u32 s60, s3, 1\ns_lshl_b32 s60, s60, 2\nv_add_u32 v18, s60, v21\nv_mov_b32 v19, 1\nds_write_b32 v18, v19 offset:8")
        for q in range(4): a(gram(4*s+q))
        if s < 3:
            for t in range(4): a(dmf(s, t))
    a("ds_bpermute_b32 v19, v17, v160")
    for t in range(4): a(dmf(3, t))
    a(f"""s_cmp_eq_u32 s3, 1
    s_cbranch_scc0 L_q2
    s_add_u32 {TAG}, {TAG}, {hx(TAGC)}
    L_q2:
    s_waitcnt lgkmcnt(0)
    v_mul_f32 v24, {hx(f2u(-1/512))}, v19
    v_mov_b32 v98, {TAG}
    v_mov_b32 v99, s63""")
    for r in range(164, 180): a(f"v_fmac_f32_dpp v{r}, v{r}, v24 row_shl:4 row_mask:0xf bank_mask:0xf bound_ctrl:1")
    a("v_cvt_pk_bf16_f32 v96, v164, v165\nv_cvt_pk_bf16_f32 v97, v166, v167")
    for t in range(1, 4): a(f"v_cvt_pk_bf16_f32 v{164+4*t}, v{164+4*t}, v{165+4*t}\nv_cvt_pk_bf16_f32 v{165+4*t}, v{166+4*t}, v{167+4*t}")
    for t in range(1, 4):
        a(f"v_mov_b32_dpp v96, v{164+4*t} row_shr:{4*t} row_mask:0xf bank_mask:{hex(1<<t)}")
        a(f"v_mov_b32_dpp v97, v{165+4*t} row_shr:{4*t} row_mask:0xf bank_mask:{hex(1<<t)}")
    far = "buffer_store_dwordx4 v[96:99], v16, s[40:43], s73 offen sc1"
    a(f"""s_cmp_eq_u32 s3, 1
    s_cbranch_scc1 L_qnear
    {far}""")
    stamp(3)
    end()
    a("L_qnear:")
    a("buffer_store_dwordx4 v[96:99], v16, s[40:43], s73 offen" if qlocal else far)
    stamp(3)
    a(f"""v_cmp_eq_u32 vcc, 1, v3
    v_cndmask_b32 v18, v160, v161, vcc
    v_cmp_eq_u32 vcc, 2, v3
    v_cndmask_b32 v18, v18, v162, vcc
    v_cmp_eq_u32 vcc, 3, v3
    v_cndmask_b32 v18, v18, v163, vcc
    s_mov_b32 s61, {hx(f2u(1e-5))}
    v_mul_f32 v18, {hx(f2u(1/512))}, v18
    v_fma_f32 v18, -v24, v24, v18
    v_max_f32 v18, 0, v18
    v_add_f32 v26, s61, v18
    v_rsq_f32 v26, v26
    v_lshlrev_b32 v10, 3, v0
    v_mul_f32 v27, v26, v26
    v_fma_f32 v27, v27, v18, s61
    v_rsq_f32 v27, v27
    v_add_u32 v11, {STATL}, v10
    v_add_u32 v10, {QIMG}, v10
    v_mul_f32 v27, v26, v27
    v_mul_f32 v26, {hx(f2u(128**-0.5 * LOG2E))}, v26
    s_mov_b64 exec, 15
    ds_write_b64 v11, v[26:27]
    s_mov_b64 exec, -1
    s_lshl_b32 s62, {HEAD}, 13
    s_add_u32 s62, s62, {QBUF}
    s_add_u32 s61, s62, 4096
    s_mov_b32 s58, 0x3f80
    s_mov_b32 s59, 0x3f800000""")
    if qdelay: a(f"s_sleep {qdelay}")
    a(f"s_mov_b32 {CNT}, {spin}\nL_pq:")
    for i in range(8): a(f"buffer_load_dwordx4 v[{100+4*i}:{103+4*i}], v29, s[40:43], {('s62','s61')[i//4]} offen offset:{(i%4)*1024} sc1")
    a("s_waitcnt vmcnt(0)")
    check([102 + 4*i for i in range(8)])
    a("s_cbranch_scc1 L_pq_ok")
    if qlocal:
        a(f"""s_cmp_eq_u32 {CNT}, {spin - qlocal + 1}
        s_cbranch_scc0 L_pq_n
        {far}
        L_pq_n:""")
    a(f"""s_sub_u32 {CNT}, {CNT}, 1
    s_cbranch_scc0 L_pq
    L_pq_ok:""")
    if stamps: a(f"s_sub_u32 s98, {spin}, {CNT}"); stamp(5, "s98")
    for kq in range(4):
        for x in range(2):
            for d in range(2):
                for h in range(2):
                    acc = 132 + x*4 + d*2 + h
                    a(f"v_dot2_f32_bf16 v{acc}, v{100 + (kq*2+x)*4 + d}, s{58+h}, " + ("0" if kq == 0 else f"v{acc}"))
    for i in range(4): a(f"v_cvt_pk_bf16_f32 v{132+i}, v{132+2*i}, v{133+2*i}")
    a("""ds_write_b64 v10, v[132:133]
    ds_write_b64 v10, v[134:135] offset:512""")
    for i in range(8): a(f"v_cmpx_eq_u32 vcc, s63, v{103+4*i}")
    a(f"""s_cmp_eq_u64 exec, -1
    s_mov_b64 exec, -1
    s_cselect_b32 {LOC}, 1, 0""")
    if qlocal: a(f"s_cbranch_scc1 L_qloc\n{far}\nL_qloc:")
    a(f"""v_mov_b32 v26, {TAG}
    v_mov_b32 v27, {LOC}
    ds_write_b64 v21, v[26:27] offset:{TAGL-FL}""")
    setflag(4, 1)
    hjob("L_noh")
    a("s_branch L_hash\nL_noh:")
    setflag(12, 1)
    a("L_hash:")
    stamp(4)
    a(f"""s_cmp_lt_u32 {J}, 4
    s_cbranch_scc0 L_fin""")
    srd(44, 22, None, 1024); srd(48, 4, None, 4096)
    a(f"""s_lshl_b32 s57, {HKV}, 2
    s_add_u32 s57, s57, {J}
    s_lshl_b32 s58, {B}, 5
    s_add_u32 s58, s58, s57
    s_lshl_b32 s65, s58, 5
    s_lshl_b32 s57, s57, 5
    buffer_load_ushort v28, v1, s[44:47], s57 offen
    buffer_load_ushort v4, v1, s[48:51], s65 offen
    s_lshl_b32 s64, s58, 12
    s_add_u32 s60, s64, {MBUF}
    s_mov_b32 s61, 1""")
    if not abl & 16:
        for _ in range(s3delay): a("s_sleep 127")
        a("s_call_b64 s[62:63], L_gather")
    a(f"""s_waitcnt vmcnt(0)
    v_lshlrev_b32 v28, 16, v28
    v_lshlrev_b32 v4, 16, v4
    v_add_f32 v28, v28, v112
    v_mul_f32 v10, {hx(f2u(-LOG2E))}, v28
    v_exp_f32 v10, v10
    s_add_u32 s60, s64, {SBUF}
    s_mov_b32 s61, 0
    v_add_f32 v10, 1.0, v10
    v_rcp_f32 v10, v10
    v_mov_b32 v25, {TAG}
    v_mul_f32 v28, v28, v10""")
    srd(44, 24, None, 4096)
    stamp(6)
    a("s_barrier")
    if abl & 32: a("s_branch L_fin")
    a("""s_call_b64 s[62:63], L_gather
    v_fma_f32 v28, v28, v112, v4
    v_cvt_pk_bf16_f32 v28, v28, v28
    s_mov_b64 exec, 0x00ff00ff
    buffer_store_short v28, v1, s[44:47], s65 offen""")
    stamp(11)
    a("""s_cmp_eq_u32 s2, 0
    s_cbranch_scc0 L_fin
    v_mov_b32 v10, 0
    s_mov_b64 exec, 1
    buffer_store_dword v25, v10, s[40:43], 0 offen sc1
    L_fin:""")
    flush_stamps()
    a("L_end:\ns_endpgm")
    a("L_A1:")
    hjob("L_fin")
    ldswait(4, 1, sleep=8)
    gettag()
    a(f"s_mov_b32 s59, {pw1+2}\ns_branch L_qh")
    a("L_A2:")
    if abl & 16: a("s_branch L_fin")
    srd(44, 18, None, 3584)
    a(f"""s_lshl_b32 s66, {B}, 3
    s_add_u32 s66, s66, {J}
    s_mul_i32 s57, s66, 112
    buffer_load_dwordx2 v[26:27], v30, s[44:47], s57 offen
    v_min_u32 v10, 13, v3
    v_lshlrev_b32 v10, 4, v10
    v_mov_b32 v11, 7168
    v_mad_u32_u24 v10, v2, v11, v10
    s_lshl_b32 s57, s57, 1
    s_add_u32 s57, s57, {HBUF}
    s_add_u32 s58, s57, 28672
    s_add_u32 s59, s58, 28672
    s_add_u32 s60, s59, 28672""")
    tr_addr(str(W2A))
    ldswait(4, 1, sleep=8)
    gettag()
    ldswait(0, pw2 + 2 + s2delay, sleep=8)
    a(f"s_mov_b32 {CNT}, {spin}\nL_ph:")
    for i in range(4): a(f"buffer_load_dwordx4 v[{160+4*i}:{163+4*i}], v10, s[40:43], s{57+i} offen sc1")
    a("s_waitcnt vmcnt(0)")
    check([162 + 4*i for i in range(4)])
    a(f"""s_cbranch_scc1 L_ph_ok
    s_sleep {slp}
    s_sub_u32 {CNT}, {CNT}, 1
    s_cbranch_scc0 L_ph
    L_ph_ok:""")
    for s in range(2):
        for t in range(4):
            if (s, t) == (1, 3): a("s_waitcnt lgkmcnt(12)")
            tr(s, t)
    a("""s_mov_b32 s58, 0x3f80
    s_mov_b32 s59, 0x3f800000""")
    a(f"v_lshlrev_b32 v28, 3, v2\nv_add_u32 v28, {STATL+4}, v28\nds_read_b32 v28, v28")
    for d in range(2):
        for h in range(2): a(f"v_dot2_f32_bf16 v{16+d*2+h}, v{26+d}, s{58+h}, 0")
    for kq in range(4):
        for d in range(2):
            for h in range(2): a(f"v_dot2_f32_bf16 v{32+d*2+h}, v{160+4*kq+d}, s{58+h}, " + ("0" if kq == 0 else f"v{32+d*2+h}"))
    a("s_waitcnt lgkmcnt(0)")
    for i in range(4): a(f"v_fma_f32 v{32+i}, v{32+i}, v28, v{16+i}")
    k1 = -2 * LOG2E * 0.7978845608028654
    a(f"s_mov_b32 s58, {hx(f2u(k1*0.044715))}\nv_mov_b32 v28, {hx(f2u(k1))}")
    for i in range(4): a(f"v_mul_f32 v{24+i}, v{32+i}, v{32+i}")
    for i in range(4): a(f"v_fma_f32 v{24+i}, v{24+i}, s58, v28")
    for i in range(4): a(f"v_mul_f32 v{24+i}, v{24+i}, v{32+i}")
    for i in range(4): a(f"v_exp_f32 v{24+i}, v{24+i}")
    for i in range(4): a(f"v_add_f32 v{24+i}, 1.0, v{24+i}")
    for i in range(4): a(f"v_rcp_f32 v{24+i}, v{24+i}")
    for i in range(4): a(f"v_mul_f32 v{32+i}, v{32+i}, v{24+i}")
    a(f"""v_cvt_pk_bf16_f32 v32, v32, v33
    v_cvt_pk_bf16_f32 v33, v34, v35
    v_cmp_gt_u32 vcc, 14, v3
    v_lshlrev_b32 v10, 3, v0
    v_add_u32 v10, {HIMG}, v10
    v_cndmask_b32 v32, 0, v32, vcc
    v_cndmask_b32 v33, 0, v33, vcc
    v_and_b32 v11, 3, v0
    v_lshlrev_b32 v11, 7, v11
    v_lshl_add_u32 v11, v2, 4, v11
    v_add_u32 v11, {HIMG}, v11
    ds_write_b64 v10, v[32:33]
    ds_read_b128 v[32:35], v11
    ds_read_b128 v[36:39], v11 offset:64
    s_lshl_b32 s57, {HKV}, 14
    s_lshl_b32 s58, s66, 7
    s_add_u32 s57, s57, s58
    s_add_u32 s57, s57, {MBUF}
    s_waitcnt lgkmcnt(0)""")
    for s in range(2):
        for t in range(4):
            c = "0" if s == 0 else f"v[{160+4*t}:{163+4*t}]"
            r = 96 + (s*4+t)*4
            a(f"v_mfma_f32_16x16x32_bf16 v[{160+4*t}:{163+4*t}], v[{32+4*s}:{35+4*s}], v[{r}:{r+3}], {c}")
    for b in range(4): a(f"v_mov_b32 v{97+2*b}, {TAG}")
    for b in range(4): a(f"v_mov_b32 v{96+2*b}, v{160+b}")
    for t in range(1, 4):
        for b in range(4): a(f"v_mov_b32_dpp v{96+2*b}, v{160+4*t+b} quad_perm:[0,1,2,3] row_mask:{hex(1<<t)} bank_mask:0xf")
    def mstores(fl):
        for b in range(4):
            a(f"buffer_store_dwordx2 v[{96+2*b}:{97+2*b}], v31, s[40:43], s57 offen {fl}")
            if b < 3: a("s_add_u32 s57, s57, 131072")
    stamp(6)
    a(f"s_cmp_eq_u32 {LOC}, 1\ns_cbranch_scc0 L_mfar")
    mstores("")
    a("s_branch L_fin\nL_mfar:")
    mstores("sc1")
    a("s_branch L_fin")
    gl = lambda r: [f"buffer_load_dwordx4 v[{r+4*i}:{r+3+4*i}], v29, s[40:43], s60 offen offset:{i*1024} sc1" for i in range(4)]
    gt = lambda r: [r + 1 + 2*i for i in range(8)]
    def gsum(r):
        a(f"""v_add_f32 v112, v{r}, v{r+4}
        v_add_f32 v113, v{r+2}, v{r+6}
        v_add_f32 v114, v{r+8}, v{r+12}
        v_add_f32 v115, v{r+10}, v{r+14}""")
    a(f"""L_gather:
    s_mov_b32 {CNT}, {spin}""")
    if pipe2:
        for l in gl(96): a(l)
        a(f"s_sleep {pipe2}")
        a("L_pg:")
        for l in gl(128): a(l)
        a("s_waitcnt vmcnt(4)")
        check(gt(96))
        a("s_cbranch_scc1 L_pg_okA")
        for l in gl(96): a(l)
        a("s_waitcnt vmcnt(4)")
        check(gt(128))
        a("s_cbranch_scc1 L_pg_okB")
    else:
        a("L_pg:")
        for l in gl(96): a(l)
        a("s_waitcnt vmcnt(0)")
        check(gt(96))
        a("s_cbranch_scc1 L_pg_okA")
    a(f"""s_cmp_eq_u32 s61, 0
    s_cbranch_scc1 L_pg_ns
    s_sleep {max(slp,1)}
    L_pg_ns:
    s_sub_u32 {CNT}, {CNT}, 1
    s_cbranch_scc0 L_pg""")
    if pipe2:
        a("L_pg_okB:"); gsum(128); a("s_branch L_pg_ok")
    a("L_pg_okA:"); gsum(96)
    a("""L_pg_ok:
    v_add_f32 v112, v112, v114
    v_add_f32 v113, v113, v115
    v_add_f32_dpp v112, v112, v112 row_ror:8 row_mask:0xf bank_mask:0xf
    v_add_f32_dpp v113, v113, v113 row_ror:8 row_mask:0xf bank_mask:0xf
    v_permlane16_swap_b32 v112, v113
    v_add_f32 v112, v112, v113
    v_mov_b32 v113, v112
    v_permlane32_swap_b32 v112, v113
    v_add_f32 v112, v112, v113
    s_setpc_b64 s[62:63]""")

    SW, RING, TH, SC, NC, LC = "s3", "s46", "s59", "s61", "s60", "s56"
    VA = [4, 5, 6, 7, 12, 13, 14, 15]
    a(f"""L_C:
    s_sub_u32 s47, s3, 4
    s_lshl_b32 {RING}, s47, 15""")
    SW = "s47"
    trbase()
    a(f"""v_add_u32 v152, {QAREA}, v7
    v_and_b32 v16, 7, v3
    v_lshlrev_b32 v16, 1, v16
    v_lshrrev_b32 v17, 3, v3
    v_or_b32 v16, v16, v17
    v_lshlrev_b32 v17, 2, v2
    v_xor_b32 v16, v16, v17
    v_lshlrev_b32 v16, 4, v16
    v_lshl_add_u32 v16, v3, 8, v16
    v_add_u32 v8, {RING}, v16
    v_xor_b32 v9, 16, v8
    v_xor_b32 v10, 32, v8
    v_xor_b32 v11, 48, v8
    v_lshrrev_b32 v16, 2, v0
    v_and_b32 v17, 7, v16
    v_lshlrev_b32 v17, 1, v17
    v_lshrrev_b32 v18, 3, v16
    v_or_b32 v17, v17, v18
    v_bfe_u32 v18, v0, 1, 1
    v_xor_b32 v17, v17, v18
    v_lshlrev_b32 v17, 4, v17
    v_lshl_add_u32 v17, v16, 8, v17
    v_and_b32 v18, 1, v0
    v_lshl_add_u32 v17, v18, 3, v17
    s_add_u32 s57, {RING}, 8192
    v_add_u32 v4, s57, v17""")
    for t in range(1, 8): a(f"v_xor_b32 v{VA[t]}, {t*32}, v4")
    a(f"""v_and_b32 v16, 3, v3
    v_lshlrev_b32 v17, 6, v2
    v_lshl_add_u32 v17, v16, 8, v17
    v_add_u32 v23, {QIMG}, v17
    v_mul_u32_u24 v27, {OSTR}, v16
    v_lshl_add_u32 v27, v2, 4, v27
    s_add_u32 s57, {RING}, {TB}
    v_add_u32 v27, s57, v27
    v_lshlrev_b32 v16, 3, v16
    s_add_u32 s57, s57, {MLOFF}
    v_add_u32 v1, s57, v16
    s_lshl_b32 s57, {SW}, 2
    v_add_u32 v153, s57, v21
    v_mov_b32 v16, 0xff800000
    v_mov_b32 v17, 0xff800000
    v_mov_b32 v18, 0""")
    for r in range(56, 88, 2): a(f"v_mov_b64 v[{r}:{r+1}], 0")
    a(f"""v_and_b32 v19, 31, v0
    v_lshlrev_b32 v154, 7, v19
    v_lshlrev_b32 v19, 4, v19
    s_mul_i32 s57, {SW}, {OSTR}
    s_add_u32 s57, s57, {TB}
    v_add_u32 v155, s57, v19
    s_lshl_b32 s57, {SW}, 3
    s_add_u32 s57, s57, {TB+MLOFF}
    v_mov_b32 v157, s57
    v_lshlrev_b32 v158, 3, v3
    v_lshl_add_u32 v158, v2, 12, v158
    v_lshlrev_b32 v159, 4, v0
    s_lshl_b32 s66, {HEAD}, 14
    s_lshl_b32 s57, {SW}, 12
    s_add_u32 s66, s66, s57
    s_lshl_b32 s57, {J}, 4
    s_add_u32 s66, s66, s57
    s_add_u32 s66, s66, {OBUF}
    s_lshl_b32 s67, {SW}, 3
    s_add_u32 s67, s67, {HKV}
    s_lshl_b32 s67, s67, 2
    s_add_u32 s67, s67, {B}
    s_lshl_b32 s67, s67, 12
    s_add_u32 s67, s67, {OBUF}
    s_lshl_b32 s68, {SW}, 17
    s_lshl_b32 s57, {J}, 14
    s_add_u32 s68, s68, s57
    s_lshl_b32 s57, {HEAD}, 7
    s_add_u32 s68, s68, s57
    s_add_u32 s68, s68, {SBUF}
    s_lshl_b32 s57, {B}, 3
    s_add_u32 s57, s57, {STATL}
    v_mov_b32 v24, s57
    s_add_u32 {TH}, {SW}, 2
    s_mov_b32 {NC}, 0
    s_waitcnt lgkmcnt(0)""")
    srd(40, 28, None, WS_SIZE)
    if not abl & 1: ldswait(4, 1, cache=LC, sleep=2)
    stamp(2)
    a("ds_read_b32 v24, v24")
    for s in range(4): a(f"ds_read_b128 v[{40+4*s}:{43+4*s}], v23 offset:{16*s}")
    a(f"""ds_read_b64 v[22:23], v21 offset:{TAGL-FL}
    s_mov_b32 {LC}, 0
    s_waitcnt lgkmcnt(0)
    v_readfirstlane_b32 {SC}, v24
    v_readfirstlane_b32 {TAG}, v22
    v_readfirstlane_b32 {LOC}, v23
    L_loop:""")
    ldswait(0, TH, cache=LC, cached=True)
    for s in range(4):
        for t in range(2): a(f"ds_read_b128 v[{88+(s*2+t)*4}:{91+(s*2+t)*4}], v{8+s} offset:{t*4096}")
    a(f"s_add_u32 {NC}, {NC}, 1\ns_add_u32 {TH}, {TH}, 4\nv_mov_b32 v20, {NC}")
    for s in range(4):
        a(f"s_waitcnt lgkmcnt({6-2*s})")
        if s == 3: a("ds_write_b32 v153, v20 offset:16")
        for t in range(2):
            c = "0" if s == 0 else f"v[{32+4*t}:{35+4*t}]"
            a(f"v_mfma_f32_16x16x32_bf16 v[{32+4*t}:{35+4*t}], v[{88+(s*2+t)*4}:{91+(s*2+t)*4}], v[{40+4*s}:{43+4*s}], {c}")
    for s in range(4): a(f"v_xor_b32 v{8+s}, 0x4000, v{8+s}")
    a(f"""v_max3_f32 v23, v32, v33, v34
    v_max3_f32 v23, v23, v35, v36
    v_max3_f32 v23, v23, v37, v38
    v_max3_f32 v23, v23, v39, v16
    v_mov_b32 v24, v23
    v_permlane32_swap_b32 v23, v24
    v_max_f32 v23, v23, v24
    v_mov_b32 v24, v23
    v_permlane16_swap_b32 v23, v24
    v_max_f32 v16, v23, v24
    v_mul_f32 v26, {SC}, v16
    v_sub_f32 v25, v17, v26
    v_exp_f32 v25, v25
    v_mov_b32 v17, v26""")
    for i in range(8): a(f"v_fma_f32 v{32+i}, v{32+i}, {SC}, -v26")
    for i in range(8): a(f"v_exp_f32 v{32+i}, v{32+i}")
    for r in range(56, 88): a(f"v_mul_f32 v{r}, v25, v{r}")
    a("v_fma_f32 v18, v18, v25, v32")
    for i in range(1, 8): a(f"v_add_f32 v18, v18, v{32+i}")
    for i in range(4): a(f"v_cvt_pk_bf16_f32 v{28+i}, v{32+2*i}, v{33+2*i}")
    a(f"""s_cmp_eq_u32 {NC}, 15
    s_cbranch_scc1 L_last
    L_lastret:""")
    ldswait(0, TH, cache=LC, cached=True)
    for t in range(8):
        for u in range(2): a(f"ds_read_b64_tr_b16 v[{120+4*t+2*u}:{121+4*t+2*u}], v{VA[t]} offset:{u*4096}")
    a(f"s_add_u32 {NC}, {NC}, 1\ns_add_u32 {TH}, {TH}, 4\nv_mov_b32 v20, {NC}")
    for t in range(8):
        a(f"s_waitcnt lgkmcnt({14-2*t})")
        a(f"v_mfma_f32_16x16x32_bf16 v[{56+4*t}:{59+4*t}], v[{120+4*t}:{123+4*t}], v[28:31], v[{56+4*t}:{59+4*t}]")
    if not ilw: a(f"s_cmp_eq_u32 {NC}, 16\ns_cbranch_scc1 L_sdone")
    a("ds_write_b32 v153, v20 offset:16")
    for t in range(8): a(f"v_xor_b32 v{VA[t]}, 0x4000, v{VA[t]}")
    a("s_branch L_loop")
    a("""L_last:
    v_mov_b32 v24, v18
    v_permlane32_swap_b32 v18, v24
    v_add_f32 v18, v18, v24
    v_mov_b32 v24, v18
    v_permlane16_swap_b32 v18, v24
    v_add_f32 v19, v18, v24
    v_mov_b32 v18, v17
    v_xor_b32 v8, 32, v152
    v_xor_b32 v9, 64, v152
    v_xor_b32 v10, 0x60, v152""")
    n = 0
    for s in range(4):
        for t in range(4):
            if n >= 14: a("s_waitcnt lgkmcnt(12)")
            r = 160 + (s*4+t)*4
            for u in range(2): a(f"ds_read_b64_tr_b16 v[{r+2*u}:{r+2*u+1}], v{(152,8,9,10)[t]} offset:{s*4096+u*512}")
            n += 2
    a(f"""v_add_u32 v156, 0x10000, v155
    v_add_u32 v11, 0x10000, v157
    v_mov_b32 v51, {TAG}
    v_mov_b32 v53, {TAG}
    s_mov_b32 {CNT}, {spin}
    s_waitcnt lgkmcnt(0)""")
    if ilw:
        a(M4)
        a("ds_write_b64 v1, v[18:19]\ns_mov_b64 exec, -1")
        ldswait(0, TH, cache=LC, cached=True, sleep=0)
        for t in range(8):
            for u in range(2): a(f"ds_read_b64_tr_b16 v[{120+4*t+2*u}:{121+4*t+2*u}], v{VA[t]} offset:{u*4096}")
        for t in range(8):
            a(f"s_waitcnt lgkmcnt({14-2*t})")
            a(f"v_mfma_f32_16x16x32_bf16 v[{56+4*t}:{59+4*t}], v[{120+4*t}:{123+4*t}], v[28:31], v[{56+4*t}:{59+4*t}]")
        a(M4)
        for t in range(8): a(f"ds_write_b128 v27, v[{56+4*t}:{59+4*t}] offset:{t*64}")
    else:
        a("s_branch L_lastret\nL_sdone:")
        a(M4)
        a("ds_write_b64 v1, v[18:19]")
        for t in range(8): a(f"ds_write_b128 v27, v[{56+4*t}:{59+4*t}] offset:{t*64}")
    a("s_mov_b64 exec, -1\ns_waitcnt lgkmcnt(0)")
    stamp(3)
    a("s_barrier")
    stamp(7)
    if abl & 32: end()
    a("""ds_read_b64 v[144:145], v157
    ds_read_b64 v[146:147], v157 offset:32768
    ds_read_b64 v[148:149], v11
    ds_read_b64 v[150:151], v11 offset:32768
    ds_read_b128 v[128:131], v155
    ds_read_b128 v[132:135], v155 offset:32768
    ds_read_b128 v[136:139], v156
    ds_read_b128 v[140:143], v156 offset:32768
    s_waitcnt lgkmcnt(4)
    v_max3_f32 v50, v144, v146, v148
    v_max_f32 v50, v50, v150""")
    for w in range(4): a(f"v_sub_f32 v{144+2*w}, v{144+2*w}, v50")
    for w in range(4): a(f"v_exp_f32 v{144+2*w}, v{144+2*w}")
    a("""v_mul_f32 v40, v144, v145
    v_fmac_f32 v40, v146, v147
    v_fmac_f32 v40, v148, v149
    v_fmac_f32 v40, v150, v151
    v_rcp_f32 v41, v40
    v_log_f32 v40, v40
    s_waitcnt lgkmcnt(0)""")
    for i in range(4): a(f"v_mul_f32 v{128+i}, v144, v{128+i}")
    for w in range(1, 4):
        for i in range(4): a(f"v_fmac_f32 v{128+i}, v{144+2*w}, v{128+4*w+i}")
    a("v_add_f32 v50, v50, v40")
    for i in range(4): a(f"v_mul_f32 v{128+i}, v41, v{128+i}")
    a(f"""v_cvt_pk_bf16_f32 v48, v128, v129
    v_cvt_pk_bf16_f32 v49, v130, v131
    s_mov_b32 exec_hi, 0
    s_cmp_eq_u32 {LOC}, 1
    s_cbranch_scc0 L_ofar
    buffer_store_dwordx4 v[48:51], v154, s[40:43], s66 offen
    L_onear:
    s_mov_b64 exec, -1""")
    stamp(8)
    a("L_po:")
    for i in range(4): a(f"buffer_load_dwordx4 v[{96+4*i}:{99+4*i}], v159, s[40:43], s67 offen offset:{i*1024} sc1")
    a("s_waitcnt vmcnt(0)")
    check([99 + 4*i for i in range(4)])
    a(f"""s_cbranch_scc1 L_po_ok
    s_sub_u32 {CNT}, {CNT}, 1
    s_cbranch_scc0 L_po
    L_po_ok:""")
    stamp(9)
    if stamps: a(f"s_sub_u32 s98, {spin}, {CNT}"); stamp(12, "s98")
    a("v_mov_b32 v18, v98")
    for s in range(4):
        for d in range(2): a(f"v_mov_b32_dpp v{98+4*s+d}, v{96+4*s+d} row_shl:8 row_mask:0xf bank_mask:0xf bound_ctrl:1")
    mf = []
    for s in range(4):
        for t in range(4):
            c = "0" if s == 0 else f"v[{56+4*t}:{59+4*t}]"
            r = 160 + (s*4+t)*4
            mf.append(f"v_mfma_f32_16x16x32_bf16 v[{56+4*t}:{59+4*t}], v[{96+4*s}:{99+4*s}], v[{r}:{r+3}], {c}")
    dp = "row_mask:0xf bank_mask:0xf"
    P = ["quad_perm:[1,0,3,2]", "quad_perm:[2,3,0,1]", "row_half_mirror"]
    wv = [f"v_max_f32_dpp v19, v18, v18 {P[0]} {dp}", f"v_max_f32_dpp v19, v19, v19 {P[1]} {dp}", f"v_max_f32_dpp v19, v19, v19 {P[2]} {dp}",
          "v_sub_f32 v18, v18, v19", "v_exp_f32 v18, v18",
          f"v_add_f32_dpp v19, v18, v18 {P[0]} {dp}", f"v_add_f32_dpp v19, v19, v19 {P[1]} {dp}", f"v_add_f32_dpp v19, v19, v19 {P[2]} {dp}",
          "v_rcp_f32 v19, v19", "v_mul_f32 v18, v18, v19"]
    wv.append("\n".join(f"v_mov_b32_dpp v{32+i}, v18 row_newbcast:{i} row_mask:0x5 bank_mask:0xf" for i in range(4)))
    wv.append("\n".join(f"v_mov_b32_dpp v{32+i}, v18 row_newbcast:{4+i} row_mask:0xa bank_mask:0xf" for i in range(4)))
    for i, m in enumerate(mf):
        a(m)
        if i < len(wv): a(wv[i])
    T = [52, 36, 37, 38]
    for t in range(4): a(f"v_mul_f32 v{T[t]}, v32, v{56+4*t}")
    for i in range(1, 4):
        for t in range(4): a(f"v_fmac_f32 v{T[t]}, v{32+i}, v{56+4*t+i}")
    a("""v_permlane16_swap_b32 v52, v36
    v_permlane16_swap_b32 v37, v38
    v_add_f32 v52, v52, v36
    v_add_f32 v37, v37, v38
    v_permlane32_swap_b32 v52, v37
    buffer_store_dwordx2 v[52:53], v158, s[40:43], s68 offen sc1""")
    stamp(10)
    end()
    a("L_ofar:\nbuffer_store_dwordx4 v[48:51], v154, s[40:43], s66 offen sc1\ns_branch L_onear")
    errs = a.check_branches()
    assert not errs, "\n".join(errs)
    nv = 232 if (stamps or lite) else 224
    a.raw(f""".section .rodata,"a"
.p2align 6
.amdhsa_kernel {name}
  .amdhsa_next_free_vgpr {nv}
  .amdhsa_next_free_sgpr 102
  .amdhsa_accum_offset {nv}
  .amdhsa_group_segment_fixed_size 0
  .amdhsa_kernarg_size 104
  .amdhsa_user_sgpr_count 2
  .amdhsa_user_sgpr_kernarg_segment_ptr 1
  .amdhsa_system_sgpr_workgroup_id_x 1
.end_amdhsa_kernel""")
    return a.text()

if __name__ == "__main__":
    out = sys.argv[1]
    kw = eval("dict(%s)" % (sys.argv[2] if len(sys.argv) > 2 else ""))
    open(out, "w").write(gen(**kw))
```

```python
import struct, sys
sys.path.insert(0, "work")
from asmdsl import Asm

NAME = "recurrent_scan__gqa_block_cached__mixer_channel_mlp__decode_kernel"
def f2u(x): return struct.unpack("<I", struct.pack("<f", x))[0]
def hx(x): return "0x%08x" % (x & 0xffffffff)

QBUF, HBUF, MBUF, OBUF, SBUF, STAMPS = 0x10000, 0x50000, 0x80000, 0x100000, 0x180000, 0x200000
WS_SIZE = 0x400000
QAREA, HAREA = 131072, 147456
FL = HAREA
TAGL, STATL, MLX, QIMG, HIMG, XIMG, PBUF = HAREA + 48, HAREA + 64, HAREA + 128, HAREA + 1024, HAREA + 2048, HAREA + 4096, HAREA + 8192
TB = 16384
OSTR = 528
MLOFF = 2304
TAGC = 0x9E3779B9
SPIN = 20479
LOG2E = 1.4426950408889634
M4 = "s_mov_b32 exec_lo, 0x000f000f\ns_mov_b32 exec_hi, 0x000f000f"
J, HEAD, HKV, B = "s52", "s53", "s54", "s55"
TAG, CNT, LOC = "s30", "s31", "s72"

HEADER = open("recurrent_scan__gqa_block_cached__mixer_channel_mlp__decode.s.ref").read().split("; Override launch")[0]

def gen(name=NAME, stamps=False, lite=False, kvf="nt", wf="nt", spin=SPIN, N=21, rot=1, slp=8, qdelay=4, mapping="mod",
        qlocal=3, s2delay=20, s3delay=1, pw1=8, pw2=12, pwo=40, csl=1, abl=0, lprio=3, aprio=2, pipe2=3, gran=1, burst=True, cpre=True, ilw=True, touch=False, kmaj=False, t3=48, mpipe=False, tq=7, t2=34, bar2=1, irot=1, Nhi=48, T=270, T0=1200, nb=4, lv=None, prew=0, light=False, lastbar=True, tch=0, gref=0):
    a = Asm()
    if lv is None: lv = [(None, N)] + ([(0, Nhi)] if Nhi not in (None, N) else [])
    adapt = len(lv) > 1
    NMAX = max(n for _, n in lv)
    def stamp(k, val=None):
        if stamps or (lite and k == 0):
            if val is None:
                a(f"s_memrealtime s[98:99]\ns_waitcnt lgkmcnt(0)"); val = "s98"
            a(f"v_writelane_b32 v230, {val}, {k}")
    def flush_stamps():
        if not (stamps or lite): return
        stamp(0, "s96")
        a("s_mov_b64 exec, -1")
        a("s_getreg_b32 s64, hwreg(HW_REG_XCC_ID, 0, 4)\nv_writelane_b32 v230, s64, 15")
        if stamps: a("s_memtime s[98:99]\ns_waitcnt lgkmcnt(0)\ns_sub_u32 s98, s98, s100\nv_writelane_b32 v230, s98, 14")
        a("s_memrealtime s[98:99]\ns_waitcnt lgkmcnt(0)\nv_writelane_b32 v230, s98, 13")
        a(f"""s_lshl_b32 s64, s2, 3
        s_add_u32 s64, s64, s3
        s_lshl_b32 s64, s64, 7
        s_add_u32 s64, s64, {STAMPS}
        s_mov_b32 s48, s28
        s_mov_b32 s49, s29
        s_mov_b32 s50, {WS_SIZE}
        s_mov_b32 s51, 0x20000
        v_lshlrev_b32 v231, 2, v0
        s_mov_b32 exec_hi, 0
        buffer_store_dword v230, v231, s[48:51], s64 offen""")
    def end():
        flush_stamps(); a("s_endpgm")
    def srd(d, lo, off, size):
        if off is None:
            a(f"s_mov_b32 s{d}, s{lo}\ns_mov_b32 s{d+1}, s{lo+1}")
        else:
            a(f"s_add_u32 s{d}, s{lo}, {off}\ns_addc_u32 s{d+1}, s{lo+1}, 0")
        a(f"s_mov_b32 s{d+2}, {size}\ns_mov_b32 s{d+3}, 0x20000")
    def check(tags):
        for t in tags: a(f"v_cmpx_eq_u32 vcc, {TAG}, v{t}")
        a("s_cmp_eq_u64 exec, -1\ns_mov_b64 exec, -1")
    uid = [0]
    def ldswait(off, thr, cache="s56", sleep=csl, vt=20, cached=False):
        uid[0] += 1; u = uid[0]
        if cached: a(f"s_cmp_ge_i32 {cache}, {thr}\ns_cbranch_scc1 L_lw{u}_ok")
        a(f"""L_lw{u}:
        ds_read_b32 v{vt}, v21 offset:{off}
        s_waitcnt lgkmcnt(0)
        v_readfirstlane_b32 {cache}, v{vt}
        s_cmp_ge_i32 {cache}, {thr}
        s_cbranch_scc1 L_lw{u}_ok""")
        if sleep: a(f"s_sleep {sleep}")
        a(f"s_sub_u32 s71, s71, 1\ns_cbranch_scc0 L_lw{u}\ns_endpgm\nL_lw{u}_ok:")
    def setflag(off, val, vt=20):
        a(f"v_mov_b32 v{vt}, {val}\nds_write_b32 v21, v{vt} offset:{off}")
    def tr(s, t, base=96):
        r = base + (s * 4 + t) * 4
        for u in range(2): a(f"ds_read_b64_tr_b16 v[{r+2*u}:{r+2*u+1}], v{12+t} offset:{s*4096+u*512}")
    def tr_addr(area):
        a(f"""v_add_u32 v12, {area}, v7
        v_xor_b32 v13, 32, v12
        v_xor_b32 v14, 64, v12
        v_xor_b32 v15, 0x60, v12""")
    def trbase():
        a("""v_and_b32 v10, 1, v2
        v_bfe_u32 v7, v0, 3, 1
        v_lshl_add_u32 v7, v10, 1, v7
        v_lshlrev_b32 v7, 5, v7
        v_and_b32 v10, 3, v0
        v_lshl_add_u32 v7, v10, 3, v7
        v_bfe_u32 v10, v0, 2, 2
        v_lshl_add_u32 v7, v10, 7, v7
        v_lshl_add_u32 v7, v2, 10, v7""")
    def hjob(skip):
        a(f"""s_sub_u32 s58, {J}, 4
        s_lshl_b32 s58, s58, 5
        s_add_u32 s58, s58, {HEAD}
        s_cmp_ge_u32 s58, 112
        s_cbranch_scc1 {skip}
        s_and_b32 s57, s58, 3
        s_lshr_b32 s58, s58, 2""")
    def gettag():
        a(f"""ds_read_b64 v[22:23], v21 offset:{TAGL-FL}
        s_waitcnt lgkmcnt(0)
        v_readfirstlane_b32 {TAG}, v22
        v_readfirstlane_b32 {LOC}, v23""")

    a.raw(HEADER.rstrip("\n"))
    a.raw("; @launch grid=(256,1,1) block=(512,1,1) lds=163840")
    a.raw('.amdgcn_target "amdgcn-amd-amdhsa--gfx950"\n.text')
    a.raw(f".globl {name}\n.p2align 8\n.type {name},@function")
    a.label(name)
    a("""s_load_dwordx16 s[4:19], s[0:1], 0
    s_load_dwordx8 s[20:27], s[0:1], 64
    s_load_dwordx2 s[28:29], s[0:1], 96""")
    if adapt: a("s_memrealtime s[76:77]")
    if stamps or lite: a("s_memrealtime s[96:97]\ns_memtime s[100:101]")
    a(f"""s_cmp_ge_u32 s2, 256
    s_cbranch_scc1 L_end
    v_lshrrev_b32 v1, 6, v0
    v_and_b32 v0, 63, v0
    v_readfirstlane_b32 s3, v1
    v_lshrrev_b32 v2, 4, v0
    v_and_b32 v3, 15, v0
    v_mov_b32 v21, {FL}
    s_mov_b32 s71, 0x40000""")
    if mapping == "div": a(f"s_and_b32 {J}, s2, 7\ns_lshr_b32 {HEAD}, s2, 3")
    else: a(f"s_lshr_b32 {J}, s2, 5\ns_and_b32 {HEAD}, s2, 31")
    a(f"""s_and_b32 {HKV}, {HEAD}, 7
    s_lshr_b32 {B}, {HEAD}, 3
    s_cmp_eq_u32 s3, 0
    s_cbranch_scc0 L_notL""")
    NN, PV, HR, OA, OB, RR, CV = "s59", "s60", "s61", "s63", "s64", "s65", "s66"
    a(f"""s_setprio {lprio}
    v_mov_b64 v[24:25], 0
    v_mov_b64 v[26:27], 0
    ds_write_b128 v21, v[24:27]
    ds_write_b128 v21, v[24:27] offset:32
    v_mov_b32 v28, 0
    v_mov_b32 v25, 1
    v_mov_b32 v26, 2
    v_mov_b32 v27, 3
    ds_write_b128 v21, v[24:27] offset:16
    v_lshrrev_b32 v5, 3, v0
    v_and_b32 v6, 7, v0
    v_and_b32 v10, 1, v2
    v_lshlrev_b32 v10, 1, v10
    v_xor_b32 v6, v6, v10
    v_lshlrev_b32 v6, 4, v6
    v_lshl_add_u32 v8, v5, 13, v6
    v_xor_b32 v9, 64, v8
    v_lshlrev_b32 v4, 4, v0
    v_lshlrev_b32 v16, 1, v2
    v_xor_b32 v16, v16, v3
    v_lshlrev_b32 v16, 4, v16
    v_lshl_add_u32 v16, v2, 8, v16
    v_xor_b32 v17, 0x80, v16
    v_xor_b32 v18, 16, v16
    v_xor_b32 v19, 0x90, v16
    s_lshl_b32 s58, {B}, 13
    s_add_u32 s58, s58, {J}
    s_lshl_b32 s57, {HKV}, 3
    s_add_u32 s58, s58, s57
    s_lshl_b32 s58, s58, 7
    s_lshl_b32 s67, {HEAD}, 21
    s_lshl_b32 s57, {J}, 18
    s_add_u32 s67, s67, s57
    s_mov_b32 s62, 0
    s_mov_b32 m0, {QAREA}
    s_waitcnt lgkmcnt(0)
    s_barrier""")
    srd(40, 10, "s58", 127*8192+128)
    for k in range(0 if abl & (2 | 128) else 16):
        a(f"buffer_load_dwordx4 v{8+(k&1)}, s[40:43], s62 offen {wf} lds")
        if k < 15: a("s_add_u32 m0, m0, 1024\ns_add_u32 s62, s62, 0x10000")
    a(f"s_mov_b32 m0, {XIMG}")
    srd(44, 4, None, 4096)
    for k in range(4): a(f"buffer_load_dwordx4 v4, s[44:47], 0 offen offset:{k*1024} lds")
    a(f"""s_add_u32 s32, s6, s67
    s_addc_u32 s33, s7, 0
    s_add_u32 s34, s8, s67
    s_addc_u32 s35, s9, 0
    s_mov_b32 s46, 0x40000
    s_mov_b64 s[44:45], s[32:33]
    s_lshr_b32 {RR}, s2, 3
    s_and_b32 {RR}, {RR}, {7 if rot else 0}""")
    if irot: a(f"s_lshl_b32 s57, {J}, 3\ns_or_b32 {RR}, {RR}, s57")
    a(f"s_lshl_b32 {RR}, {RR}, 12")
    for n in range(nb):
        a(f"s_xor_b32 {OA}, {RR}, {n << 13}\ns_xor_b32 {OB}, {OA}, 4096\ns_mov_b32 m0, {n << 13}")
        for k in range(8):
            if k == 4: a(f"s_mov_b32 m0, {(n << 13) + 4096}")
            a(f"buffer_load_dwordx4 v{16+(k&3)}, s[44:47], {(OA,OB)[k//4]} offen offset:{(k&3)*1024} {kvf} lds")
    a(f"""s_mov_b32 {NN}, {nb}
    s_mov_b32 {PV}, 1
    s_mov_b32 {HR}, {(1 << nb) - 1}
    s_mov_b32 s78, s76
    s_mov_b32 s79, {T0 + nb*T}
    v_mov_b32 v20, 1
    s_waitcnt vmcnt({8*nb})
    ds_write_b32 v21, v20""")
    def publish(age):
        a(f"""s_lshr_b32 s58, {HR}, {age}
        s_bcnt1_i32_b32 s58, s58
        s_add_u32 {PV}, {PV}, s58
        s_and_b32 {HR}, {HR}, {(1 << age) - 1}
        v_mov_b32 v20, {PV}
        ds_write_b32 v21, v20""")
    def mode(lbl):
        if adapt:
            a("""s_sub_u32 s57, s76, s78
            s_mul_i32 s57, s57, 10
            s_sub_u32 s57, s57, s79
            s_memrealtime s[76:77]""")
            for i in range(len(lv) - 1, 0, -1):
                a(f"s_cmp_ge_i32 s57, {lv[i][0]}\ns_cbranch_scc1 {lbl}{i}")
    def cmin(): a(f"v_min3_i32 v23, v24, v25, v26\nv_min_i32 v23, v23, v27\nv_readfirstlane_b32 {CV}, v23")
    a(f"""L_step:
    s_sub_u32 s67, {NN}, 15
    s_waitcnt lgkmcnt(0)""")
    if gref: a("v_readfirstlane_b32 s80, v28\ns_cmp_eq_u32 s80, 0\ns_cselect_b32 s78, s78, s80")
    a("""s_cmp_gt_i32 s67, 0
    s_cbranch_scc0 L_free""")
    cmin()
    a(f"""s_cmp_ge_i32 {CV}, s67
    s_cbranch_scc0 L_stall
    L_free:
    s_and_b32 {OA}, {NN}, 31
    s_lshl_b32 {OA}, {OA}, 13
    s_xor_b32 {OA}, {OA}, {RR}
    s_xor_b32 {OB}, {OA}, 4096
    s_and_b32 s68, {NN}, 15
    s_lshl_b32 s68, s68, 13
    s_bitcmp1_b32 {NN}, 5
    s_cselect_b64 s[44:45], s[34:35], s[32:33]
    s_add_u32 {NN}, {NN}, 1
    s_mov_b32 m0, s68""")
    def kvbody(n):
        for k in range(8):
            if k == 4: a("s_add_u32 m0, s68, 4096")
            a(f"s_waitcnt vmcnt({n-1})")
            if k == (n - 1) % 8: publish((n - 1) // 8)
            a(f"buffer_load_dwordx4 v{16+(k&3)}, s[44:47], {(OA,OB)[k//4]} offen offset:{(k&3)*1024} {kvf} lds")
            if k == 6: a("ds_read_b128 v[24:27], v21 offset:16")
            if k == 5 and gref: a("ds_read_b32 v28, v21 offset:40")
    mode("L_kvhi")
    kvbody(lv[0][1])
    a(f"""L_kvj:
    s_lshl_b32 {HR}, {HR}, 1
    s_or_b32 {HR}, {HR}, 1
    s_add_u32 s79, s79, {T}
    s_cmp_eq_u32 {NN}, {pw1}
    s_cbranch_scc1 L_w1
    s_cmp_eq_u32 {NN}, {pwo}
    s_cbranch_scc1 L_wo
    s_cmp_lt_u32 {NN}, 64
    s_cbranch_scc1 L_step""")
    stamp(1)
    AM = (NMAX + 7) // 8
    for q in range(AM - 1, -1, -1):
        a(f"s_waitcnt vmcnt({8*q})")
        if q == 0 and lastbar: a("s_barrier")
        else: publish(q)
    a("s_waitcnt lgkmcnt(0)")
    stamp(2)
    end()
    for i in range(1, len(lv)):
        a(f"L_kvhi{i}:"); kvbody(lv[i][1]); a("s_branch L_kvj")
    a("L_stall:")
    for q in range(AM - 1, -1, -1):
        a(f"s_waitcnt vmcnt({8*q})"); publish(q)
        a("ds_read_b128 v[24:27], v21 offset:16\ns_waitcnt lgkmcnt(0)")
        cmin()
        a(f"""s_cmp_ge_i32 {CV}, s67
        s_cbranch_scc1 L_free""")
    a("s_sleep 1\ns_sub_u32 s71, s71, 1\ns_cbranch_scc0 L_stall\ns_endpgm")
    def wbody(n):
        for k in range(8):
            a(f"s_waitcnt vmcnt({n-1})")
            if k == (n - 1) % 8: publish((n - 1) // 8)
            a(f"buffer_load_dwordx4 v{8+(k&1)}, s[40:43], s62 offen {wf} lds")
            a("s_add_u32 m0, m0, 1024\ns_add_u32 s62, s62, s70")
    a("L_wtile:\ns_waitcnt lgkmcnt(0)")
    mode("L_whi")
    wbody(lv[0][1])
    a(f"""L_wj:
    s_lshl_b32 {HR}, {HR}, 1
    s_add_u32 s79, s79, {T}
    s_sub_u32 s69, s69, 1
    s_cbranch_scc0 L_wtile
    s_branch L_step""")
    for i in range(1, len(lv)):
        a(f"L_whi{i}:"); wbody(lv[i][1]); a("s_branch L_wj")
    a("""    L_w1:""")
    if abl & (2 | 256): a("s_branch L_step")
    a(f"s_cmp_lt_u32 {J}, 4\ns_cbranch_scc1 L_w2")
    hjob("L_step")
    a(f"""s_mul_i32 s57, s57, 3584
    s_add_u32 s58, s58, s57
    s_lshl_b32 s58, s58, 7
    v_mul_u32_u24 v8, 3584, v5
    v_add_u32 v8, v8, v6
    s_mov_b32 s70, {8*3584}""")
    srd(40, 16, "s58", 127*3584+128)
    a(f"""s_branch L_wmid
    L_w2:
    s_lshl_b32 s57, {B}, 2
    s_add_u32 s57, s57, {J}
    s_mul_i32 s57, s57, {112*1024}
    s_lshl_b32 s58, {HKV}, 7
    s_add_u32 s57, s57, s58
    v_lshl_add_u32 v8, v5, 10, v6
    s_mov_b32 s70, 8192""")
    srd(40, 20, "s57", 111*1024+128)
    a("L_wmid:")
    if not abl & 1: ldswait(8, 1, cache="s69")
    a(f"""v_xor_b32 v9, 64, v8
    s_mov_b32 s62, 0
    s_mov_b32 s69, 1
    s_mov_b32 m0, {QAREA}""")
    a("s_branch L_wtile\nL_wo:")
    if abl & (2 | 512): a("s_branch L_step")
    if not abl & 1: ldswait(12, 1, cache="s70")
    a(f"""s_lshl_b32 s57, {HKV}, 2
    s_add_u32 s57, s57, {B}
    s_lshl_b32 s57, s57, 17
    s_lshl_b32 s58, {J}, 7
    s_add_u32 s57, s57, s58
    v_lshl_add_u32 v8, v5, 10, v6
    v_xor_b32 v9, 64, v8
    s_mov_b32 s62, 0
    s_mov_b32 s69, 1
    s_mov_b32 s70, 8192
    s_mov_b32 m0, {QAREA}""")
    srd(40, 12, "s57", 127*1024+128)
    a("s_branch L_wtile")

    a("""L_notL:
    s_barrier
    s_cmp_ge_u32 s3, 4
    s_cbranch_scc1 L_C""")
    if abl & 1:
        a("s_waitcnt lgkmcnt(0)"); end()
    a(f"s_setprio {aprio}")
    trbase()
    a("""v_and_b32 v1, 7, v0
    v_lshlrev_b32 v1, 3, v1
    v_lshl_add_u32 v1, v2, 1, v1
    v_lshlrev_b32 v30, 3, v3
    v_lshlrev_b32 v29, 4, v0
    s_waitcnt lgkmcnt(0)""")
    srd(40, 28, None, WS_SIZE)
    a(f"""s_cmp_eq_u32 s3, 3
    s_cbranch_scc1 L_A2
    s_mov_b32 s57, {B}
    s_mov_b32 s59, 1
    s_cmp_eq_u32 s3, 1
    s_cbranch_scc0 L_A1
    s_load_dword {TAG}, s[28:29], 0
    L_qh:
    s_mov_b32 s60, 0x3f803f80
    s_mov_b32 s61, 0x3f803f80""")
    for r in range(32, 96, 2): a(f"v_mov_b64 v[{r}:{r+1}], s[60:61]")
    tr_addr(str(QAREA))
    a(f"""v_lshlrev_b32 v4, 10, v3
    v_lshl_add_u32 v4, v2, 4, v4
    v_add_u32 v4, {XIMG}, v4
    s_lshl_b32 s62, s57, 8""")
    for gq in range(4):
        a(f"v_add_u32 v{24+gq}, s62, v4")
        if gq < 3: a("s_add_u32 s62, s62, 256\ns_and_b32 s62, s62, 0x3ff")
    a(f"""v_and_b32 v10, 3, v3
    v_lshlrev_b32 v17, 2, v10
    v_add_u32 v17, 64, v17
    v_lshlrev_b32 v11, 16, v10
    s_lshl_b32 s62, s57, 11
    s_lshl_b32 s60, {HKV}, 13
    s_add_u32 s62, s62, s60
    s_add_u32 s62, s62, {QBUF}
    s_mov_b32 s60, {J}
    s_cmp_eq_u32 s3, 1
    s_cbranch_scc1 L_q1
    v_mul_u32_u24 v11, 7168, v10
    s_mul_i32 s62, s57, 28672
    s_add_u32 s62, s62, {HBUF}
    s_mov_b32 s60, s58
    L_q1:
    v_lshrrev_b32 v10, 2, v3
    v_lshl_add_u32 v11, v10, 6, v11
    v_lshl_add_u32 v16, v2, 4, v11
    s_lshl_b32 s60, s60, 8
    s_add_u32 s73, s62, s60
    s_getreg_b32 s63, hwreg(HW_REG_XCC_ID, 0, 4)""")
    ldswait(0, "s59", sleep=0)
    stamp(2)
    a(M4)
    for s in range(4): a(f"ds_read_b128 v[{32+4*s}:{35+4*s}], v24 offset:{64*s}")
    a("s_mov_b64 exec, -1")
    for t in range(4): tr(0, t)
    def gram(s):
        c = "0" if s == 0 else "v[160:163]"
        return f"v_mfma_f32_16x16x32_bf16 v[160:163], v[{32+4*s}:{35+4*s}], v[{32+4*s}:{35+4*s}], {c}"
    def dmf(s, t):
        c = "0" if s == 0 else f"v[{164+4*t}:{167+4*t}]"
        r = 96 + (s*4+t)*4
        return f"v_mfma_f32_16x16x32_bf16 v[{164+4*t}:{167+4*t}], v[{r}:{r+3}], v[{32+4*s}:{35+4*s}], {c}"
    for s in range(4):
        a("s_waitcnt lgkmcnt(0)")
        if s < 3:
            a(M4)
            for q in range(4): a(f"ds_read_b128 v[{48+16*s+4*q}:{51+16*s+4*q}], v{25+s} offset:{64*q}")
            a("s_mov_b64 exec, -1")
            for t in range(4): tr(s+1, t)
        else:
            a(f"s_sub_u32 s60, s3, 1\ns_lshl_b32 s60, s60, 2\nv_add_u32 v18, s60, v21\nv_mov_b32 v19, 1\nds_write_b32 v18, v19 offset:8")
        for q in range(4): a(gram(4*s+q))
        if s < 3:
            for t in range(4): a(dmf(s, t))
    a("ds_bpermute_b32 v19, v17, v160")
    for t in range(4): a(dmf(3, t))
    a(f"""s_cmp_eq_u32 s3, 1
    s_cbranch_scc0 L_q2
    s_add_u32 {TAG}, {TAG}, {hx(TAGC)}
    L_q2:
    s_waitcnt lgkmcnt(0)
    v_mul_f32 v24, {hx(f2u(-1/512))}, v19
    v_mov_b32 v98, {TAG}
    v_mov_b32 v99, s63""")
    for r in range(164, 180): a(f"v_fmac_f32_dpp v{r}, v{r}, v24 row_shl:4 row_mask:0xf bank_mask:0xf bound_ctrl:1")
    a("v_cvt_pk_bf16_f32 v96, v164, v165\nv_cvt_pk_bf16_f32 v97, v166, v167")
    for t in range(1, 4): a(f"v_cvt_pk_bf16_f32 v{164+4*t}, v{164+4*t}, v{165+4*t}\nv_cvt_pk_bf16_f32 v{165+4*t}, v{166+4*t}, v{167+4*t}")
    for t in range(1, 4):
        a(f"v_mov_b32_dpp v96, v{164+4*t} row_shr:{4*t} row_mask:0xf bank_mask:{hex(1<<t)}")
        a(f"v_mov_b32_dpp v97, v{165+4*t} row_shr:{4*t} row_mask:0xf bank_mask:{hex(1<<t)}")
    far = "buffer_store_dwordx4 v[96:99], v16, s[40:43], s73 offen sc1"
    a(f"""s_cmp_eq_u32 s3, 1
    s_cbranch_scc1 L_qnear
    {far}""")
    stamp(3)
    end()
    a("L_qnear:")
    if abl & 2048:
        setflag(4, 1); setflag(12, 1); end()
    a("buffer_store_dwordx4 v[96:99], v16, s[40:43], s73 offen" if qlocal else far)
    stamp(3)
    a(f"""v_cmp_eq_u32 vcc, 1, v3
    v_cndmask_b32 v18, v160, v161, vcc
    v_cmp_eq_u32 vcc, 2, v3
    v_cndmask_b32 v18, v18, v162, vcc
    v_cmp_eq_u32 vcc, 3, v3
    v_cndmask_b32 v18, v18, v163, vcc
    s_mov_b32 s61, {hx(f2u(1e-5))}
    v_mul_f32 v18, {hx(f2u(1/512))}, v18
    v_fma_f32 v18, -v24, v24, v18
    v_max_f32 v18, 0, v18
    v_add_f32 v26, s61, v18
    v_rsq_f32 v26, v26
    v_lshlrev_b32 v10, 3, v0
    v_mul_f32 v27, v26, v26
    v_fma_f32 v27, v27, v18, s61
    v_rsq_f32 v27, v27
    v_add_u32 v11, {STATL}, v10
    v_add_u32 v10, {QIMG}, v10
    v_mul_f32 v27, v26, v27
    v_mul_f32 v26, {hx(f2u(128**-0.5 * LOG2E))}, v26
    s_mov_b64 exec, 15
    ds_write_b64 v11, v[26:27]
    s_mov_b64 exec, -1
    s_lshl_b32 s62, {HEAD}, 13
    s_add_u32 s62, s62, {QBUF}
    s_add_u32 s61, s62, 4096
    s_mov_b32 s58, 0x3f80
    s_mov_b32 s59, 0x3f800000""")
    if tq: ldswait(0, tq, sleep=2)
    elif qdelay: a(f"s_sleep {qdelay}")
    a(f"s_mov_b32 {CNT}, {spin}\nL_pq:")
    for i in range(8): a(f"buffer_load_dwordx4 v[{100+4*i}:{103+4*i}], v29, s[40:43], {('s62','s61')[i//4]} offen offset:{(i%4)*1024} sc1")
    a("s_waitcnt vmcnt(0)")
    check([102 + 4*i for i in range(8)])
    a("s_cbranch_scc1 L_pq_ok")
    if qlocal:
        a(f"""s_cmp_eq_u32 {CNT}, {spin - qlocal + 1}
        s_cbranch_scc0 L_pq_n
        {far}
        L_pq_n:""")
    a(f"""s_sub_u32 {CNT}, {CNT}, 1
    s_cbranch_scc0 L_pq
    L_pq_ok:""")
    if stamps: a(f"s_sub_u32 s98, {spin}, {CNT}"); stamp(5, "s98")
    for kq in range(4):
        for x in range(2):
            for d in range(2):
                for h in range(2):
                    acc = 132 + x*4 + d*2 + h
                    a(f"v_dot2_f32_bf16 v{acc}, v{100 + (kq*2+x)*4 + d}, s{58+h}, " + ("0" if kq == 0 else f"v{acc}"))
    for i in range(4): a(f"v_cvt_pk_bf16_f32 v{132+i}, v{132+2*i}, v{133+2*i}")
    a("""ds_write_b64 v10, v[132:133]
    ds_write_b64 v10, v[134:135] offset:512""")
    for i in range(8): a(f"v_cmpx_eq_u32 vcc, s63, v{103+4*i}")
    a(f"""s_cmp_eq_u64 exec, -1
    s_mov_b64 exec, -1
    s_cselect_b32 {LOC}, 1, 0""")
    if qlocal: a(f"s_cbranch_scc1 L_qloc\n{far}\nL_qloc:")
    a(f"""v_mov_b32 v26, {TAG}
    v_mov_b32 v27, {LOC}
    ds_write_b64 v21, v[26:27] offset:{TAGL-FL}""")
    setflag(4, 1)
    a(f"s_cmp_lt_u32 {J}, 4\ns_cbranch_scc1 L_hash")
    hjob("L_noh")
    a("s_branch L_hash\nL_noh:")
    setflag(12, 1)
    a("L_hash:")
    stamp(4)
    a(f"""s_cmp_lt_u32 {J}, 2
    s_cbranch_scc0 L_fin""")
    srd(44, 22, None, 1024); srd(48, 4, None, 4096)
    a(f"""s_lshl_b32 s57, {HKV}, 1
    s_add_u32 s57, s57, {J}
    s_lshl_b32 s58, {B}, 4
    s_add_u32 s58, s58, s57
    s_lshl_b32 s65, s58, 6
    s_lshl_b32 s57, s57, 6
    s_mov_b32 s74, 0x3f80
    s_mov_b32 s75, 0x3f800000
    buffer_load_ushort v28, v1, s[44:47], s57 offen
    buffer_load_ushort v4, v1, s[48:51], s65 offen
    s_lshl_b32 s64, s58, 12
    s_lshr_b32 s60, s64, 1
    s_add_u32 s60, s60, {MBUF}""")
    if not abl & 16:
        ldswait(0, t3, sleep=16)
        a(f"s_mov_b32 {CNT}, {spin}\nL_pm:")
        for i in range(2): a(f"buffer_load_dwordx4 v[{96+4*i}:{99+4*i}], v29, s[40:43], s60 offen offset:{i*1024} sc1")
        a("s_waitcnt vmcnt(0)")
        check([97 + 2*i for i in range(4)])
        a(f"""s_cbranch_scc1 L_pm_ok
        s_sleep {slp}
        s_sub_u32 {CNT}, {CNT}, 1
        s_cbranch_scc0 L_pm
        L_pm_ok:
""")
        for i in range(2):
            for d in range(2):
                for h in range(2): a(f"v_dot2_f32_bf16 v{112+2*d+h}, v{96+4*i+2*d}, s{74+h}, " + ("0" if i == 0 else f"v{112+2*d+h}"))
        a("s_nop 1\ns_call_b64 s[62:63], L_pg_ok")
    a(f"""s_waitcnt vmcnt(0)
    v_lshlrev_b32 v28, 16, v28
    v_lshlrev_b32 v4, 16, v4
    v_add_f32 v28, v28, v112
    v_mul_f32 v10, {hx(f2u(-LOG2E))}, v28
    v_exp_f32 v10, v10
    s_add_u32 s60, s64, {SBUF}
    v_add_f32 v10, 1.0, v10
    v_rcp_f32 v10, v10
    v_mov_b32 v25, {TAG}
    v_mul_f32 v28, v28, v10""")
    srd(44, 24, None, 4096)
    if prew & 2:
        for i in range(4): a(f"buffer_load_dwordx4 v[{96+4*i}:{99+4*i}], v29, s[40:43], s60 offen offset:{i*1024} sc1")
        a("s_waitcnt vmcnt(0)")
    stamp(6)
    if lastbar: a("s_barrier")
    a("s_barrier")
    if abl & 32: a("s_branch L_fin")
    a("""s_call_b64 s[62:63], L_gather
    v_fma_f32 v28, v28, v112, v4
    v_cvt_pk_bf16_f32 v28, v28, v28
    s_mov_b32 exec_lo, 0x00ff00ff
    s_mov_b32 exec_hi, 0x00ff00ff
    buffer_store_short v28, v1, s[44:47], s65 offen""")
    stamp(11)
    a("""s_cmp_eq_u32 s2, 0
    s_cbranch_scc0 L_fin
    v_mov_b32 v10, 0
    s_mov_b64 exec, 1
    buffer_store_dword v25, v10, s[40:43], 0 offen sc1
    L_fin:""")
    flush_stamps()
    a("L_end:\ns_endpgm")
    a("L_A1:")
    if abl & 1024:
        ldswait(4, 1, sleep=8); setflag(12, 1); a("s_branch L_fin")
    hjob("L_fin")
    ldswait(4, 1, sleep=8)
    gettag()
    a(f"s_mov_b32 s59, {pw1+2}\ns_branch L_qh")
    a("L_A2:")
    if tch:
        a(f"""v_mov_b32 v11, 0
        s_mov_b64 exec, 1
        s_lshl_b32 s61, {HEAD}, 21""")
        srd(32, 8, "s61", 1 << 21)
        a("buffer_load_dword v40, v11, s[32:35], 0 offen nt")
        if tch & 2:
            for lo, size in ((16, 512*3584), (20, 1792*1024), (12, 4096*1024)):
                srd(32, lo, None, size)
                a(f"s_lshl_b32 s61, {HKV}, 19" if lo == 12 else "s_mov_b32 s61, 0")
                a(f"buffer_load_dword v{40+lo}, v11, s[32:35], s61 offen nt")
        a("s_mov_b64 exec, -1")
    if gref:
        a(f"""s_cmp_lt_u32 s2, 8
        s_cbranch_scc0 L_noref
        s_atomic_umax s76, s[26:27], 0
        L_noref:""")
        ldswait(0, gref, sleep=8)
        a("""s_load_dword s80, s[26:27], 0
        s_waitcnt lgkmcnt(0)
        s_sub_u32 s81, s80, s76
        s_cmp_lt_u32 s81, 500
        s_cselect_b32 s80, s80, s76""")
        setflag(40, "s80")
    a(f"s_cmp_lt_u32 {J}, 4\ns_cbranch_scc0 L_fin")
    if abl & 16:
        ldswait(4, 1, sleep=8); setflag(12, 1); a("s_branch L_fin")
    srd(44, 18, None, 3584)
    a(f"""s_lshl_b32 s66, {B}, 2
    s_add_u32 s66, s66, {J}
    s_mul_i32 s57, s66, 224
    buffer_load_dwordx2 v[24:25], v30, s[44:47], s57 offen
    buffer_load_dwordx2 v[26:27], v30, s[44:47], s57 offen offset:128
    v_mov_b32 v11, 7168
    v_lshlrev_b32 v10, 4, v3
    v_mad_u32_u24 v10, v2, v11, v10
    v_min_u32 v16, 11, v3
    v_lshlrev_b32 v16, 4, v16
    v_mad_u32_u24 v11, v2, v11, v16
    s_lshl_b32 s57, s57, 1
    s_add_u32 s57, s57, {HBUF}
    s_add_u32 s58, s57, 28672
    s_add_u32 s59, s58, 28672
    s_add_u32 s60, s59, 28672""")
    tr_addr(str(QAREA))
    ldswait(4, 1, sleep=8)
    gettag()
    ldswait(0, pw1 + 2, sleep=8)
    n = 0
    for s in range(4):
        for t in range(4):
            if n >= 14: a("s_waitcnt lgkmcnt(12)")
            tr(s, t); n += 2
    a(f"v_lshlrev_b32 v28, 3, v2\nv_add_u32 v28, {STATL+4}, v28\nds_read_b32 v28, v28\ns_waitcnt lgkmcnt(0)")
    setflag(12, 1)
    ldswait(0, t2, sleep=16)
    a(f"s_mov_b32 {CNT}, {spin}\nL_ph:")
    for x in range(2):
        for i in range(4): a(f"buffer_load_dwordx4 v[{32+16*x+4*i}:{35+16*x+4*i}], v{10+x}, s[40:43], s{57+i} offen offset:{256*x} sc1")
    a("s_waitcnt vmcnt(0)")
    check([34 + 4*i for i in range(8)])
    a(f"""s_cbranch_scc1 L_ph_ok
    s_sleep {slp}
    s_sub_u32 {CNT}, {CNT}, 1
    s_cbranch_scc0 L_ph
    L_ph_ok:
    s_mov_b32 s58, 0x3f80
    s_mov_b32 s59, 0x3f800000""")
    for x in range(2):
        for d in range(2):
            for h in range(2): a(f"v_dot2_f32_bf16 v{72+x*4+d*2+h}, v{24+2*x+d}, s{58+h}, 0")
    for kq in range(4):
        for x in range(2):
            for d in range(2):
                for h in range(2): a(f"v_dot2_f32_bf16 v{64+x*4+d*2+h}, v{32+16*x+4*kq+d}, s{58+h}, " + ("0" if kq == 0 else f"v{64+x*4+d*2+h}"))
    for i in range(8): a(f"v_fma_f32 v{64+i}, v{64+i}, v28, v{72+i}")
    k1 = -2 * LOG2E * 0.7978845608028654
    a(f"s_mov_b32 s58, {hx(f2u(k1*0.044715))}\nv_mov_b32 v28, {hx(f2u(k1))}")
    for i in range(8): a(f"v_mul_f32 v{72+i}, v{64+i}, v{64+i}")
    for i in range(8): a(f"v_fma_f32 v{72+i}, v{72+i}, s58, v28")
    for i in range(8): a(f"v_mul_f32 v{72+i}, v{72+i}, v{64+i}")
    for i in range(8): a(f"v_exp_f32 v{72+i}, v{72+i}")
    for i in range(8): a(f"v_add_f32 v{72+i}, 1.0, v{72+i}")
    for i in range(8): a(f"v_rcp_f32 v{72+i}, v{72+i}")
    for i in range(8): a(f"v_mul_f32 v{64+i}, v{64+i}, v{72+i}")
    for i in range(4): a(f"v_cvt_pk_bf16_f32 v{64+i}, v{64+2*i}, v{65+2*i}")
    a(f"""v_cmp_gt_u32 vcc, 12, v3
    v_lshl_add_u32 v10, v2, 8, v30
    v_add_u32 v10, {HIMG}, v10
    v_cndmask_b32 v66, 0, v66, vcc
    v_cndmask_b32 v67, 0, v67, vcc
    v_and_b32 v11, 3, v0
    v_lshlrev_b32 v11, 8, v11
    v_lshl_add_u32 v11, v2, 4, v11
    v_add_u32 v11, {HIMG}, v11
    ds_write_b64 v10, v[64:65]
    ds_write_b64 v10, v[66:67] offset:128""")
    for s in range(4): a(f"ds_read_b128 v[{32+4*s}:{35+4*s}], v11 offset:{64*s}")
    a(f"""s_lshl_b32 s57, {HKV}, 12
    s_lshl_b32 s58, s66, 7
    s_add_u32 s57, s57, s58
    s_add_u32 s57, s57, {MBUF}
    v_lshlrev_b32 v31, 2, v3
    v_and_b32 v16, 1, v2
    v_lshl_add_u32 v31, v16, 6, v31
    v_lshrrev_b32 v16, 1, v2
    v_lshl_add_u32 v31, v16, 11, v31
    s_waitcnt lgkmcnt(0)""")
    for s in range(4):
        for t in range(4):
            c = "0" if s == 0 else f"v[{160+4*t}:{163+4*t}]"
            r = 96 + (s*4+t)*4
            a(f"v_mfma_f32_16x16x32_bf16 v[{160+4*t}:{163+4*t}], v[{32+4*s}:{35+4*s}], v[{r}:{r+3}], {c}")
    for b in range(4): a(f"v_mov_b32 v{65+2*b}, {TAG}")
    for b in range(4): a(f"v_mov_b32 v{64+2*b}, v{160+b}")
    for t in range(1, 4):
        for b in range(4): a(f"v_mov_b32_dpp v{64+2*b}, v{160+4*t+b} quad_perm:[0,1,2,3] row_mask:{hex(1<<t)} bank_mask:0xf")
    for b in range(4): a(f"v_mov_b32_dpp v{72+b}, v{64+2*b} quad_perm:[1,0,3,2] row_mask:0xf bank_mask:0xf")
    for b in range(4): a(f"v_cvt_pk_bf16_f32 v{64+2*b}, v{64+2*b}, v{72+b}")
    a("s_mov_b32 exec_lo, 0x55555555\ns_mov_b32 exec_hi, 0x55555555")
    def mstores(fl):
        for b in range(4):
            a(f"buffer_store_dwordx2 v[{64+2*b}:{65+2*b}], v31, s[40:43], s57 offen {fl}")
            if b < 3: a("s_add_u32 s57, s57, 32768")
    stamp(6)
    a(f"s_cmp_eq_u32 {LOC}, 1\ns_cbranch_scc0 L_mfar")
    mstores("")
    a("s_branch L_fin\nL_mfar:")
    mstores("sc1")
    a("s_branch L_fin")
    gl = lambda r: [f"buffer_load_dwordx4 v[{r+4*i}:{r+3+4*i}], v29, s[40:43], s60 offen offset:{i*1024} sc1" for i in range(4)]
    gt = lambda r: [r + 1 + 2*i for i in range(8)]
    def gsum(r):
        for i in range(4):
            for d in range(2):
                for h in range(2): a(f"v_dot2_f32_bf16 v{112+2*d+h}, v{r+4*i+2*d}, s{74+h}, " + ("0" if i == 0 else f"v{112+2*d+h}"))
    a(f"""L_gather:
    s_mov_b32 {CNT}, {spin}""")
    if pipe2:
        for l in gl(96): a(l)
        a(f"s_sleep {pipe2}")
        a("L_pg:")
        for l in gl(128): a(l)
        a("s_waitcnt vmcnt(4)")
        check(gt(96))
        a("s_cbranch_scc1 L_pg_okA")
        for l in gl(96): a(l)
        a("s_waitcnt vmcnt(4)")
        check(gt(128))
        a("s_cbranch_scc1 L_pg_okB")
    else:
        a("L_pg:")
        for l in gl(96): a(l)
        a("s_waitcnt vmcnt(0)")
        check(gt(96))
        a("s_cbranch_scc1 L_pg_okA")
    a(f"""s_sub_u32 {CNT}, {CNT}, 1
    s_cbranch_scc0 L_pg""")
    if pipe2:
        a("L_pg_okB:"); gsum(128); a("s_nop 1\ns_branch L_pg_ok")
    a("L_pg_okA:"); gsum(96)
    a("s_nop 0\nL_pg_ok:")
    for r in range(112, 116): a(f"v_add_f32_dpp v{r}, v{r}, v{r} row_ror:8 row_mask:0xf bank_mask:0xf")
    a("""v_permlane16_swap_b32 v112, v113
    v_permlane16_swap_b32 v114, v115
    v_add_f32 v112, v112, v113
    v_add_f32 v114, v114, v115
    v_permlane32_swap_b32 v112, v114
    v_add_f32 v112, v112, v114
    s_setpc_b64 s[62:63]""")

    TH, SC, NC, LC, SW = "s59", "s61", "s60", "s56", "s47"
    a(f"""L_C:
    s_sub_u32 {SW}, s3, 4""")
    trbase()
    a(f"""v_add_u32 v12, {QAREA}, v7
    v_xor_b32 v13, 32, v12
    v_xor_b32 v14, 64, v12
    v_xor_b32 v15, 0x60, v12
    v_and_b32 v16, 7, v3
    v_lshlrev_b32 v16, 1, v16
    v_lshrrev_b32 v17, 3, v3
    v_or_b32 v16, v16, v17
    v_lshlrev_b32 v17, 2, v2
    v_xor_b32 v16, v16, v17
    v_lshlrev_b32 v16, 4, v16
    v_lshl_add_u32 v16, v3, 8, v16
    s_lshl_b32 s57, {SW}, 13
    v_add_u32 v8, s57, v16
    v_xor_b32 v9, 16, v8
    v_xor_b32 v10, 32, v8
    v_xor_b32 v11, 48, v8
    v_lshrrev_b32 v16, 2, v0
    v_and_b32 v17, 7, v16
    v_lshlrev_b32 v17, 1, v17
    v_lshrrev_b32 v18, 3, v16
    v_or_b32 v17, v17, v18
    v_bfe_u32 v18, v0, 1, 1
    v_xor_b32 v17, v17, v18
    v_lshlrev_b32 v17, 4, v17
    v_lshl_add_u32 v17, v16, 8, v17
    v_and_b32 v18, 1, v0
    v_lshl_add_u32 v17, v18, 3, v17
    s_lshl_b32 s57, {SW}, 6
    v_xor_b32 v4, s57, v17
    v_xor_b32 v5, 32, v4
    v_and_b32 v16, 3, v3
    v_lshlrev_b32 v17, 6, v2
    v_lshl_add_u32 v23, v16, 8, v17
    v_add_u32 v23, {QIMG}, v23
    v_lshl_add_u32 v6, v16, 4, v17
    v_add_u32 v6, {PBUF}, v6
    v_lshrrev_b32 v18, 2, v3
    v_lshl_add_u32 v1, v18, 10, v6
    s_lshl_b32 s57, {SW}, 8
    v_add_u32 v1, s57, v1
    v_lshlrev_b32 v19, 3, v16
    v_add_u32 v19, {MLX}, v19
    s_lshl_b32 s57, {SW}, 5
    v_add_u32 v22, s57, v19
    s_lshl_b32 s57, {SW}, 2
    v_add_u32 v7, s57, v21
    v_lshl_add_u32 v24, v18, 2, v2
    v_lshlrev_b32 v24, 7, v24
    v_lshl_add_u32 v44, v16, 12, v24
    v_lshlrev_b32 v45, 2, v3
    v_and_b32 v17, 1, v2
    v_lshl_add_u32 v45, v17, 6, v45
    v_lshrrev_b32 v17, 1, v2
    v_lshl_add_u32 v45, v17, 12, v45
    v_lshlrev_b32 v46, 4, v0""")
    for r in range(72, 80, 2): a(f"v_mov_b64 v[{r}:{r+1}], 0")
    a(f"""s_lshl_b32 s66, {HEAD}, 14
    s_lshl_b32 s57, {SW}, 10
    s_add_u32 s66, s66, s57
    s_lshl_b32 s57, {J}, 4
    s_add_u32 s66, s66, s57
    s_add_u32 s66, s66, {OBUF}
    s_lshl_b32 s67, {SW}, 3
    s_add_u32 s67, s67, {HKV}
    s_lshl_b32 s67, s67, 2
    s_add_u32 s67, s67, {B}
    s_lshl_b32 s67, s67, 12
    s_add_u32 s67, s67, {OBUF}
    s_lshl_b32 s68, {SW}, 16
    s_lshl_b32 s57, {J}, 13
    s_add_u32 s68, s68, s57
    s_lshl_b32 s57, {HEAD}, 7
    s_add_u32 s68, s68, s57
    s_add_u32 s68, s68, {SBUF}
    s_lshl_b32 s57, {B}, 3
    s_add_u32 s57, s57, {STATL}
    v_mov_b32 v24, s57
    s_add_u32 {TH}, {SW}, 2
    s_mov_b32 {NC}, 0
    s_mov_b32 s74, 0x000f000f
    s_mov_b32 s75, 0x000f000f
    s_mov_b32 {CNT}, {spin}
    s_waitcnt lgkmcnt(0)""")
    srd(40, 28, None, WS_SIZE)
    if not abl & 1: ldswait(4, 1, cache=LC, sleep=2)
    stamp(2)
    QF = 120
    a("ds_read_b32 v24, v24")
    for s in range(4): a(f"ds_read_b128 v[{QF+4*s}:{QF+3+4*s}], v23 offset:{16*s}")
    a(f"""ds_read_b64 v[26:27], v21 offset:{TAGL-FL}
    s_mov_b32 {LC}, 0
    s_waitcnt lgkmcnt(0)
    v_readfirstlane_b32 {SC}, v24
    v_readfirstlane_b32 {TAG}, v26
    v_readfirstlane_b32 {LOC}, v27
    L_kloop:""")
    ldswait(0, TH, cache=LC, cached=True)
    for s in range(4):
        for t in range(2): a(f"ds_read_b128 v[{88+(s*2+t)*4}:{91+(s*2+t)*4}], v{8+s} offset:{t*4096}")
    a(f"""s_add_u32 {TH}, {TH}, 4
    s_sub_u32 s57, {TH}, 2
    s_min_u32 s57, s57, 32
    v_mov_b32 v20, s57""")
    for s in range(4):
        a(f"s_waitcnt lgkmcnt({6-2*s})")
        if s == 3: a("ds_write_b32 v7, v20 offset:16")
        for t in range(2):
            c = "0" if s == 0 else f"v[{32+4*t}:{35+4*t}]"
            a(f"v_mfma_f32_16x16x32_bf16 v[{32+4*t}:{35+4*t}], v[{88+(s*2+t)*4}:{91+(s*2+t)*4}], v[{QF+4*s}:{QF+3+4*s}], {c}")
    for s in range(4): a(f"v_add_u32 v{8+s}, 0x8000, v{8+s}")
    for s in range(4): a(f"v_and_b32 v{8+s}, 0x1ffff, v{8+s}")
    a("s_mov_b64 exec, s[74:75]")
    for r in range(0, 8, 2): a(f"v_mov_b64 v[{56+r}:{57+r}], v[{32+r}:{33+r}]")
    a(f"""s_mov_b64 exec, -1
    s_lshl_b64 s[74:75], s[74:75], 4
    s_add_u32 {NC}, {NC}, 1
    s_and_b32 s57, {NC}, 3
    s_cbranch_scc1 L_kloop
    s_mov_b32 s74, 0x000f000f
    s_mov_b32 s75, 0x000f000f
    s_cmp_eq_u32 {NC}, 8
    s_cbranch_scc1 L_soft""")
    for r in range(0, 8, 2): a(f"v_mov_b64 v[{64+r}:{65+r}], v[{56+r}:{57+r}]")
    a("s_branch L_kloop\nL_soft:")
    stamp(16)
    dp = "row_mask:0xf bank_mask:0xf"
    def allred(op, r, t):
        a(f"""{op}_dpp v{r}, v{r}, v{r} row_ror:4 {dp}
        {op}_dpp v{r}, v{r}, v{r} row_ror:8 {dp}
        v_mov_b32 v{t}, v{r}
        v_permlane32_swap_b32 v{r}, v{t}
        {op} v{r}, v{r}, v{t}
        v_mov_b32 v{t}, v{r}
        v_permlane16_swap_b32 v{r}, v{t}
        {op} v{r}, v{r}, v{t}""")
    a("v_max3_f32 v16, v56, v57, v58")
    for r in range(59, 71, 2): a(f"v_max3_f32 v16, v16, v{r}, v{r+1}")
    a("v_max_f32 v16, v16, v71")
    allred("v_max_f32", 16, 24)
    a(f"v_mul_f32 v16, {SC}, v16")
    for r in range(56, 72): a(f"v_fma_f32 v{r}, v{r}, {SC}, -v16")
    for r in range(56, 72): a(f"v_exp_f32 v{r}, v{r}")
    a("v_add_f32 v17, v56, v57\nv_add_f32 v18, v58, v59")
    for r in range(60, 72, 2): a(f"v_add_f32 v17, v17, v{r}\nv_add_f32 v18, v18, v{r+1}")
    a("v_add_f32 v17, v17, v18")
    allred("v_add_f32", 17, 24)
    a("""ds_write_b64 v22, v[16:17]
    v_mov_b32 v20, 1
    s_mov_b64 exec, 1
    ds_add_u32 v21, v20 offset:32
    s_mov_b64 exec, -1""")
    ldswait(32, 4, cache="s57", sleep=1)
    for w in range(4): a(f"ds_read_b64 v[{32+2*w}:{33+2*w}], v19 offset:{32*w}")
    a("""s_waitcnt lgkmcnt(0)
    v_max3_f32 v42, v32, v34, v36
    v_max_f32 v42, v42, v38""")
    for w in range(4): a(f"v_sub_f32 v{32+2*w}, v{32+2*w}, v42")
    a("v_sub_f32 v16, v16, v42")
    for w in range(4): a(f"v_exp_f32 v{32+2*w}, v{32+2*w}")
    a(f"""v_exp_f32 v16, v16
    v_mul_f32 v17, v32, v33
    v_fmac_f32 v17, v34, v35
    v_fmac_f32 v17, v36, v37
    v_fmac_f32 v17, v38, v39
    v_rcp_f32 v18, v17
    v_log_f32 v17, v17
    v_mov_b32 v43, {TAG}
    v_mul_f32 v16, v16, v18
    v_add_f32 v42, v42, v17""")
    for r in range(56, 72): a(f"v_mul_f32 v{r}, v16, v{r}")
    for r in range(0, 8): a(f"v_cvt_pk_bf16_f32 v{56+r}, v{56+2*r}, v{57+2*r}")
    a(f"""ds_write_b128 v1, v[60:63]
    ds_write_b128 v1, v[56:59] offset:4096
    v_mov_b32 v20, 1
    s_mov_b64 exec, 1
    ds_add_u32 v21, v20 offset:36
    s_mov_b64 exec, -1
    v_mov_b32 v53, {TAG}
    s_mov_b32 {TH}, 34""")
    ldswait(36, 4, cache="s57", sleep=1)
    stamp(17)
    def vtile(last):
        if last and lastbar: a("ds_read_b128 v[28:31], v6\ns_barrier")
        else:
            ldswait(0, TH, cache=LC, cached=True, sleep=0 if last else csl)
            a("ds_read_b128 v[28:31], v6")
        for t in range(2):
            for u in range(2): a(f"ds_read_b64_tr_b16 v[{80+4*t+2*u}:{81+4*t+2*u}], v{4+t} offset:{u*4096}")
        if not last:
            a(f"""s_sub_u32 s57, {TH}, 1
            v_mov_b32 v20, s57
            s_add_u32 {TH}, {TH}, 1
            v_add_u32 v6, 0x100, v6""")
        for t in range(2):
            a(f"s_waitcnt lgkmcnt({2-2*t})")
            a(f"v_mfma_f32_16x16x32_bf16 v[{72+4*t}:{75+4*t}], v[{80+4*t}:{83+4*t}], v[28:31], v[{72+4*t}:{75+4*t}]")
    a("L_vloop:")
    vtile(False)
    a(f"""ds_write_b32 v7, v20 offset:16
    v_add_u32 v4, 0x2000, v4
    v_add_u32 v5, 0x2000, v5
    v_and_b32 v4, 0x1ffff, v4
    v_and_b32 v5, 0x1ffff, v5
    s_cmp_lt_u32 {TH}, {pwo + 4}
    s_cbranch_scc1 L_vloop
    s_cmp_eq_u32 {TH}, {pwo + 4}
    s_cbranch_scc0 L_nowo""")
    n = 0
    for s in range(4):
        for t in range(4):
            if n >= 12: a("s_waitcnt lgkmcnt(12)")
            tr(s, t, 88); n += 2
    a(f"""s_waitcnt lgkmcnt(0)
    L_nowo:""")
    if prew & 1:
        a(f"s_cmp_eq_u32 {TH}, 58\ns_cbranch_scc0 L_nopw")
        for i in range(4): a(f"buffer_load_dwordx4 v[{56+4*i}:{59+4*i}], v46, s[40:43], s67 offen offset:{i*1024} sc1")
        a("L_nopw:")
    a(f"""
    s_cmp_lt_u32 {TH}, 65
    s_cbranch_scc1 L_vloop""")
    vtile(True)
    stamp(3)
    if abl & 32: end()
    a(f"""s_mov_b32 exec_lo, 0x00ff00ff
    s_mov_b32 exec_hi, 0x00ff00ff
    v_cvt_pk_bf16_f32 v40, v72, v73
    v_cvt_pk_bf16_f32 v41, v74, v75
    v_cvt_pk_bf16_f32 v32, v76, v77
    v_cvt_pk_bf16_f32 v33, v78, v79
    s_cmp_eq_u32 {LOC}, 1
    v_mov_b32_dpp v40, v32 quad_perm:[0,1,2,3] row_mask:0xf bank_mask:0x2
    v_mov_b32_dpp v41, v33 quad_perm:[0,1,2,3] row_mask:0xf bank_mask:0x2
    s_cbranch_scc0 L_ofar
    buffer_store_dwordx4 v[40:43], v44, s[40:43], s66 offen
    L_onear:
    s_mov_b64 exec, -1""")
    stamp(8)
    if light:
        a(f"""L_pl:
        buffer_load_dwordx4 v[68:71], v46, s[40:43], s67 offen offset:3072 sc1
        s_waitcnt vmcnt(0)
        v_cmp_ne_u32 vcc, {TAG}, v71
        s_cmp_eq_u64 vcc, 0
        s_cbranch_scc1 L_po
        s_sub_u32 {CNT}, {CNT}, 1
        s_cbranch_scc0 L_pl""")
    a("L_po:")
    for i in range(4): a(f"buffer_load_dwordx4 v[{56+4*i}:{59+4*i}], v46, s[40:43], s67 offen offset:{i*1024} sc1")
    a("s_waitcnt vmcnt(0)")
    check([59 + 4*i for i in range(4)])
    a(f"""s_cbranch_scc1 L_po_ok
    s_sub_u32 {CNT}, {CNT}, 1
    s_cbranch_scc0 L_po
    L_po_ok:""")
    stamp(9)
    if stamps: a(f"s_sub_u32 s98, {spin}, {CNT}"); stamp(12, "s98")
    a("v_mov_b32 v18, v58")
    for s in range(4):
        for d in range(2): a(f"v_mov_b32_dpp v{58+4*s+d}, v{56+4*s+d} row_shl:8 row_mask:0xf bank_mask:0xf bound_ctrl:1")
    def omf(s, t):
        c = "0" if s == 0 else f"v[{72+4*t}:{75+4*t}]"
        r = 88 + (s*4+t)*4
        return f"v_mfma_f32_16x16x32_bf16 v[{72+4*t}:{75+4*t}], v[{56+4*s}:{59+4*s}], v[{r}:{r+3}], {c}"
    P = ["quad_perm:[1,0,3,2]", "quad_perm:[2,3,0,1]", "row_half_mirror"]
    wv = [f"v_max_f32_dpp v19, v18, v18 {P[0]} {dp}", f"v_max_f32_dpp v19, v19, v19 {P[1]} {dp}", f"v_max_f32_dpp v19, v19, v19 {P[2]} {dp}",
          "v_sub_f32 v18, v18, v19", "v_exp_f32 v18, v18",
          f"v_add_f32_dpp v19, v18, v18 {P[0]} {dp}", f"v_add_f32_dpp v19, v19, v19 {P[1]} {dp}", f"v_add_f32_dpp v19, v19, v19 {P[2]} {dp}",
          "v_rcp_f32 v19, v19", "v_mul_f32 v18, v18, v19"]
    wv.append("\n".join(f"v_mov_b32_dpp v{32+i}, v18 row_newbcast:{i} row_mask:0x5 bank_mask:0xf" for i in range(4)))
    wv.append("\n".join(f"v_mov_b32_dpp v{32+i}, v18 row_newbcast:{4+i} row_mask:0xa bank_mask:0xf" for i in range(4)))
    T4 = [52, 36, 37, 38]
    def wsum(t): return f"v_mul_f32 v{T4[t]}, v32, v{72+4*t}\n" + "\n".join(f"v_fmac_f32 v{T4[t]}, v{32+i}, v{72+4*t+i}" for i in range(1, 4))
    order = [(s, t) for th in (0, 2) for s in range(4) for t in (th, th + 1)]
    for i, (s, t) in enumerate(order):
        a(omf(s, t))
        if i < len(wv): a(wv[i])
        if i == 13: a(wsum(0))
        if i == 14: a(wsum(1))
    a("v_permlane16_swap_b32 v52, v36")
    a(wsum(2)); a("v_add_f32 v52, v52, v36"); a(wsum(3))
    a("""v_permlane16_swap_b32 v37, v38
    v_add_f32 v37, v37, v38
    v_permlane32_swap_b32 v52, v37
    v_mov_b32_dpp v36, v52 quad_perm:[1,0,3,2] row_mask:0xf bank_mask:0xf
    s_mov_b32 exec_lo, 0x55555555
    s_mov_b32 exec_hi, 0x55555555
    v_cvt_pk_bf16_f32 v52, v52, v36
    buffer_store_dwordx2 v[52:53], v45, s[40:43], s68 offen sc1""")
    stamp(10)
    end()
    a("L_ofar:\nbuffer_store_dwordx4 v[40:43], v44, s[40:43], s66 offen sc1\ns_branch L_onear")
    errs = a.check_branches()
    assert not errs, "\n".join(errs)
    nv = 232 if (stamps or lite) else 184
    a.raw(f""".section .rodata,"a"
.p2align 6
.amdhsa_kernel {name}
  .amdhsa_next_free_vgpr {nv}
  .amdhsa_next_free_sgpr 102
  .amdhsa_accum_offset {nv}
  .amdhsa_group_segment_fixed_size 0
  .amdhsa_kernarg_size 104
  .amdhsa_user_sgpr_count 2
  .amdhsa_user_sgpr_kernarg_segment_ptr 1
  .amdhsa_system_sgpr_workgroup_id_x 1
.end_amdhsa_kernel""")
    return a.text()

if __name__ == "__main__":
    out = sys.argv[1]
    kw = eval("dict(%s)" % (sys.argv[2] if len(sys.argv) > 2 else ""))
    open(out, "w").write(gen(**kw))
```

```python
import re

def regs_of(op):
    op = op.strip()
    m = re.fullmatch(r'-?\|?(?:abs\()?([vsa])(\d+)\)?\|?', op)
    if m: return {(m.group(1), int(m.group(2)))}
    m = re.fullmatch(r'-?([vsa])\[(\d+):(\d+)\]', op)
    if m: return {(m.group(1), i) for i in range(int(m.group(2)), int(m.group(3)) + 1)}
    if op == 'vcc': return {('x', 'vcc')}
    if op == 'exec': return {('x', 'exec')}
    if op == 'm0': return {('x', 'm0')}
    return set()

TRANS = ('v_exp_', 'v_log_', 'v_rcp_', 'v_rsq_', 'v_sqrt_', 'v_sin_', 'v_cos_')

class Ins:
    def __init__(self, text):
        self.text = text
        t = text.split(';')[0].strip()
        parts = t.split(None, 1)
        self.mn = parts[0]
        rest = parts[1] if len(parts) > 1 else ''
        rest = re.sub(r':\[([^\]]*)\]', lambda m: ':[' + m.group(1).replace(',', '.') + ']', rest)
        rest = re.sub(r'hwreg\([^)]*\)', 'hwreg', rest)
        ops = [o.strip() for o in re.split(r',', rest)]
        mods = ''
        if ops:
            last = ops[-1].split()
            if last:
                ops[-1] = last[0]; mods = ' '.join(last[1:])
        self.ops = ops; self.mods = mods
        mn = self.mn
        R = [regs_of(o) for o in ops]
        self.w = set(); self.r = set()
        self.mfma = mn.startswith('v_mfma')
        self.valu = mn.startswith('v_') and not self.mfma
        self.trans = mn.startswith(TRANS)
        self.dpp = '_dpp' in mn or 'row_' in mods or 'quad_perm' in mods or 'row_' in ' '.join(ops)
        self.perm = mn.startswith('v_permlane')
        self.rdlane = mn.startswith('v_readlane') or mn.startswith('v_readfirstlane')
        self.wrlane = mn.startswith('v_writelane')
        self.vmem = mn.startswith('buffer_') or mn.startswith('global_')
        self.ds = mn.startswith('ds_')
        self.salu = mn.startswith('s_')
        self.lds_dma = self.vmem and (' lds' in (' ' + mods) or 'load_lds' in mn)
        self.store = self.vmem and ('store' in mn or 'atomic' in mn)
        self.states = 1
        self.dot = mn.startswith('v_dot')
        self.C = set(); self.AB = set(); self.sdata = set()
        if mn == 's_nop': self.states = int(ops[0], 0) + 1
        if self.mfma:
            self.w = R[0]; self.AB = R[1] | R[2]; self.C = R[3]; self.r = self.AB | self.C
        elif self.valu:
            if self.perm:
                self.w = R[0] | R[1]; self.r = R[0] | R[1]
            else:
                self.w = set(R[0])
                for x in R[1:]: self.r |= x
                if mn.startswith('v_cmpx'): self.w |= {('x', 'exec')}
                if mn.startswith(('v_fmac', 'v_dot2c', 'v_writelane')) or self.dpp: self.r |= R[0]
                if mn.startswith(('v_add_co', 'v_sub_co', 'v_addc_co')): self.w |= R[1]
        elif self.vmem:
            if self.store:
                for x in R: self.r |= x
                if 'x4' in mn or 'x3' in mn:
                    self.sdata = R[0] if mn.startswith('buffer_') else R[1]
            elif self.lds_dma:
                for x in R: self.r |= x
                self.r |= {('x', 'm0')}
            else:
                self.w = R[0]
                for x in R[1:]: self.r |= x
        elif self.ds:
            if mn.startswith(('ds_read', 'ds_bpermute', 'ds_permute', 'ds_swizzle')):
                self.w = R[0]
                for x in R[1:]: self.r |= x
            else:
                for x in R: self.r |= x
        elif self.salu:
            if mn.startswith(('s_cmp', 's_cbranch', 's_branch', 's_waitcnt', 's_nop', 's_barrier', 's_endpgm', 's_setprio', 's_sleep', 's_setpc')):
                for x in R: self.r |= x
            else:
                self.w = set(R[0]) if R else set()
                for x in R[1:]: self.r |= x
                if 'saveexec' in mn: self.w |= {('x', 'exec')}; self.r |= {('x', 'exec')}

def isv(s): return {x for x in s if x[0] in 'va'}
def iss(s): return {x for x in s if x[0] == 's' or x == ('x', 'vcc')}

def need(p, c):
    n = 0
    if p.valu:
        wv = isv(p.w); wsg = iss(p.w)
        if c.mfma and wv & c.r: n = max(n, 2)
        if c.valu and (c.dpp or c.perm) and wv & c.r: n = max(n, 2)
        if p.trans and c.valu and wv & (c.r | c.w): n = max(n, 1)
        if c.rdlane and wv & c.r: n = max(n, 1)
        if wsg:
            if c.valu and wsg & c.r: n = max(n, 4 if (c.rdlane or c.wrlane) else 2)
            if c.vmem and wsg & c.r: n = max(n, 5)
            if c.salu and wsg & c.r: n = max(n, 1)
        if ('x', 'exec') in p.w:
            if c.mfma or c.perm or c.rdlane or c.wrlane: n = max(n, 4)
            if c.dpp: n = max(n, 5)
            if c.salu and ('x', 'exec') in c.r: n = max(n, 2)
            if c.valu and ('x', 'exec') in c.r: n = max(n, 2)
    if p.dot and isv(p.w) & (c.r | c.w):
        srcc_only = c.mn == p.mn and not (isv(p.w) & (regs_of(c.ops[1]) | regs_of(c.ops[2])))
        if not srcc_only: n = max(n, 3)
    if p.mfma:
        if c.mfma:
            if p.w & c.AB: n = max(n, 8)
            if p.w & c.C and p.w != c.C: n = max(n, 6)
            if p.w & c.w and not (p.w == c.C): n = max(n, 6)
        elif (c.valu or c.vmem or c.ds) and p.w & (c.r | c.w): n = max(n, 8)
        if c.valu and p.C & c.w: n = max(n, 3)
    if p.salu and ('x', 'm0') in p.w and (c.lds_dma or (c.valu and ('x', 'm0') in c.r)): n = max(n, 1)
    if p.sdata and isv(c.w) & p.sdata: n = max(n, 2)
    return n

def isize(x):
    mn = x.mn
    if x.vmem or x.ds or x.mfma or x.dpp or mn.startswith(('s_load', 's_memrealtime', 's_memtime')): return 8
    if mn.startswith(('v_fma_', 'v_mad_', 'v_lshl_add', 'v_max3', 'v_bfe', 'v_cvt_pk', 'v_dot2', 'v_writelane', 'v_readlane', 'v_mul_lo', 'v_add3', 'v_pk_')): return 8
    for o in x.ops:
        try:
            v = int(o, 0)
            if not -16 <= v <= 64 and not mn.startswith(('s_movk', 's_waitcnt', 's_nop', 's_sleep', 's_setprio')): return 8
        except ValueError: pass
    return 4

class Asm:
    def __init__(self):
        self.out = []
        self.chains = {}
    def pad(self, chain, step, force=False):
        if not step: return
        d = 0
        for k, x in reversed(self.out):
            if k == 'l' and x.startswith('Lpad_'): break
            if k == 'i': d += isize(x)
        if d < step and not force: return
        n = self.chains.get(chain, 0); self.chains[chain] = n + 1
        self.label(f'Lpad_{chain}_{n}')
        self.out.append(('i', Ins(f's_cbranch_execz Lpad_{chain}_{n+1}')))
    def warm(self, chain):
        self(f's_mov_b64 exec, 0\ns_branch Lpad_{chain}_0\nLret_{chain}:\ns_mov_b64 exec, -1')
    def close_chains(self):
        for c, n in self.chains.items():
            for i, (k, x) in enumerate(self.out):
                if k == 'i' and x.text == f's_cbranch_execz Lpad_{c}_{n}': self.out[i] = ('i', Ins(f's_cbranch_execz Lret_{c}'))
    def raw(self, text): self.out.append(('t', text))
    def label(self, name): self.out.append(('l', name))
    def _recent(self):
        d = 0
        for k, x in reversed(self.out):
            if k == 'i':
                yield x, d
                d += x.states
                if d > 12: return
    def __call__(self, text):
        for line in text.split('\n'):
            line = line.strip()
            if not line or line.startswith(';'): continue
            if line.endswith(':'):
                self.label(line[:-1]); continue
            c = Ins(line)
            pad = 0
            for p, d in self._recent():
                if p.mn in ('s_branch', 's_endpgm', 's_setpc_b64'): break
                pad = max(pad, need(p, c) - d)
            if pad > 0: self.out.append(('i', Ins(f's_nop {pad-1}')))
            self.out.append(('i', c))
    def check_branches(self):
        labels = {x: i for i, (k, x) in enumerate(self.out) if k == 'l'}
        errs = []
        for i, (k, x) in enumerate(self.out):
            if k == 'i' and x.mn.startswith(('s_cbranch', 's_branch', 's_call')):
                tgt = x.ops[-1]
                if tgt not in labels or tgt.startswith(('Lpad_', 'Lret_')): continue
                before = []; d = 0
                for kk, y in reversed(self.out[:i + 1]):
                    if kk == 'i':
                        before.append((y, d)); d += y.states
                        if d > 12: break
                d2 = 0
                for kk, c in self.out[labels[tgt]:]:
                    if kk != 'i': continue
                    for p, d in before:
                        if need(p, c) > d + d2: errs.append(f'hazard across branch to {tgt}: {p.text} -> {c.text}')
                    d2 += c.states
                    if d2 > 12 or c.mn in ('s_branch', 's_endpgm', 's_setpc_b64'): break
        return errs
    def text(self):
        L = []
        for k, x in self.out:
            if k == 'i': L.append('    ' + x.text)
            elif k == 'l': L.append(x + ':')
            else: L.append(x)
        return '\n'.join(L) + '\n'


def full_check(asm):
    ins = []; labels = {}
    for k, x in asm.out:
        if k == 'l': labels[x] = len(ins)
        elif k == 'i': ins.append(x)
    rets = [i + 1 for i, x in enumerate(ins) if x.mn.startswith('s_call')]
    def succ(i):
        x = ins[i]
        if x.mn == 's_endpgm': return []
        if x.mn == 's_setpc_b64': return rets
        if x.mn in ('s_branch',) or x.mn.startswith('s_call'): return [labels[x.ops[-1]]]
        if x.mn.startswith('s_cbranch'):
            t = x.ops[-1]
            if t.startswith(('Lpad_', 'Lret_')): return [i + 1]
            return [i + 1, labels[t]]
        return [i + 1]
    errs = set()
    for i, p in enumerate(ins):
        if not (p.valu or p.mfma or p.sdata or (p.salu and ('x', 'm0') in p.w)): continue
        stack = [(j, 0) for j in succ(i)]; seen = set()
        while stack:
            j, d = stack.pop()
            if (j, d) in seen or j >= len(ins) or d > 12: continue
            seen.add((j, d))
            c = ins[j]
            if need(p, c) > d: errs.add(f'{p.text}  ->  {c.text}  (distance {d})')
            for n in succ(j): stack.append((n, d + c.states))
    return sorted(errs)
```

```python
import struct, sys
sys.path.insert(0, "work")
from asmdsl import Asm, full_check

NAME = "recurrent_scan__gqa_block_cached__mixer_channel_mlp__decode_kernel"
def f2u(x): return struct.unpack("<I", struct.pack("<f", x))[0]
def hx(x): return "0x%08x" % (x & 0xffffffff)

QBUF, HBUF, MBUF, OBUF, SBUF, STAMPS = 0x10000, 0x50000, 0x80000, 0x100000, 0x180000, 0x200000
WS_SIZE = 0x400000
QAREA, HAREA = 131072, 147456
FL = HAREA
TAGL, STATL, MLX, QIMG, HIMG, XIMG, PBUF = HAREA + 48, HAREA + 64, HAREA + 128, HAREA + 1024, HAREA + 2048, HAREA + 4096, HAREA + 8192
TB = 16384
OSTR = 528
MLOFF = 2304
TAGC = 0x9E3779B9
SPIN = 20479
LOG2E = 1.4426950408889634
M4 = "s_mov_b32 exec_lo, 0x000f000f\ns_mov_b32 exec_hi, 0x000f000f"
J, HEAD, HKV, B = "s52", "s53", "s54", "s55"
TAG, CNT, LOC = "s30", "s31", "s72"

HEADER = open("recurrent_scan__gqa_block_cached__mixer_channel_mlp__decode.s.ref").read().split("; Override launch")[0]

def gen(name=NAME, stamps=False, lite=False, kvf="nt", wf="nt", spin=SPIN, N=21, rot=1, slp=8, qdelay=4, mapping="mod",
        qlocal=3, s2delay=20, s3delay=1, pw1=8, pw2=12, pwo=40, csl=1, abl=0, lprio=3, aprio=2, pipe2=0, gran=1, burst=True, cpre=True, ilw=True, touch=False, kmaj=False, t3=48, mpipe=False, tq=7, t2=34, bar2=1, irot=1, Nhi=40, T=266, T0=1000, nb=4, lv=None, prew=0, light=False, lastbar=True, tch=0, gref=0, wolast=True, latebar=True, warm=1, padstep=192, compact=True, nset=2, cbar=False, fdelay=0, fback=0, odelay=0):
    a = Asm()
    def pad(c, force=False):
        if warm & {'L': 1, 'C': 2, 'F': 4, 'Q': 8}[c]: a.pad(c, padstep, force)
    if lv is None: lv = [(None, N)] + ([(0, Nhi)] if Nhi not in (None, N) else [])
    adapt = len(lv) > 1
    if wolast: pwo = 64
    NMAX = max(n for _, n in lv)
    def stamp(k, val=None):
        if stamps or (lite and k == 0):
            if val is None:
                a(f"s_memrealtime s[98:99]\ns_waitcnt lgkmcnt(0)"); val = "s98"
            a(f"v_writelane_b32 v230, {val}, {k}")
    def flush_stamps():
        if not (stamps or lite): return
        stamp(0, "s96")
        a("s_mov_b64 exec, -1")
        a("s_getreg_b32 s64, hwreg(HW_REG_XCC_ID, 0, 4)\nv_writelane_b32 v230, s64, 15")
        if stamps: a("s_memtime s[98:99]\ns_waitcnt lgkmcnt(0)\ns_sub_u32 s98, s98, s100\nv_writelane_b32 v230, s98, 14")
        a("s_memrealtime s[98:99]\ns_waitcnt lgkmcnt(0)\nv_writelane_b32 v230, s98, 13")
        a(f"""s_lshl_b32 s64, s2, 3
        s_add_u32 s64, s64, s3
        s_lshl_b32 s64, s64, 7
        s_add_u32 s64, s64, {STAMPS}
        s_mov_b32 s48, s28
        s_mov_b32 s49, s29
        s_mov_b32 s50, {WS_SIZE}
        s_mov_b32 s51, 0x20000
        v_lshlrev_b32 v231, 2, v0
        s_mov_b32 exec_hi, 0
        buffer_store_dword v230, v231, s[48:51], s64 offen""")
    def end():
        flush_stamps(); a("s_endpgm")
    def srd(d, lo, off, size):
        if off is None:
            a(f"s_mov_b32 s{d}, s{lo}\ns_mov_b32 s{d+1}, s{lo+1}")
        else:
            a(f"s_add_u32 s{d}, s{lo}, {off}\ns_addc_u32 s{d+1}, s{lo+1}, 0")
        a(f"s_mov_b32 s{d+2}, {size}\ns_mov_b32 s{d+3}, 0x20000")
    def check(tags):
        for t in tags: a(f"v_cmpx_eq_u32 vcc, {TAG}, v{t}")
        a("s_cmp_eq_u64 exec, -1\ns_mov_b64 exec, -1")
    uid = [0]
    def ldswait(off, thr, cache="s56", sleep=csl, vt=20, cached=False):
        uid[0] += 1; u = uid[0]
        if cached: a(f"s_cmp_ge_i32 {cache}, {thr}\ns_cbranch_scc1 L_lw{u}_ok")
        a(f"""L_lw{u}:
        ds_read_b32 v{vt}, v21 offset:{off}
        s_waitcnt lgkmcnt(0)
        v_readfirstlane_b32 {cache}, v{vt}
        s_cmp_ge_i32 {cache}, {thr}
        s_cbranch_scc1 L_lw{u}_ok""")
        if sleep: a(f"s_sleep {sleep}")
        a(f"s_sub_u32 s71, s71, 1\ns_cbranch_scc0 L_lw{u}\ns_endpgm\nL_lw{u}_ok:")
    def setflag(off, val, vt=20):
        a(f"v_mov_b32 v{vt}, {val}\nds_write_b32 v21, v{vt} offset:{off}")
    def tr(s, t, base=96):
        r = base + (s * 4 + t) * 4
        for u in range(2): a(f"ds_read_b64_tr_b16 v[{r+2*u}:{r+2*u+1}], v{12+t} offset:{s*4096+u*512}")
    def tr_addr(area):
        a(f"""v_add_u32 v12, {area}, v7
        v_xor_b32 v13, 32, v12
        v_xor_b32 v14, 64, v12
        v_xor_b32 v15, 0x60, v12""")
    def trbase():
        a("""v_and_b32 v10, 1, v2
        v_bfe_u32 v7, v0, 3, 1
        v_lshl_add_u32 v7, v10, 1, v7
        v_lshlrev_b32 v7, 5, v7
        v_and_b32 v10, 3, v0
        v_lshl_add_u32 v7, v10, 3, v7
        v_bfe_u32 v10, v0, 2, 2
        v_lshl_add_u32 v7, v10, 7, v7
        v_lshl_add_u32 v7, v2, 10, v7""")
    def hjob(skip):
        a(f"""s_sub_u32 s58, {J}, 4
        s_lshl_b32 s58, s58, 5
        s_add_u32 s58, s58, {HEAD}
        s_cmp_ge_u32 s58, 112
        s_cbranch_scc1 {skip}
        s_and_b32 s57, s58, 3
        s_lshr_b32 s58, s58, 2""")
    def gettag():
        a(f"""ds_read_b64 v[22:23], v21 offset:{TAGL-FL}
        s_waitcnt lgkmcnt(0)
        v_readfirstlane_b32 {TAG}, v22
        v_readfirstlane_b32 {LOC}, v23""")

    a.raw(HEADER.rstrip("\n"))
    a.raw("; @launch grid=(256,1,1) block=(512,1,1) lds=163840")
    a.raw('.amdgcn_target "amdgcn-amd-amdhsa--gfx950"\n.text')
    a.raw(f".globl {name}\n.p2align 8\n.type {name},@function")
    a.label(name)
    a("""s_load_dwordx16 s[4:19], s[0:1], 0
    s_load_dwordx8 s[20:27], s[0:1], 64
    s_load_dwordx2 s[28:29], s[0:1], 96""")
    if adapt: a("s_memrealtime s[76:77]")
    if stamps or lite: a("s_memrealtime s[96:97]\ns_memtime s[100:101]")
    a(f"""s_cmp_ge_u32 s2, 256
    s_cbranch_scc1 L_end
    v_lshrrev_b32 v1, 6, v0
    v_and_b32 v0, 63, v0
    v_readfirstlane_b32 s3, v1
    v_lshrrev_b32 v2, 4, v0
    v_and_b32 v3, 15, v0
    v_mov_b32 v21, {FL}
    s_mov_b32 s71, 0x40000""")
    if mapping == "div": a(f"s_and_b32 {J}, s2, 7\ns_lshr_b32 {HEAD}, s2, 3")
    else: a(f"s_lshr_b32 {J}, s2, 5\ns_and_b32 {HEAD}, s2, 31")
    a(f"""s_and_b32 {HKV}, {HEAD}, 7
    s_lshr_b32 {B}, {HEAD}, 3
    s_cmp_eq_u32 s3, 0
    s_cbranch_scc1 L_isL""")
    if warm & 1:
        a("s_cmp_eq_u32 s3, 3\ns_cbranch_scc0 L_notL"); a.warm('L')
    a("s_branch L_notL\nL_isL:")
    NN, PV, HR, OA, OB, RR, CV = "s59", "s60", "s61", "s63", "s64", "s65", "s66"
    a(f"""s_setprio {lprio}
    v_mov_b64 v[24:25], 0
    v_mov_b64 v[26:27], 0
    ds_write_b128 v21, v[24:27]
    ds_write_b128 v21, v[24:27] offset:32
    v_mov_b32 v28, 0
    v_mov_b32 v25, 1
    v_mov_b32 v26, 2
    v_mov_b32 v27, 3
    ds_write_b128 v21, v[24:27] offset:16
    v_lshrrev_b32 v5, 3, v0
    v_and_b32 v6, 7, v0
    v_and_b32 v10, 1, v2
    v_lshlrev_b32 v10, 1, v10
    v_xor_b32 v6, v6, v10
    v_lshlrev_b32 v6, 4, v6
    v_lshl_add_u32 v8, v5, 13, v6
    v_xor_b32 v9, 64, v8
    v_lshlrev_b32 v4, 4, v0
    v_lshlrev_b32 v16, 1, v2
    v_xor_b32 v16, v16, v3
    v_lshlrev_b32 v16, 4, v16
    v_lshl_add_u32 v16, v2, 8, v16
    v_xor_b32 v17, 0x80, v16
    v_xor_b32 v18, 16, v16
    v_xor_b32 v19, 0x90, v16
    s_lshl_b32 s58, {B}, 13
    s_add_u32 s58, s58, {J}
    s_lshl_b32 s57, {HKV}, 3
    s_add_u32 s58, s58, s57
    s_lshl_b32 s58, s58, 7
    s_lshl_b32 s67, {HEAD}, 21
    s_lshl_b32 s57, {J}, 18
    s_add_u32 s67, s67, s57
    s_mov_b32 s62, 0
    s_mov_b32 m0, {QAREA}
    s_waitcnt lgkmcnt(0)""")
    if not latebar: a("s_barrier")
    srd(40, 10, "s58", 127*8192+128)
    if compact and not abl & (2 | 128):
        a(f"""L_wq:
        buffer_load_dwordx4 v8, s[40:43], s62 offen {wf} lds
        s_add_u32 m0, m0, 1024
        s_add_u32 s62, s62, 0x10000
        buffer_load_dwordx4 v9, s[40:43], s62 offen {wf} lds
        s_add_u32 m0, m0, 1024
        s_add_u32 s62, s62, 0x10000
        s_cmp_lt_u32 s62, 0x100000
        s_cbranch_scc1 L_wq""")
    for k in range(0 if (abl & (2 | 128) or compact) else 16):
        a(f"buffer_load_dwordx4 v{8+(k&1)}, s[40:43], s62 offen {wf} lds")
        if k < 15: a("s_add_u32 m0, m0, 1024\ns_add_u32 s62, s62, 0x10000")
    a(f"s_mov_b32 m0, {XIMG}")
    srd(44, 4, None, 4096)
    for k in range(4): a(f"buffer_load_dwordx4 v4, s[44:47], 0 offen offset:{k*1024} lds")
    a(f"""s_add_u32 s32, s6, s67
    s_addc_u32 s33, s7, 0
    s_add_u32 s34, s8, s67
    s_addc_u32 s35, s9, 0
    s_mov_b32 s46, 0x40000
    s_mov_b64 s[44:45], s[32:33]
    s_lshr_b32 {RR}, s2, 3
    s_and_b32 {RR}, {RR}, {7 if rot else 0}""")
    if irot: a(f"s_lshl_b32 s57, {J}, 3\ns_or_b32 {RR}, {RR}, s57")
    a(f"s_lshl_b32 {RR}, {RR}, 12")
    if compact:
        a(f"s_mov_b32 s68, 0\nL_burst:\ns_xor_b32 {OA}, {RR}, s68\ns_xor_b32 {OB}, {OA}, 4096\ns_mov_b32 m0, s68")
        for k in range(8):
            if k == 4: a("s_add_u32 m0, s68, 4096")
            a(f"buffer_load_dwordx4 v{16+(k&3)}, s[44:47], {(OA,OB)[k//4]} offen offset:{(k&3)*1024} {kvf} lds")
        a(f"s_add_u32 s68, s68, 8192\ns_cmp_lt_u32 s68, {nb << 13}\ns_cbranch_scc1 L_burst")
    for n in range(0 if compact else nb):
        a(f"s_xor_b32 {OA}, {RR}, {n << 13}\ns_xor_b32 {OB}, {OA}, 4096\ns_mov_b32 m0, {n << 13}")
        for k in range(8):
            if k == 4: a(f"s_mov_b32 m0, {(n << 13) + 4096}")
            a(f"buffer_load_dwordx4 v{16+(k&3)}, s[44:47], {(OA,OB)[k//4]} offen offset:{(k&3)*1024} {kvf} lds")
    a(f"""s_mov_b32 {NN}, {nb}
    s_mov_b32 {PV}, 1
    s_mov_b32 {HR}, {(1 << nb) - 1}
    s_mov_b32 s78, s76
    s_mov_b32 s79, {T0 + nb*T}
    v_mov_b32 v20, 1""")
    if latebar: a("s_barrier")
    a(f"""s_waitcnt vmcnt({8*nb})
    ds_write_b32 v21, v20""")
    def publish(age):
        a(f"""s_lshr_b32 s58, {HR}, {age}
        s_bcnt1_i32_b32 s58, s58
        s_add_u32 {PV}, {PV}, s58
        s_and_b32 {HR}, {HR}, {(1 << age) - 1}
        v_mov_b32 v20, {PV}
        ds_write_b32 v21, v20""")
    def mode(lbl):
        if adapt:
            a("""s_sub_u32 s57, s76, s78
            s_mul_i32 s57, s57, 10
            s_sub_u32 s57, s57, s79
            s_memrealtime s[76:77]""")
            for i in range(len(lv) - 1, 0, -1):
                a(f"s_cmp_ge_i32 s57, {lv[i][0]}\ns_cbranch_scc1 {lbl}{i}")
    def cmin(): a(f"v_min3_i32 v23, v24, v25, v26\nv_min_i32 v23, v23, v27\nv_readfirstlane_b32 {CV}, v23")
    a("L_step:")
    pad('L', True)
    a(f"""s_sub_u32 s67, {NN}, 15
    s_waitcnt lgkmcnt(0)""")
    if gref: a("v_readfirstlane_b32 s80, v28\ns_cmp_eq_u32 s80, 0\ns_cselect_b32 s78, s78, s80")
    a("""s_cmp_gt_i32 s67, 0
    s_cbranch_scc0 L_free""")
    cmin()
    a(f"""s_cmp_ge_i32 {CV}, s67
    s_cbranch_scc0 L_stall
    L_free:
    s_and_b32 {OA}, {NN}, 31
    s_lshl_b32 {OA}, {OA}, 13
    s_xor_b32 {OA}, {OA}, {RR}
    s_xor_b32 {OB}, {OA}, 4096
    s_and_b32 s68, {NN}, 15
    s_lshl_b32 s68, s68, 13
    s_bitcmp1_b32 {NN}, 5
    s_cselect_b64 s[44:45], s[34:35], s[32:33]
    s_add_u32 {NN}, {NN}, 1
    s_mov_b32 m0, s68""")
    def kvbody(n):
        for k in range(8):
            if k == 4: a("s_add_u32 m0, s68, 4096")
            a(f"s_waitcnt vmcnt({n-1})")
            if k == (n - 1) % 8: publish((n - 1) // 8)
            a(f"buffer_load_dwordx4 v{16+(k&3)}, s[44:47], {(OA,OB)[k//4]} offen offset:{(k&3)*1024} {kvf} lds")
            if k == 6: a("ds_read_b128 v[24:27], v21 offset:16")
            if k == 5 and gref: a("ds_read_b32 v28, v21 offset:40")
    mode("L_kvhi")
    kvbody(lv[0][1])
    a("L_kvj:")
    pad('L', True)
    a(f"""    s_lshl_b32 {HR}, {HR}, 1
    s_or_b32 {HR}, {HR}, 1
    s_add_u32 s79, s79, {T}
    s_cmp_eq_u32 {NN}, {pw1}
    s_cbranch_scc1 L_w1
    s_cmp_eq_u32 {NN}, {pwo}
    s_cbranch_scc1 L_wo
    s_cmp_lt_u32 {NN}, 64
    s_cbranch_scc1 L_step""")
    a("L_drain:")
    stamp(1)
    AM = (NMAX + 7) // 8
    for q in range(AM - 1, -1, -1):
        pad('L')
        if wolast and q == 1: continue
        a(f"s_waitcnt vmcnt({8*q})")
        if q in ((0, 2) if wolast else (0,)) and lastbar: a("s_barrier")
        else: publish(q)
    a("s_waitcnt lgkmcnt(0)")
    stamp(2)
    end()
    for i in range(1, len(lv)):
        a(f"L_kvhi{i}:"); pad('L', True); kvbody(lv[i][1]); a("s_branch L_kvj")
    a("L_stall:")
    for q in range(AM - 1, -1, -1):
        pad('L')
        a(f"s_waitcnt vmcnt({8*q})"); publish(q)
        a("ds_read_b128 v[24:27], v21 offset:16\ns_waitcnt lgkmcnt(0)")
        cmin()
        a(f"""s_cmp_ge_i32 {CV}, s67
        s_cbranch_scc1 L_free""")
    a("s_sleep 1\ns_sub_u32 s71, s71, 1\ns_cbranch_scc0 L_stall\ns_endpgm")
    def wbody(n):
        for k in range(8):
            pad('L')
            a(f"s_waitcnt vmcnt({n-1})")
            if k == (n - 1) % 8: publish((n - 1) // 8)
            a(f"buffer_load_dwordx4 v{8+(k&1)}, s[40:43], s62 offen {wf} lds")
            a("s_add_u32 m0, m0, 1024\ns_add_u32 s62, s62, s70")
    a("L_wtile:\ns_waitcnt lgkmcnt(0)")
    mode("L_whi")
    wbody(lv[0][1])
    a(f"""L_wj:
    s_lshl_b32 {HR}, {HR}, 1
    s_add_u32 s79, s79, {T}
    s_sub_u32 s69, s69, 1
    s_cbranch_scc0 L_wtile
    s_cmp_lt_u32 {NN}, 64
    s_cbranch_scc1 L_step
    s_branch L_drain""")
    for i in range(1, len(lv)):
        a(f"L_whi{i}:"); wbody(lv[i][1]); a("s_branch L_wj")
    a("""    L_w1:""")
    if abl & (2 | 256): a("s_branch L_step")
    a(f"s_cmp_lt_u32 {J}, 4\ns_cbranch_scc1 L_w2")
    hjob("L_step")
    a(f"""s_mul_i32 s57, s57, 3584
    s_add_u32 s58, s58, s57
    s_lshl_b32 s58, s58, 7
    v_mul_u32_u24 v8, 3584, v5
    v_add_u32 v8, v8, v6
    s_mov_b32 s70, {8*3584}""")
    srd(40, 16, "s58", 127*3584+128)
    a(f"""s_branch L_wmid
    L_w2:
    s_lshl_b32 s57, {B}, 2
    s_add_u32 s57, s57, {J}
    s_mul_i32 s57, s57, {112*1024}
    s_lshl_b32 s58, {HKV}, 7
    s_add_u32 s57, s57, s58
    v_lshl_add_u32 v8, v5, 10, v6
    s_mov_b32 s70, 8192""")
    srd(40, 20, "s57", 111*1024+128)
    a("L_wmid:")
    pad('L', True)
    if not abl & 1: ldswait(8, 1, cache="s69")
    a(f"""v_xor_b32 v9, 64, v8
    s_mov_b32 s62, 0
    s_mov_b32 s69, 1
    s_mov_b32 m0, {QAREA}""")
    a("s_branch L_wtile\nL_wo:")
    if abl & (2 | 512): a("s_branch L_step")
    if not abl & 1: ldswait(12, 1, cache="s70")
    a(f"""s_lshl_b32 s57, {HKV}, 2
    s_add_u32 s57, s57, {B}
    s_lshl_b32 s57, s57, 17
    s_lshl_b32 s58, {J}, 7
    s_add_u32 s57, s57, s58
    v_lshl_add_u32 v8, v5, 10, v6
    v_xor_b32 v9, 64, v8
    s_mov_b32 s62, 0
    s_mov_b32 s69, 1
    s_mov_b32 s70, 8192
    s_mov_b32 m0, {QAREA}""")
    pad('L', True)
    srd(40, 12, "s57", 127*1024+128)
    a("s_branch L_wtile")

    a("L_notL:")
    if not latebar: a("s_barrier")
    a("""s_cmp_ge_u32 s3, 4
    s_cbranch_scc1 L_C""")
    if abl & 1:
        a("s_waitcnt lgkmcnt(0)"); end()
    if latebar: a("s_cmp_eq_u32 s3, 1\ns_cbranch_scc1 L_nb0\ns_barrier\nL_nb0:")
    a(f"s_setprio {aprio}")
    trbase()
    a("""v_and_b32 v1, 7, v0
    v_lshlrev_b32 v1, 3, v1
    v_lshl_add_u32 v1, v2, 1, v1
    v_lshlrev_b32 v30, 3, v3
    v_lshlrev_b32 v29, 4, v0
    s_waitcnt lgkmcnt(0)""")
    srd(40, 28, None, WS_SIZE)
    a(f"""s_cmp_eq_u32 s3, 3
    s_cbranch_scc1 L_A2
    s_mov_b32 s57, {B}
    s_mov_b32 s59, 1
    s_cmp_eq_u32 s3, 1
    s_cbranch_scc0 L_A1
    s_load_dword {TAG}, s[28:29], 0
    L_qh:
    s_mov_b32 s60, 0x3f803f80
    s_mov_b32 s61, 0x3f803f80""")
    for r in range(32, 96, 2): a(f"v_mov_b64 v[{r}:{r+1}], s[60:61]")
    tr_addr(str(QAREA))
    a(f"""v_lshlrev_b32 v4, 10, v3
    v_lshl_add_u32 v4, v2, 4, v4
    v_add_u32 v4, {XIMG}, v4
    s_lshl_b32 s62, s57, 8""")
    for gq in range(4):
        a(f"v_add_u32 v{24+gq}, s62, v4")
        if gq < 3: a("s_add_u32 s62, s62, 256\ns_and_b32 s62, s62, 0x3ff")
    a(f"""v_and_b32 v10, 3, v3
    v_lshlrev_b32 v17, 2, v10
    v_add_u32 v17, 64, v17
    v_lshlrev_b32 v11, 16, v10
    s_lshl_b32 s62, s57, 11
    s_lshl_b32 s60, {HKV}, 13
    s_add_u32 s62, s62, s60
    s_add_u32 s62, s62, {QBUF}
    s_mov_b32 s60, {J}
    s_cmp_eq_u32 s3, 1
    s_cbranch_scc1 L_q1
    v_mul_u32_u24 v11, 7168, v10
    s_mul_i32 s62, s57, 28672
    s_add_u32 s62, s62, {HBUF}
    s_mov_b32 s60, s58
    L_q1:
    v_lshrrev_b32 v10, 2, v3
    v_lshl_add_u32 v11, v10, 6, v11
    v_lshl_add_u32 v16, v2, 4, v11
    s_lshl_b32 s60, s60, 8
    s_add_u32 s73, s62, s60
    s_getreg_b32 s63, hwreg(HW_REG_XCC_ID, 0, 4)""")
    if latebar: a("s_cmp_eq_u32 s3, 1\ns_cbranch_scc0 L_nb1\ns_barrier\nL_nb1:")
    ldswait(0, "s59", sleep=0)
    stamp(2)
    a(M4)
    for s in range(4): a(f"ds_read_b128 v[{32+4*s}:{35+4*s}], v24 offset:{64*s}")
    a("s_mov_b64 exec, -1")
    for t in range(4): tr(0, t)
    def gram(s):
        c = "0" if s == 0 else "v[160:163]"
        return f"v_mfma_f32_16x16x32_bf16 v[160:163], v[{32+4*s}:{35+4*s}], v[{32+4*s}:{35+4*s}], {c}"
    def dmf(s, t):
        c = "0" if s == 0 else f"v[{164+4*t}:{167+4*t}]"
        r = 96 + (s*4+t)*4
        return f"v_mfma_f32_16x16x32_bf16 v[{164+4*t}:{167+4*t}], v[{r}:{r+3}], v[{32+4*s}:{35+4*s}], {c}"
    for s in range(4):
        a("s_waitcnt lgkmcnt(0)")
        if s < 3:
            a(M4)
            for q in range(4): a(f"ds_read_b128 v[{48+16*s+4*q}:{51+16*s+4*q}], v{25+s} offset:{64*q}")
            a("s_mov_b64 exec, -1")
            for t in range(4): tr(s+1, t)
        else:
            a(f"s_sub_u32 s60, s3, 1\ns_lshl_b32 s60, s60, 2\nv_add_u32 v18, s60, v21\nv_mov_b32 v19, 1\nds_write_b32 v18, v19 offset:8")
        for q in range(4): a(gram(4*s+q))
        if s < 3:
            for t in range(4): a(dmf(s, t))
    a("ds_bpermute_b32 v19, v17, v160")
    for t in range(4): a(dmf(3, t))
    a(f"""s_cmp_eq_u32 s3, 1
    s_cbranch_scc0 L_q2
    s_add_u32 {TAG}, {TAG}, {hx(TAGC)}
    L_q2:
    s_waitcnt lgkmcnt(0)
    v_mul_f32 v24, {hx(f2u(-1/512))}, v19
    v_mov_b32 v98, {TAG}
    v_mov_b32 v99, s63""")
    for r in range(164, 180): a(f"v_fmac_f32_dpp v{r}, v{r}, v24 row_shl:4 row_mask:0xf bank_mask:0xf bound_ctrl:1")
    a("v_cvt_pk_bf16_f32 v96, v164, v165\nv_cvt_pk_bf16_f32 v97, v166, v167")
    for t in range(1, 4): a(f"v_cvt_pk_bf16_f32 v{164+4*t}, v{164+4*t}, v{165+4*t}\nv_cvt_pk_bf16_f32 v{165+4*t}, v{166+4*t}, v{167+4*t}")
    for t in range(1, 4):
        a(f"v_mov_b32_dpp v96, v{164+4*t} row_shr:{4*t} row_mask:0xf bank_mask:{hex(1<<t)}")
        a(f"v_mov_b32_dpp v97, v{165+4*t} row_shr:{4*t} row_mask:0xf bank_mask:{hex(1<<t)}")
    far = "buffer_store_dwordx4 v[96:99], v16, s[40:43], s73 offen sc1"
    a(f"""s_cmp_eq_u32 s3, 1
    s_cbranch_scc1 L_qnear
    {far}""")
    stamp(3)
    end()
    a("L_qnear:")
    if abl & 2048:
        setflag(4, 1); setflag(12, 1); end()
    a("buffer_store_dwordx4 v[96:99], v16, s[40:43], s73 offen" if qlocal else far)
    stamp(3)
    a(f"""v_cmp_eq_u32 vcc, 1, v3
    v_cndmask_b32 v18, v160, v161, vcc
    v_cmp_eq_u32 vcc, 2, v3
    v_cndmask_b32 v18, v18, v162, vcc
    v_cmp_eq_u32 vcc, 3, v3
    v_cndmask_b32 v18, v18, v163, vcc
    s_mov_b32 s61, {hx(f2u(1e-5))}
    v_mul_f32 v18, {hx(f2u(1/512))}, v18
    v_fma_f32 v18, -v24, v24, v18
    v_max_f32 v18, 0, v18
    v_add_f32 v26, s61, v18
    v_rsq_f32 v26, v26
    v_lshlrev_b32 v10, 3, v0
    v_mul_f32 v27, v26, v26
    v_fma_f32 v27, v27, v18, s61
    v_rsq_f32 v27, v27
    v_add_u32 v11, {STATL}, v10
    v_add_u32 v10, {QIMG}, v10
    v_mul_f32 v27, v26, v27
    v_mul_f32 v26, {hx(f2u(128**-0.5 * LOG2E))}, v26
    s_mov_b64 exec, 15
    ds_write_b64 v11, v[26:27]
    s_mov_b64 exec, -1
    s_lshl_b32 s62, {HEAD}, 13
    s_add_u32 s62, s62, {QBUF}
    s_add_u32 s61, s62, 4096
    s_mov_b32 s58, 0x3f80
    s_mov_b32 s59, 0x3f800000""")
    if tq: ldswait(0, tq, sleep=2)
    elif qdelay: a(f"s_sleep {qdelay}")
    a(f"s_mov_b32 {CNT}, {spin}\nL_pq:")
    for i in range(8): a(f"buffer_load_dwordx4 v[{100+4*i}:{103+4*i}], v29, s[40:43], {('s62','s61')[i//4]} offen offset:{(i%4)*1024} sc1")
    a("s_waitcnt vmcnt(0)")
    check([102 + 4*i for i in range(8)])
    a("s_cbranch_scc1 L_pq_ok")
    if qlocal:
        a(f"""s_cmp_eq_u32 {CNT}, {spin - qlocal + 1}
        s_cbranch_scc0 L_pq_n
        {far}
        L_pq_n:""")
    a(f"""s_sub_u32 {CNT}, {CNT}, 1
    s_cbranch_scc0 L_pq
    L_pq_ok:""")
    if stamps: a(f"s_sub_u32 s98, {spin}, {CNT}"); stamp(5, "s98")
    for kq in range(4):
        for x in range(2):
            for d in range(2):
                for h in range(2):
                    acc = 132 + x*4 + d*2 + h
                    a(f"v_dot2_f32_bf16 v{acc}, v{100 + (kq*2+x)*4 + d}, s{58+h}, " + ("0" if kq == 0 else f"v{acc}"))
    for i in range(4): a(f"v_cvt_pk_bf16_f32 v{132+i}, v{132+2*i}, v{133+2*i}")
    a("""ds_write_b64 v10, v[132:133]
    ds_write_b64 v10, v[134:135] offset:512""")
    for i in range(8): a(f"v_cmpx_eq_u32 vcc, s63, v{103+4*i}")
    a(f"""s_cmp_eq_u64 exec, -1
    s_mov_b64 exec, -1
    s_cselect_b32 {LOC}, 1, 0""")
    if qlocal: a(f"s_cbranch_scc1 L_qloc\n{far}\nL_qloc:")
    a(f"""v_mov_b32 v26, {TAG}
    v_mov_b32 v27, {LOC}
    ds_write_b64 v21, v[26:27] offset:{TAGL-FL}""")
    setflag(4, 1)
    a(f"s_cmp_lt_u32 {J}, 4\ns_cbranch_scc1 L_hash")
    hjob("L_noh")
    a("s_branch L_hash\nL_noh:")
    setflag(12, 1)
    a("L_hash:")
    stamp(4)
    a(f"""s_cmp_lt_u32 {J}, 2
    s_cbranch_scc0 L_fin""")
    srd(44, 22, None, 1024); srd(48, 4, None, 4096)
    a(f"""s_lshl_b32 s57, {HKV}, 1
    s_add_u32 s57, s57, {J}
    s_lshl_b32 s58, {B}, 4
    s_add_u32 s58, s58, s57
    s_lshl_b32 s65, s58, 6
    s_lshl_b32 s57, s57, 6
    s_mov_b32 s74, 0x3f80
    s_mov_b32 s75, 0x3f800000
    buffer_load_ushort v28, v1, s[44:47], s57 offen
    buffer_load_ushort v4, v1, s[48:51], s65 offen
    s_lshl_b32 s64, s58, 12
    s_lshr_b32 s60, s64, 1
    s_add_u32 s60, s60, {MBUF}""")
    if not abl & 16:
        ldswait(0, t3, sleep=16)
        a(f"s_mov_b32 {CNT}, {spin}\nL_pm:")
        for i in range(2): a(f"buffer_load_dwordx4 v[{96+4*i}:{99+4*i}], v29, s[40:43], s60 offen offset:{i*1024} sc1")
        a("s_waitcnt vmcnt(0)")
        check([97 + 2*i for i in range(4)])
        a(f"""s_cbranch_scc1 L_pm_ok
        s_sleep {slp}
        s_sub_u32 {CNT}, {CNT}, 1
        s_cbranch_scc0 L_pm
        L_pm_ok:
""")
        for i in range(2):
            for d in range(2):
                for h in range(2): a(f"v_dot2_f32_bf16 v{112+2*d+h}, v{96+4*i+2*d}, s{74+h}, " + ("0" if i == 0 else f"v{112+2*d+h}"))
        a("s_nop 1\ns_call_b64 s[62:63], L_pg_ok")
    a(f"""s_waitcnt vmcnt(0)
    v_lshlrev_b32 v28, 16, v28
    v_lshlrev_b32 v4, 16, v4
    v_add_f32 v28, v28, v112
    v_mul_f32 v10, {hx(f2u(-LOG2E))}, v28
    v_exp_f32 v10, v10
    s_add_u32 s60, s64, {SBUF}
    v_add_f32 v10, 1.0, v10
    v_rcp_f32 v10, v10
    v_mov_b32 v25, {TAG}
    v_mul_f32 v28, v28, v10""")
    srd(44, 24, None, 4096)
    if prew & 2:
        for i in range(4): a(f"buffer_load_dwordx4 v[{96+4*i}:{99+4*i}], v29, s[40:43], s60 offen offset:{i*1024} sc1")
        a("s_waitcnt vmcnt(0)")
    stamp(6)
    if warm & 4: a.warm('F')
    if lastbar: a("s_barrier")
    if wolast: a("s_barrier")
    a("s_barrier")
    if abl & 32: a("s_branch L_fin")
    if fdelay: a(f"s_sleep {fdelay}")
    a("""s_call_b64 s[62:63], L_gather
    v_fma_f32 v28, v28, v112, v4
    v_cvt_pk_bf16_f32 v28, v28, v28
    s_mov_b32 exec_lo, 0x00ff00ff
    s_mov_b32 exec_hi, 0x00ff00ff
    buffer_store_short v28, v1, s[44:47], s65 offen""")
    stamp(11)
    pad('F', True)
    a("""s_cmp_eq_u32 s2, 0
    s_cbranch_scc0 L_fin
    v_mov_b32 v10, 0
    s_mov_b64 exec, 1
    buffer_store_dword v25, v10, s[40:43], 0 offen sc1
    L_fin:""")
    flush_stamps()
    a("L_end:\ns_endpgm")
    a("L_A1:")
    if abl & 1024:
        ldswait(4, 1, sleep=8); setflag(12, 1); a("s_branch L_fin")
    hjob("L_fin")
    ldswait(4, 1, sleep=8)
    gettag()
    a(f"s_mov_b32 s59, {pw1+2}\ns_branch L_qh")
    a("L_A2:")
    if tch:
        a(f"""v_mov_b32 v11, 0
        s_mov_b64 exec, 1
        s_lshl_b32 s61, {HEAD}, 21""")
        srd(32, 8, "s61", 1 << 21)
        a("buffer_load_dword v40, v11, s[32:35], 0 offen nt")
        if tch & 2:
            for lo, size in ((16, 512*3584), (20, 1792*1024), (12, 4096*1024)):
                srd(32, lo, None, size)
                a(f"s_lshl_b32 s61, {HKV}, 19" if lo == 12 else "s_mov_b32 s61, 0")
                a(f"buffer_load_dword v{40+lo}, v11, s[32:35], s61 offen nt")
        a("s_mov_b64 exec, -1")
    if gref:
        a(f"""s_cmp_lt_u32 s2, 8
        s_cbranch_scc0 L_noref
        s_atomic_umax s76, s[26:27], 0
        L_noref:""")
        ldswait(0, gref, sleep=8)
        a("""s_load_dword s80, s[26:27], 0
        s_waitcnt lgkmcnt(0)
        s_sub_u32 s81, s80, s76
        s_cmp_lt_u32 s81, 500
        s_cselect_b32 s80, s80, s76""")
        setflag(40, "s80")
    a(f"s_cmp_lt_u32 {J}, 4\ns_cbranch_scc0 L_fin")
    if abl & 16:
        ldswait(4, 1, sleep=8); setflag(12, 1); a("s_branch L_fin")
    srd(44, 18, None, 3584)
    a(f"""s_lshl_b32 s66, {B}, 2
    s_add_u32 s66, s66, {J}
    s_mul_i32 s57, s66, 224
    buffer_load_dwordx2 v[24:25], v30, s[44:47], s57 offen
    buffer_load_dwordx2 v[26:27], v30, s[44:47], s57 offen offset:128
    v_mov_b32 v11, 7168
    v_lshlrev_b32 v10, 4, v3
    v_mad_u32_u24 v10, v2, v11, v10
    v_min_u32 v16, 11, v3
    v_lshlrev_b32 v16, 4, v16
    v_mad_u32_u24 v11, v2, v11, v16
    s_lshl_b32 s57, s57, 1
    s_add_u32 s57, s57, {HBUF}
    s_add_u32 s58, s57, 28672
    s_add_u32 s59, s58, 28672
    s_add_u32 s60, s59, 28672""")
    tr_addr(str(QAREA))
    ldswait(4, 1, sleep=8)
    gettag()
    ldswait(0, pw1 + 2, sleep=8)
    n = 0
    for s in range(4):
        for t in range(4):
            if n >= 14: a("s_waitcnt lgkmcnt(12)")
            tr(s, t); n += 2
    a(f"v_lshlrev_b32 v28, 3, v2\nv_add_u32 v28, {STATL+4}, v28\nds_read_b32 v28, v28\ns_waitcnt lgkmcnt(0)")
    setflag(12, 1)
    ldswait(0, t2, sleep=16)
    a(f"s_mov_b32 {CNT}, {spin}\nL_ph:")
    for x in range(2):
        for i in range(4): a(f"buffer_load_dwordx4 v[{32+16*x+4*i}:{35+16*x+4*i}], v{10+x}, s[40:43], s{57+i} offen offset:{256*x} sc1")
    a("s_waitcnt vmcnt(0)")
    check([34 + 4*i for i in range(8)])
    a(f"""s_cbranch_scc1 L_ph_ok
    s_sleep {slp}
    s_sub_u32 {CNT}, {CNT}, 1
    s_cbranch_scc0 L_ph
    L_ph_ok:
    s_mov_b32 s58, 0x3f80
    s_mov_b32 s59, 0x3f800000""")
    for x in range(2):
        for d in range(2):
            for h in range(2): a(f"v_dot2_f32_bf16 v{72+x*4+d*2+h}, v{24+2*x+d}, s{58+h}, 0")
    for kq in range(4):
        for x in range(2):
            for d in range(2):
                for h in range(2): a(f"v_dot2_f32_bf16 v{64+x*4+d*2+h}, v{32+16*x+4*kq+d}, s{58+h}, " + ("0" if kq == 0 else f"v{64+x*4+d*2+h}"))
    for i in range(8): a(f"v_fma_f32 v{64+i}, v{64+i}, v28, v{72+i}")
    k1 = -2 * LOG2E * 0.7978845608028654
    a(f"s_mov_b32 s58, {hx(f2u(k1*0.044715))}\nv_mov_b32 v28, {hx(f2u(k1))}")
    for i in range(8): a(f"v_mul_f32 v{72+i}, v{64+i}, v{64+i}")
    for i in range(8): a(f"v_fma_f32 v{72+i}, v{72+i}, s58, v28")
    for i in range(8): a(f"v_mul_f32 v{72+i}, v{72+i}, v{64+i}")
    for i in range(8): a(f"v_exp_f32 v{72+i}, v{72+i}")
    for i in range(8): a(f"v_add_f32 v{72+i}, 1.0, v{72+i}")
    for i in range(8): a(f"v_rcp_f32 v{72+i}, v{72+i}")
    for i in range(8): a(f"v_mul_f32 v{64+i}, v{64+i}, v{72+i}")
    for i in range(4): a(f"v_cvt_pk_bf16_f32 v{64+i}, v{64+2*i}, v{65+2*i}")
    a(f"""v_cmp_gt_u32 vcc, 12, v3
    v_lshl_add_u32 v10, v2, 8, v30
    v_add_u32 v10, {HIMG}, v10
    v_cndmask_b32 v66, 0, v66, vcc
    v_cndmask_b32 v67, 0, v67, vcc
    v_and_b32 v11, 3, v0
    v_lshlrev_b32 v11, 8, v11
    v_lshl_add_u32 v11, v2, 4, v11
    v_add_u32 v11, {HIMG}, v11
    ds_write_b64 v10, v[64:65]
    ds_write_b64 v10, v[66:67] offset:128""")
    for s in range(4): a(f"ds_read_b128 v[{32+4*s}:{35+4*s}], v11 offset:{64*s}")
    a(f"""s_lshl_b32 s57, {HKV}, 12
    s_lshl_b32 s58, s66, 7
    s_add_u32 s57, s57, s58
    s_add_u32 s57, s57, {MBUF}
    v_lshlrev_b32 v31, 2, v3
    v_and_b32 v16, 1, v2
    v_lshl_add_u32 v31, v16, 6, v31
    v_lshrrev_b32 v16, 1, v2
    v_lshl_add_u32 v31, v16, 11, v31
    s_waitcnt lgkmcnt(0)""")
    for s in range(4):
        for t in range(4):
            c = "0" if s == 0 else f"v[{160+4*t}:{163+4*t}]"
            r = 96 + (s*4+t)*4
            a(f"v_mfma_f32_16x16x32_bf16 v[{160+4*t}:{163+4*t}], v[{32+4*s}:{35+4*s}], v[{r}:{r+3}], {c}")
    for b in range(4): a(f"v_mov_b32 v{65+2*b}, {TAG}")
    for b in range(4): a(f"v_mov_b32 v{64+2*b}, v{160+b}")
    for t in range(1, 4):
        for b in range(4): a(f"v_mov_b32_dpp v{64+2*b}, v{160+4*t+b} quad_perm:[0,1,2,3] row_mask:{hex(1<<t)} bank_mask:0xf")
    for b in range(4): a(f"v_mov_b32_dpp v{72+b}, v{64+2*b} quad_perm:[1,0,3,2] row_mask:0xf bank_mask:0xf")
    for b in range(4): a(f"v_cvt_pk_bf16_f32 v{64+2*b}, v{64+2*b}, v{72+b}")
    a("s_mov_b32 exec_lo, 0x55555555\ns_mov_b32 exec_hi, 0x55555555")
    def mstores(fl):
        for b in range(4):
            a(f"buffer_store_dwordx2 v[{64+2*b}:{65+2*b}], v31, s[40:43], s57 offen {fl}")
            if b < 3: a("s_add_u32 s57, s57, 32768")
    stamp(6)
    a(f"s_cmp_eq_u32 {LOC}, 1\ns_cbranch_scc0 L_mfar")
    mstores("")
    a("s_branch L_fin\nL_mfar:")
    mstores("sc1")
    a("s_branch L_fin")
    gl = lambda r: [f"buffer_load_dwordx4 v[{r+4*i}:{r+3+4*i}], v29, s[40:43], s60 offen offset:{i*1024} sc1" for i in range(4)]
    gt = lambda r: [r + 1 + 2*i for i in range(8)]
    def gsum(r):
        for i in range(4):
            for d in range(2):
                for h in range(2): a(f"v_dot2_f32_bf16 v{112+2*d+h}, v{r+4*i+2*d}, s{74+h}, " + ("0" if i == 0 else f"v{112+2*d+h}"))
    a("L_gather:")
    pad('F', True)
    a(f"""    s_mov_b32 {CNT}, {spin}""")
    sets = [96, 128, 144, 160][:nset if pipe2 else 1]
    R = len(sets)
    for r in sets[:-1]:
        for l in gl(r): a(l)
        a(f"s_sleep {pipe2}")
    a("L_pg:")
    for i in range(R):
        for l in gl(sets[(i - 1) % R]): a(l)
        a(f"s_waitcnt vmcnt({4*(R-1)})")
        check(gt(sets[i]))
        a(f"s_cbranch_scc1 L_pg_ok{i}")
        pad('F', True)
    if fback: a(f"s_sleep {fback}")
    a(f"""s_sub_u32 {CNT}, {CNT}, 1
    s_cbranch_scc0 L_pg""")
    for i in range(R - 1, -1, -1):
        a(f"L_pg_ok{i}:"); pad('F', True); gsum(sets[i])
        if i: a("s_nop 1\ns_branch L_pg_ok")
    a("s_nop 0\nL_pg_ok:")
    for r in range(112, 116): a(f"v_add_f32_dpp v{r}, v{r}, v{r} row_ror:8 row_mask:0xf bank_mask:0xf")
    a("""v_permlane16_swap_b32 v112, v113
    v_permlane16_swap_b32 v114, v115
    v_add_f32 v112, v112, v113
    v_add_f32 v114, v114, v115
    v_permlane32_swap_b32 v112, v114
    v_add_f32 v112, v112, v114
    s_setpc_b64 s[62:63]""")

    TH, SC, NC, LC, SW = "s59", "s61", "s60", "s56", "s47"
    a(f"""L_C:
    s_sub_u32 {SW}, s3, 4""")
    trbase()
    a(f"""v_add_u32 v12, {QAREA}, v7
    v_xor_b32 v13, 32, v12
    v_xor_b32 v14, 64, v12
    v_xor_b32 v15, 0x60, v12
    v_and_b32 v16, 7, v3
    v_lshlrev_b32 v16, 1, v16
    v_lshrrev_b32 v17, 3, v3
    v_or_b32 v16, v16, v17
    v_lshlrev_b32 v17, 2, v2
    v_xor_b32 v16, v16, v17
    v_lshlrev_b32 v16, 4, v16
    v_lshl_add_u32 v16, v3, 8, v16
    s_lshl_b32 s57, {SW}, 13
    v_add_u32 v8, s57, v16
    v_xor_b32 v9, 16, v8
    v_xor_b32 v10, 32, v8
    v_xor_b32 v11, 48, v8
    v_lshrrev_b32 v16, 2, v0
    v_and_b32 v17, 7, v16
    v_lshlrev_b32 v17, 1, v17
    v_lshrrev_b32 v18, 3, v16
    v_or_b32 v17, v17, v18
    v_bfe_u32 v18, v0, 1, 1
    v_xor_b32 v17, v17, v18
    v_lshlrev_b32 v17, 4, v17
    v_lshl_add_u32 v17, v16, 8, v17
    v_and_b32 v18, 1, v0
    v_lshl_add_u32 v17, v18, 3, v17
    s_lshl_b32 s57, {SW}, 6
    v_xor_b32 v4, s57, v17
    v_xor_b32 v5, 32, v4
    v_and_b32 v16, 3, v3
    v_lshlrev_b32 v17, 6, v2
    v_lshl_add_u32 v23, v16, 8, v17
    v_add_u32 v23, {QIMG}, v23
    v_lshl_add_u32 v6, v16, 4, v17
    v_add_u32 v6, {PBUF}, v6
    v_lshrrev_b32 v18, 2, v3
    v_lshl_add_u32 v1, v18, 10, v6
    s_lshl_b32 s57, {SW}, 8
    v_add_u32 v1, s57, v1
    v_lshlrev_b32 v19, 3, v16
    v_add_u32 v19, {MLX}, v19
    s_lshl_b32 s57, {SW}, 5
    v_add_u32 v22, s57, v19
    s_lshl_b32 s57, {SW}, 2
    v_add_u32 v7, s57, v21
    v_lshl_add_u32 v24, v18, 2, v2
    v_lshlrev_b32 v24, 7, v24
    v_lshl_add_u32 v44, v16, 12, v24
    v_lshlrev_b32 v45, 2, v3
    v_and_b32 v17, 1, v2
    v_lshl_add_u32 v45, v17, 6, v45
    v_lshrrev_b32 v17, 1, v2
    v_lshl_add_u32 v45, v17, 12, v45
    v_lshlrev_b32 v46, 4, v0""")
    for r in range(72, 80, 2): a(f"v_mov_b64 v[{r}:{r+1}], 0")
    a(f"""s_lshl_b32 s66, {HEAD}, 14
    s_lshl_b32 s57, {SW}, 10
    s_add_u32 s66, s66, s57
    s_lshl_b32 s57, {J}, 4
    s_add_u32 s66, s66, s57
    s_add_u32 s66, s66, {OBUF}
    s_lshl_b32 s67, {SW}, 3
    s_add_u32 s67, s67, {HKV}
    s_lshl_b32 s67, s67, 2
    s_add_u32 s67, s67, {B}
    s_lshl_b32 s67, s67, 12
    s_add_u32 s67, s67, {OBUF}
    s_lshl_b32 s68, {SW}, 16
    s_lshl_b32 s57, {J}, 13
    s_add_u32 s68, s68, s57
    s_lshl_b32 s57, {HEAD}, 7
    s_add_u32 s68, s68, s57
    s_add_u32 s68, s68, {SBUF}
    s_lshl_b32 s57, {B}, 3
    s_add_u32 s57, s57, {STATL}
    v_mov_b32 v24, s57
    s_add_u32 {TH}, {SW}, 2
    s_mov_b32 {NC}, 0
    s_mov_b32 s74, 0x000f000f
    s_mov_b32 s75, 0x000f000f
    s_mov_b32 {CNT}, {spin}
    s_waitcnt lgkmcnt(0)""")
    srd(40, 28, None, WS_SIZE)
    if latebar: a("s_barrier")
    if warm & 2: a.warm('C')
    if not abl & 1: ldswait(4, 1, cache=LC, sleep=2)
    stamp(2)
    QF = 120
    a("ds_read_b32 v24, v24")
    for s in range(4): a(f"ds_read_b128 v[{QF+4*s}:{QF+3+4*s}], v23 offset:{16*s}")
    a(f"""ds_read_b64 v[26:27], v21 offset:{TAGL-FL}
    s_mov_b32 {LC}, 0
    s_waitcnt lgkmcnt(0)
    v_readfirstlane_b32 {SC}, v24
    v_readfirstlane_b32 {TAG}, v26
    v_readfirstlane_b32 {LOC}, v27
    L_kloop:""")
    pad('C', True)
    ldswait(0, TH, cache=LC, cached=True)
    for s in range(4):
        for t in range(2): a(f"ds_read_b128 v[{88+(s*2+t)*4}:{91+(s*2+t)*4}], v{8+s} offset:{t*4096}")
    a(f"""s_add_u32 {TH}, {TH}, 4
    s_sub_u32 s57, {TH}, 2
    s_min_u32 s57, s57, 32
    v_mov_b32 v20, s57""")
    for s in range(4):
        a(f"s_waitcnt lgkmcnt({6-2*s})")
        if s == 3: a("ds_write_b32 v7, v20 offset:16")
        for t in range(2):
            c = "0" if s == 0 else f"v[{32+4*t}:{35+4*t}]"
            a(f"v_mfma_f32_16x16x32_bf16 v[{32+4*t}:{35+4*t}], v[{88+(s*2+t)*4}:{91+(s*2+t)*4}], v[{QF+4*s}:{QF+3+4*s}], {c}")
    pad('C')
    for s in range(4): a(f"v_add_u32 v{8+s}, 0x8000, v{8+s}")
    for s in range(4): a(f"v_and_b32 v{8+s}, 0x1ffff, v{8+s}")
    a("s_mov_b64 exec, s[74:75]")
    for r in range(0, 8, 2): a(f"v_mov_b64 v[{56+r}:{57+r}], v[{32+r}:{33+r}]")
    a(f"""s_mov_b64 exec, -1
    s_lshl_b64 s[74:75], s[74:75], 4
    s_add_u32 {NC}, {NC}, 1
    s_and_b32 s57, {NC}, 3
    s_cbranch_scc1 L_kloop
    s_mov_b32 s74, 0x000f000f
    s_mov_b32 s75, 0x000f000f
    s_cmp_eq_u32 {NC}, 8
    s_cbranch_scc1 L_soft""")
    for r in range(0, 8, 2): a(f"v_mov_b64 v[{64+r}:{65+r}], v[{56+r}:{57+r}]")
    a("s_branch L_kloop\nL_soft:")
    stamp(16)
    pad('C')
    dp = "row_mask:0xf bank_mask:0xf"
    def allred(op, r, t):
        a(f"""{op}_dpp v{r}, v{r}, v{r} row_ror:4 {dp}
        {op}_dpp v{r}, v{r}, v{r} row_ror:8 {dp}
        v_mov_b32 v{t}, v{r}
        v_permlane32_swap_b32 v{r}, v{t}
        {op} v{r}, v{r}, v{t}
        v_mov_b32 v{t}, v{r}
        v_permlane16_swap_b32 v{r}, v{t}
        {op} v{r}, v{r}, v{t}""")
    a("v_max3_f32 v16, v56, v57, v58")
    for r in range(59, 71, 2): a(f"v_max3_f32 v16, v16, v{r}, v{r+1}")
    a("v_max_f32 v16, v16, v71")
    allred("v_max_f32", 16, 24)
    a(f"v_mul_f32 v16, {SC}, v16")
    for r in range(56, 72): a(f"v_fma_f32 v{r}, v{r}, {SC}, -v16")
    pad('C')
    for r in range(56, 72): a(f"v_exp_f32 v{r}, v{r}")
    pad('C')
    a("v_add_f32 v17, v56, v57\nv_add_f32 v18, v58, v59")
    for r in range(60, 72, 2): a(f"v_add_f32 v17, v17, v{r}\nv_add_f32 v18, v18, v{r+1}")
    a("v_add_f32 v17, v17, v18")
    allred("v_add_f32", 17, 24)
    a("""ds_write_b64 v22, v[16:17]
    v_mov_b32 v20, 1
    s_mov_b64 exec, 1
    ds_add_u32 v21, v20 offset:32
    s_mov_b64 exec, -1""")
    pad('C')
    ldswait(32, 4, cache="s57", sleep=1)
    pad('C')
    for w in range(4): a(f"ds_read_b64 v[{32+2*w}:{33+2*w}], v19 offset:{32*w}")
    a("""s_waitcnt lgkmcnt(0)
    v_max3_f32 v42, v32, v34, v36
    v_max_f32 v42, v42, v38""")
    for w in range(4): a(f"v_sub_f32 v{32+2*w}, v{32+2*w}, v42")
    a("v_sub_f32 v16, v16, v42")
    for w in range(4): a(f"v_exp_f32 v{32+2*w}, v{32+2*w}")
    a(f"""v_exp_f32 v16, v16
    v_mul_f32 v17, v32, v33
    v_fmac_f32 v17, v34, v35
    v_fmac_f32 v17, v36, v37
    v_fmac_f32 v17, v38, v39
    v_rcp_f32 v18, v17
    v_log_f32 v17, v17
    v_mov_b32 v43, {TAG}
    v_mul_f32 v16, v16, v18
    v_add_f32 v42, v42, v17""")
    pad('C')
    for r in range(56, 72): a(f"v_mul_f32 v{r}, v16, v{r}")
    for r in range(0, 8): a(f"v_cvt_pk_bf16_f32 v{56+r}, v{56+2*r}, v{57+2*r}")
    a(f"""ds_write_b128 v1, v[60:63]
    ds_write_b128 v1, v[56:59] offset:4096
    v_mov_b32 v20, 1
    s_mov_b64 exec, 1
    ds_add_u32 v21, v20 offset:36
    s_mov_b64 exec, -1
    v_mov_b32 v53, {TAG}
    s_mov_b32 {TH}, 34""")
    ldswait(36, 4, cache="s57", sleep=1)
    stamp(17)
    def vtile(last):
        if last and lastbar: a("ds_read_b128 v[28:31], v6\ns_barrier")
        else:
            ldswait(0, TH, cache=LC, cached=True, sleep=0 if last else csl)
            a("ds_read_b128 v[28:31], v6")
        for t in range(2):
            for u in range(2): a(f"ds_read_b64_tr_b16 v[{80+4*t+2*u}:{81+4*t+2*u}], v{4+t} offset:{u*4096}")
        if not last:
            a(f"""s_sub_u32 s57, {TH}, 1
            v_mov_b32 v20, s57
            s_add_u32 {TH}, {TH}, 1
            v_add_u32 v6, 0x100, v6""")
        for t in range(2):
            a(f"s_waitcnt lgkmcnt({2-2*t})")
            a(f"v_mfma_f32_16x16x32_bf16 v[{72+4*t}:{75+4*t}], v[{80+4*t}:{83+4*t}], v[28:31], v[{72+4*t}:{75+4*t}]")
    a("L_vloop:")
    pad('C')
    vtile(False)
    a(f"""ds_write_b32 v7, v20 offset:16
    v_add_u32 v4, 0x2000, v4
    v_add_u32 v5, 0x2000, v5
    v_and_b32 v4, 0x1ffff, v4
    v_and_b32 v5, 0x1ffff, v5""")
    def wofrags():
        n = 0
        for s in range(4):
            for t in range(4):
                if n >= 12: a("s_waitcnt lgkmcnt(12)")
                tr(s, t, 88); n += 2
                pad('C')
    if not wolast:
        a(f"""s_cmp_lt_u32 {TH}, {pwo + 4}
        s_cbranch_scc1 L_vloop
        s_cmp_eq_u32 {TH}, {pwo + 4}
        s_cbranch_scc0 L_nowo""")
        wofrags()
        a("s_waitcnt lgkmcnt(0)\nL_nowo:")
    if prew & 1:
        a(f"s_cmp_eq_u32 {TH}, 58\ns_cbranch_scc0 L_nopw")
        for i in range(4): a(f"buffer_load_dwordx4 v[{56+4*i}:{59+4*i}], v46, s[40:43], s67 offen offset:{i*1024} sc1")
        a("L_nopw:")
    a(f"""
    s_cmp_lt_u32 {TH}, 65
    s_cbranch_scc1 L_vloop""")
    pad('C', True)
    vtile(True)
    stamp(3)
    if abl & 32:
        if wolast: a("s_barrier")
        end()
    a(f"""s_mov_b32 exec_lo, 0x00ff00ff
    s_mov_b32 exec_hi, 0x00ff00ff
    v_cvt_pk_bf16_f32 v40, v72, v73
    v_cvt_pk_bf16_f32 v41, v74, v75
    v_cvt_pk_bf16_f32 v32, v76, v77
    v_cvt_pk_bf16_f32 v33, v78, v79
    s_cmp_eq_u32 {LOC}, 1
    v_mov_b32_dpp v40, v32 quad_perm:[0,1,2,3] row_mask:0xf bank_mask:0x2
    v_mov_b32_dpp v41, v33 quad_perm:[0,1,2,3] row_mask:0xf bank_mask:0x2
    s_cbranch_scc0 L_ofar
    buffer_store_dwordx4 v[40:43], v44, s[40:43], s66 offen
    L_onear:
    s_mov_b64 exec, -1""")
    stamp(8)
    if light:
        a(f"""L_pl:
        buffer_load_dwordx4 v[68:71], v46, s[40:43], s67 offen offset:3072 sc1
        s_waitcnt vmcnt(0)
        v_cmp_ne_u32 vcc, {TAG}, v71
        s_cmp_eq_u64 vcc, 0
        s_cbranch_scc1 L_po
        s_sub_u32 {CNT}, {CNT}, 1
        s_cbranch_scc0 L_pl""")
    old = [f"buffer_load_dwordx4 v[{56+4*i}:{59+4*i}], v46, s[40:43], s67 offen offset:{i*1024} sc1" for i in range(4)]
    if wolast:
        for l in old: a(l)
        a("s_barrier")
        wofrags()
        a("s_branch L_po1")
    a("L_po:")
    for l in old: a(l)
    a("L_po1:\ns_waitcnt vmcnt(0)")
    check([59 + 4*i for i in range(4)])
    a(f"""s_cbranch_scc1 L_po_ok
    s_sub_u32 {CNT}, {CNT}, 1
    s_cbranch_scc0 L_po
    L_po_ok:""")
    stamp(9)
    pad('C')
    if stamps: a(f"s_sub_u32 s98, {spin}, {CNT}"); stamp(12, "s98")
    a("v_mov_b32 v18, v58")
    for s in range(4):
        for d in range(2): a(f"v_mov_b32_dpp v{58+4*s+d}, v{56+4*s+d} row_shl:8 row_mask:0xf bank_mask:0xf bound_ctrl:1")
    if wolast: a("s_waitcnt lgkmcnt(0)")
    def omf(s, t):
        c = "0" if s == 0 else f"v[{72+4*t}:{75+4*t}]"
        r = 88 + (s*4+t)*4
        return f"v_mfma_f32_16x16x32_bf16 v[{72+4*t}:{75+4*t}], v[{56+4*s}:{59+4*s}], v[{r}:{r+3}], {c}"
    P = ["quad_perm:[1,0,3,2]", "quad_perm:[2,3,0,1]", "row_half_mirror"]
    wv = [f"v_max_f32_dpp v19, v18, v18 {P[0]} {dp}", f"v_max_f32_dpp v19, v19, v19 {P[1]} {dp}", f"v_max_f32_dpp v19, v19, v19 {P[2]} {dp}",
          "v_sub_f32 v18, v18, v19", "v_exp_f32 v18, v18",
          f"v_add_f32_dpp v19, v18, v18 {P[0]} {dp}", f"v_add_f32_dpp v19, v19, v19 {P[1]} {dp}", f"v_add_f32_dpp v19, v19, v19 {P[2]} {dp}",
          "v_rcp_f32 v19, v19", "v_mul_f32 v18, v18, v19"]
    wv.append("\n".join(f"v_mov_b32_dpp v{32+i}, v18 row_newbcast:{i} row_mask:0x5 bank_mask:0xf" for i in range(4)))
    wv.append("\n".join(f"v_mov_b32_dpp v{32+i}, v18 row_newbcast:{4+i} row_mask:0xa bank_mask:0xf" for i in range(4)))
    T4 = [52, 36, 37, 38]
    def wsum(t): return f"v_mul_f32 v{T4[t]}, v32, v{72+4*t}\n" + "\n".join(f"v_fmac_f32 v{T4[t]}, v{32+i}, v{72+4*t+i}" for i in range(1, 4))
    order = [(s, t) for th in (0, 2) for s in range(4) for t in (th, th + 1)]
    for i, (s, t) in enumerate(order):
        a(omf(s, t))
        if i < len(wv): a(wv[i])
        pad('C')
        if i == 13: a(wsum(0))
        if i == 14: a(wsum(1))
    a("v_permlane16_swap_b32 v52, v36")
    a(wsum(2)); a("v_add_f32 v52, v52, v36"); a(wsum(3))
    pad('C', True)
    a("""v_permlane16_swap_b32 v37, v38
    v_add_f32 v37, v37, v38
    v_permlane32_swap_b32 v52, v37
    v_mov_b32_dpp v36, v52 quad_perm:[1,0,3,2] row_mask:0xf bank_mask:0xf
    s_mov_b32 exec_lo, 0x55555555
    s_mov_b32 exec_hi, 0x55555555
    v_cvt_pk_bf16_f32 v52, v52, v36
    buffer_store_dwordx2 v[52:53], v45, s[40:43], s68 offen sc1""")
    stamp(10)
    if cbar: a("s_barrier")
    end()
    a("L_ofar:\nbuffer_store_dwordx4 v[40:43], v44, s[40:43], s66 offen sc1\ns_branch L_onear")
    a.close_chains()
    errs = full_check(a)
    assert not errs, "\n".join(errs)
    nv = 232 if (stamps or lite) else 184
    a.raw(f""".section .rodata,"a"
.p2align 6
.amdhsa_kernel {name}
  .amdhsa_next_free_vgpr {nv}
  .amdhsa_next_free_sgpr 102
  .amdhsa_accum_offset {nv}
  .amdhsa_group_segment_fixed_size 0
  .amdhsa_kernarg_size 104
  .amdhsa_user_sgpr_count 2
  .amdhsa_user_sgpr_kernarg_segment_ptr 1
  .amdhsa_system_sgpr_workgroup_id_x 1
.end_amdhsa_kernel""")
    return a.text()

if __name__ == "__main__":
    out = sys.argv[1]
    kw = eval("dict(%s)" % (sys.argv[2] if len(sys.argv) > 2 else ""))
    open(out, "w").write(gen(**kw))
```

```python
import struct, sys
sys.path.insert(0, "work")
from asmdsl import Asm, full_check

NAME = "recurrent_scan__gqa_block_cached__mixer_channel_mlp__decode_kernel"
def f2u(x): return struct.unpack("<I", struct.pack("<f", x))[0]
def hx(x): return "0x%08x" % (x & 0xffffffff)

QBUF, HBUF, MBUF, OBUF, SBUF, STAMPS = 0x10000, 0x50000, 0x80000, 0x100000, 0x180000, 0x200000
WS_SIZE = 0x400000
QAREA, HAREA = 131072, 147456
FL = HAREA
TAGL, STATL, MLX, QIMG, HIMG, XIMG, PBUF = HAREA + 48, HAREA + 64, HAREA + 128, HAREA + 1024, HAREA + 2048, HAREA + 4096, HAREA + 8192
TB = 16384
OSTR = 528
MLOFF = 2304
TAGC = 0x9E3779B9
SPIN = 20479
LOG2E = 1.4426950408889634
M4 = "s_mov_b32 exec_lo, 0x000f000f\ns_mov_b32 exec_hi, 0x000f000f"
J, HEAD, HKV, B = "s52", "s53", "s54", "s55"
TAG, CNT, LOC = "s30", "s31", "s72"

HEADER = open("recurrent_scan__gqa_block_cached__mixer_channel_mlp__decode.s.ref").read().split("; Override launch")[0]

def gen(name=NAME, stamps=False, lite=False, kvf="nt", wf="nt", spin=SPIN, N=21, rot=1, slp=8, qdelay=4, mapping="mod",
        qlocal=3, s2delay=20, s3delay=1, pw1=8, pw2=12, pwo=40, csl=1, abl=0, lprio=3, aprio=2, pipe2=0, gran=1, burst=True, cpre=True, ilw=True, touch=False, kmaj=False, t3=48, mpipe=False, tq=7, t2=34, bar2=1, irot=1, Nhi=40, T=266, T0=1000, nb=4, lv=None, prew=0, light=False, lastbar=True, tch=0, gref=0, wolast=True, latebar=True, warm=1, padstep=192, compact=True, nset=2, cbar=False, fdelay=0, fback=0, odelay=0, probe=None):
    a = Asm()
    def pad(c, force=False):
        if warm & {'L': 1, 'C': 2, 'F': 4, 'Q': 8}[c]: a.pad(c, padstep, force)
    if lv is None: lv = [(None, N)] + ([(0, Nhi)] if Nhi not in (None, N) else [])
    adapt = len(lv) > 1
    if wolast: pwo = 64
    NMAX = max(n for _, n in lv)
    def stamp(k, val=None):
        if stamps or (lite and k == 0):
            if val is None:
                a(f"s_memrealtime s[98:99]\ns_waitcnt lgkmcnt(0)"); val = "s98"
            a(f"v_writelane_b32 v230, {val}, {k}")
    def flush_stamps():
        if not (stamps or lite): return
        stamp(0, "s96")
        a("s_mov_b64 exec, -1")
        a("s_getreg_b32 s64, hwreg(HW_REG_XCC_ID, 0, 4)\nv_writelane_b32 v230, s64, 15")
        if stamps: a("s_memtime s[98:99]\ns_waitcnt lgkmcnt(0)\ns_sub_u32 s98, s98, s100\nv_writelane_b32 v230, s98, 14")
        a("s_memrealtime s[98:99]\ns_waitcnt lgkmcnt(0)\nv_writelane_b32 v230, s98, 13")
        a(f"""s_lshl_b32 s64, s2, 3
        s_add_u32 s64, s64, s3
        s_lshl_b32 s64, s64, 7
        s_add_u32 s64, s64, {STAMPS}
        s_mov_b32 s48, s28
        s_mov_b32 s49, s29
        s_mov_b32 s50, {WS_SIZE}
        s_mov_b32 s51, 0x20000
        v_lshlrev_b32 v231, 2, v0
        s_mov_b32 exec_hi, 0
        buffer_store_dword v230, v231, s[48:51], s64 offen""")
    def end():
        flush_stamps(); a("s_endpgm")
    def srd(d, lo, off, size):
        if off is None:
            a(f"s_mov_b32 s{d}, s{lo}\ns_mov_b32 s{d+1}, s{lo+1}")
        else:
            a(f"s_add_u32 s{d}, s{lo}, {off}\ns_addc_u32 s{d+1}, s{lo+1}, 0")
        a(f"s_mov_b32 s{d+2}, {size}\ns_mov_b32 s{d+3}, 0x20000")
    def check(tags):
        for t in tags: a(f"v_cmpx_eq_u32 vcc, {TAG}, v{t}")
        a("s_cmp_eq_u64 exec, -1\ns_mov_b64 exec, -1")
    uid = [0]
    def ldswait(off, thr, cache="s56", sleep=csl, vt=20, cached=False):
        uid[0] += 1; u = uid[0]
        if cached: a(f"s_cmp_ge_i32 {cache}, {thr}\ns_cbranch_scc1 L_lw{u}_ok")
        a(f"""L_lw{u}:
        ds_read_b32 v{vt}, v21 offset:{off}
        s_waitcnt lgkmcnt(0)
        v_readfirstlane_b32 {cache}, v{vt}
        s_cmp_ge_i32 {cache}, {thr}
        s_cbranch_scc1 L_lw{u}_ok""")
        if sleep: a(f"s_sleep {sleep}")
        a(f"s_sub_u32 s71, s71, 1\ns_cbranch_scc0 L_lw{u}\ns_endpgm\nL_lw{u}_ok:")
    def setflag(off, val, vt=20):
        a(f"v_mov_b32 v{vt}, {val}\nds_write_b32 v21, v{vt} offset:{off}")
    def tr(s, t, base=96):
        r = base + (s * 4 + t) * 4
        for u in range(2): a(f"ds_read_b64_tr_b16 v[{r+2*u}:{r+2*u+1}], v{12+t} offset:{s*4096+u*512}")
    def tr_addr(area):
        a(f"""v_add_u32 v12, {area}, v7
        v_xor_b32 v13, 32, v12
        v_xor_b32 v14, 64, v12
        v_xor_b32 v15, 0x60, v12""")
    def trbase():
        a("""v_and_b32 v10, 1, v2
        v_bfe_u32 v7, v0, 3, 1
        v_lshl_add_u32 v7, v10, 1, v7
        v_lshlrev_b32 v7, 5, v7
        v_and_b32 v10, 3, v0
        v_lshl_add_u32 v7, v10, 3, v7
        v_bfe_u32 v10, v0, 2, 2
        v_lshl_add_u32 v7, v10, 7, v7
        v_lshl_add_u32 v7, v2, 10, v7""")
    def hjob(skip):
        a(f"""s_sub_u32 s58, {J}, 4
        s_lshl_b32 s58, s58, 5
        s_add_u32 s58, s58, {HEAD}
        s_cmp_ge_u32 s58, 112
        s_cbranch_scc1 {skip}
        s_and_b32 s57, s58, 3
        s_lshr_b32 s58, s58, 2""")
    def gettag():
        a(f"""ds_read_b64 v[22:23], v21 offset:{TAGL-FL}
        s_waitcnt lgkmcnt(0)
        v_readfirstlane_b32 {TAG}, v22
        v_readfirstlane_b32 {LOC}, v23""")

    a.raw(HEADER.rstrip("\n"))
    a.raw("; @launch grid=(256,1,1) block=(512,1,1) lds=163840")
    a.raw('.amdgcn_target "amdgcn-amd-amdhsa--gfx950"\n.text')
    a.raw(f".globl {name}\n.p2align 8\n.type {name},@function")
    a.label(name)
    a("""s_load_dwordx16 s[4:19], s[0:1], 0
    s_load_dwordx8 s[20:27], s[0:1], 64
    s_load_dwordx2 s[28:29], s[0:1], 96""")
    if adapt: a("s_memrealtime s[76:77]")
    if stamps or lite: a("s_memrealtime s[96:97]\ns_memtime s[100:101]")
    a(f"""s_cmp_ge_u32 s2, 256
    s_cbranch_scc1 L_end
    v_lshrrev_b32 v1, 6, v0
    v_and_b32 v0, 63, v0
    v_readfirstlane_b32 s3, v1
    v_lshrrev_b32 v2, 4, v0
    v_and_b32 v3, 15, v0
    v_mov_b32 v21, {FL}
    s_mov_b32 s71, 0x40000""")
    if mapping == "div": a(f"s_and_b32 {J}, s2, 7\ns_lshr_b32 {HEAD}, s2, 3")
    else: a(f"s_lshr_b32 {J}, s2, 5\ns_and_b32 {HEAD}, s2, 31")
    a(f"""s_and_b32 {HKV}, {HEAD}, 7
    s_lshr_b32 {B}, {HEAD}, 3
    s_cmp_eq_u32 s3, 0
    s_cbranch_scc1 L_isL""")
    if warm & 1:
        a("s_cmp_eq_u32 s3, 3\ns_cbranch_scc0 L_notL"); a.warm('L')
    a("s_branch L_notL\nL_isL:")
    NN, PV, HR, OA, OB, RR, CV = "s59", "s60", "s61", "s63", "s64", "s65", "s66"
    a(f"""s_setprio {lprio}
    v_mov_b64 v[24:25], 0
    v_mov_b64 v[26:27], 0
    ds_write_b128 v21, v[24:27]
    ds_write_b128 v21, v[24:27] offset:32
    v_mov_b32 v28, 0
    v_mov_b32 v25, 1
    v_mov_b32 v26, 2
    v_mov_b32 v27, 3
    ds_write_b128 v21, v[24:27] offset:16
    v_lshrrev_b32 v5, 3, v0
    v_and_b32 v6, 7, v0
    v_and_b32 v10, 1, v2
    v_lshlrev_b32 v10, 1, v10
    v_xor_b32 v6, v6, v10
    v_lshlrev_b32 v6, 4, v6
    v_lshl_add_u32 v8, v5, 13, v6
    v_xor_b32 v9, 64, v8
    v_lshlrev_b32 v4, 4, v0
    v_lshlrev_b32 v16, 1, v2
    v_xor_b32 v16, v16, v3
    v_lshlrev_b32 v16, 4, v16
    v_lshl_add_u32 v16, v2, 8, v16
    v_xor_b32 v17, 0x80, v16
    v_xor_b32 v18, 16, v16
    v_xor_b32 v19, 0x90, v16
    s_lshl_b32 s58, {B}, 13
    s_add_u32 s58, s58, {J}
    s_lshl_b32 s57, {HKV}, 3
    s_add_u32 s58, s58, s57
    s_lshl_b32 s58, s58, 7
    s_lshl_b32 s67, {HEAD}, 21
    s_lshl_b32 s57, {J}, 18
    s_add_u32 s67, s67, s57
    s_mov_b32 s62, 0
    s_mov_b32 m0, {QAREA}
    s_waitcnt lgkmcnt(0)""")
    if not latebar: a("s_barrier")
    srd(40, 10, "s58", 127*8192+128)
    if compact and not abl & (2 | 128):
        a(f"""L_wq:
        buffer_load_dwordx4 v8, s[40:43], s62 offen {wf} lds
        s_add_u32 m0, m0, 1024
        s_add_u32 s62, s62, 0x10000
        buffer_load_dwordx4 v9, s[40:43], s62 offen {wf} lds
        s_add_u32 m0, m0, 1024
        s_add_u32 s62, s62, 0x10000
        s_cmp_lt_u32 s62, 0x100000
        s_cbranch_scc1 L_wq""")
    for k in range(0 if (abl & (2 | 128) or compact) else 16):
        a(f"buffer_load_dwordx4 v{8+(k&1)}, s[40:43], s62 offen {wf} lds")
        if k < 15: a("s_add_u32 m0, m0, 1024\ns_add_u32 s62, s62, 0x10000")
    a(f"s_mov_b32 m0, {XIMG}")
    srd(44, 4, None, 4096)
    for k in range(4): a(f"buffer_load_dwordx4 v4, s[44:47], 0 offen offset:{k*1024} lds")
    a(f"""s_add_u32 s32, s6, s67
    s_addc_u32 s33, s7, 0
    s_add_u32 s34, s8, s67
    s_addc_u32 s35, s9, 0
    s_mov_b32 s46, 0x40000
    s_mov_b64 s[44:45], s[32:33]
    s_lshr_b32 {RR}, s2, 3
    s_and_b32 {RR}, {RR}, {7 if rot else 0}""")
    if irot: a(f"s_lshl_b32 s57, {J}, 3\ns_or_b32 {RR}, {RR}, s57")
    a(f"s_lshl_b32 {RR}, {RR}, 12")
    if compact:
        a(f"s_mov_b32 s68, 0\nL_burst:\ns_xor_b32 {OA}, {RR}, s68\ns_xor_b32 {OB}, {OA}, 4096\ns_mov_b32 m0, s68")
        for k in range(8):
            if k == 4: a("s_add_u32 m0, s68, 4096")
            a(f"buffer_load_dwordx4 v{16+(k&3)}, s[44:47], {(OA,OB)[k//4]} offen offset:{(k&3)*1024} {kvf} lds")
        a(f"s_add_u32 s68, s68, 8192\ns_cmp_lt_u32 s68, {nb << 13}\ns_cbranch_scc1 L_burst")
    for n in range(0 if compact else nb):
        a(f"s_xor_b32 {OA}, {RR}, {n << 13}\ns_xor_b32 {OB}, {OA}, 4096\ns_mov_b32 m0, {n << 13}")
        for k in range(8):
            if k == 4: a(f"s_mov_b32 m0, {(n << 13) + 4096}")
            a(f"buffer_load_dwordx4 v{16+(k&3)}, s[44:47], {(OA,OB)[k//4]} offen offset:{(k&3)*1024} {kvf} lds")
    a(f"""s_mov_b32 {NN}, {nb}
    s_mov_b32 {PV}, 1
    s_mov_b32 {HR}, {(1 << nb) - 1}
    s_mov_b32 s78, s76
    s_mov_b32 s79, {T0 + nb*T}
    v_mov_b32 v20, 1""")
    if latebar: a("s_barrier")
    a(f"""s_waitcnt vmcnt({8*nb})
    ds_write_b32 v21, v20""")
    def publish(age):
        a(f"""s_lshr_b32 s58, {HR}, {age}
        s_bcnt1_i32_b32 s58, s58
        s_add_u32 {PV}, {PV}, s58
        s_and_b32 {HR}, {HR}, {(1 << age) - 1}
        v_mov_b32 v20, {PV}
        ds_write_b32 v21, v20""")
    def mode(lbl):
        if adapt:
            a("""s_sub_u32 s57, s76, s78
            s_mul_i32 s57, s57, 10
            s_sub_u32 s57, s57, s79
            s_memrealtime s[76:77]""")
            for i in range(len(lv) - 1, 0, -1):
                a(f"s_cmp_ge_i32 s57, {lv[i][0]}\ns_cbranch_scc1 {lbl}{i}")
    def cmin(): a(f"v_min3_i32 v23, v24, v25, v26\nv_min_i32 v23, v23, v27\nv_readfirstlane_b32 {CV}, v23")
    a("L_step:")
    pad('L', True)
    a(f"""s_sub_u32 s67, {NN}, 15
    s_waitcnt lgkmcnt(0)""")
    if gref: a("v_readfirstlane_b32 s80, v28\ns_cmp_eq_u32 s80, 0\ns_cselect_b32 s78, s78, s80")
    a("""s_cmp_gt_i32 s67, 0
    s_cbranch_scc0 L_free""")
    cmin()
    a(f"""s_cmp_ge_i32 {CV}, s67
    s_cbranch_scc0 L_stall
    L_free:
    s_and_b32 {OA}, {NN}, 31
    s_lshl_b32 {OA}, {OA}, 13
    s_xor_b32 {OA}, {OA}, {RR}
    s_xor_b32 {OB}, {OA}, 4096
    s_and_b32 s68, {NN}, 15
    s_lshl_b32 s68, s68, 13
    s_bitcmp1_b32 {NN}, 5
    s_cselect_b64 s[44:45], s[34:35], s[32:33]
    s_add_u32 {NN}, {NN}, 1
    s_mov_b32 m0, s68""")
    def kvbody(n):
        for k in range(8):
            if k == 4: a("s_add_u32 m0, s68, 4096")
            a(f"s_waitcnt vmcnt({n-1})")
            if k == (n - 1) % 8: publish((n - 1) // 8)
            a(f"buffer_load_dwordx4 v{16+(k&3)}, s[44:47], {(OA,OB)[k//4]} offen offset:{(k&3)*1024} {kvf} lds")
            if k == 6: a("ds_read_b128 v[24:27], v21 offset:16")
            if k == 5 and gref: a("ds_read_b32 v28, v21 offset:40")
    mode("L_kvhi")
    kvbody(lv[0][1])
    a("L_kvj:")
    pad('L', True)
    a(f"""    s_lshl_b32 {HR}, {HR}, 1
    s_or_b32 {HR}, {HR}, 1
    s_add_u32 s79, s79, {T}
    s_cmp_eq_u32 {NN}, {pw1}
    s_cbranch_scc1 L_w1
    s_cmp_eq_u32 {NN}, {pwo}
    s_cbranch_scc1 L_wo
    s_cmp_lt_u32 {NN}, 64
    s_cbranch_scc1 L_step""")
    a("L_drain:")
    stamp(1)
    AM = (NMAX + 7) // 8
    for q in range(AM - 1, -1, -1):
        pad('L')
        if wolast and q == 1: continue
        a(f"s_waitcnt vmcnt({8*q})")
        if q in ((0, 2) if wolast else (0,)) and lastbar: a("s_barrier")
        else: publish(q)
    a("s_waitcnt lgkmcnt(0)")
    if probe:
        a("""s_memrealtime s[80:81]
        s_mov_b32 s84, s26
        s_mov_b32 s85, s27
        s_mov_b32 s86, 256
        s_mov_b32 s87, 0x20000
        s_and_b32 s82, s2, 7
        s_lshl_b32 s82, s82, 2
        s_waitcnt lgkmcnt(0)
        v_mov_b32 v30, 0
        v_mov_b32 v31, s78
        v_mov_b32 v32, s80
        s_mov_b64 exec, 1
        s_cmp_lt_u32 s2, 8
        s_cbranch_scc0 L_pr1
        buffer_store_dword v31, v30, s[84:87], s82 offen sc1
        L_pr1:
        s_and_b32 s83, s2, 0x18
        s_cbranch_scc1 L_pr2
        buffer_atomic_umax v32, v30, s[84:87], s82 offen offset:128
        L_pr2:
        s_waitcnt vmcnt(0)""")
    stamp(2)
    end()
    for i in range(1, len(lv)):
        a(f"L_kvhi{i}:"); pad('L', True); kvbody(lv[i][1]); a("s_branch L_kvj")
    a("L_stall:")
    for q in range(AM - 1, -1, -1):
        pad('L')
        a(f"s_waitcnt vmcnt({8*q})"); publish(q)
        a("ds_read_b128 v[24:27], v21 offset:16\ns_waitcnt lgkmcnt(0)")
        cmin()
        a(f"""s_cmp_ge_i32 {CV}, s67
        s_cbranch_scc1 L_free""")
    a("s_sleep 1\ns_sub_u32 s71, s71, 1\ns_cbranch_scc0 L_stall\ns_endpgm")
    def wbody(n):
        for k in range(8):
            pad('L')
            a(f"s_waitcnt vmcnt({n-1})")
            if k == (n - 1) % 8: publish((n - 1) // 8)
            a(f"buffer_load_dwordx4 v{8+(k&1)}, s[40:43], s62 offen {wf} lds")
            a("s_add_u32 m0, m0, 1024\ns_add_u32 s62, s62, s70")
    a("L_wtile:\ns_waitcnt lgkmcnt(0)")
    mode("L_whi")
    wbody(lv[0][1])
    a(f"""L_wj:
    s_lshl_b32 {HR}, {HR}, 1
    s_add_u32 s79, s79, {T}
    s_sub_u32 s69, s69, 1
    s_cbranch_scc0 L_wtile
    s_cmp_lt_u32 {NN}, 64
    s_cbranch_scc1 L_step
    s_branch L_drain""")
    for i in range(1, len(lv)):
        a(f"L_whi{i}:"); wbody(lv[i][1]); a("s_branch L_wj")
    a("""    L_w1:""")
    if abl & (2 | 256): a("s_branch L_step")
    a(f"s_cmp_lt_u32 {J}, 4\ns_cbranch_scc1 L_w2")
    hjob("L_step")
    a(f"""s_mul_i32 s57, s57, 3584
    s_add_u32 s58, s58, s57
    s_lshl_b32 s58, s58, 7
    v_mul_u32_u24 v8, 3584, v5
    v_add_u32 v8, v8, v6
    s_mov_b32 s70, {8*3584}""")
    srd(40, 16, "s58", 127*3584+128)
    a(f"""s_branch L_wmid
    L_w2:
    s_lshl_b32 s57, {B}, 2
    s_add_u32 s57, s57, {J}
    s_mul_i32 s57, s57, {112*1024}
    s_lshl_b32 s58, {HKV}, 7
    s_add_u32 s57, s57, s58
    v_lshl_add_u32 v8, v5, 10, v6
    s_mov_b32 s70, 8192""")
    srd(40, 20, "s57", 111*1024+128)
    a("L_wmid:")
    pad('L', True)
    if not abl & 1: ldswait(8, 1, cache="s69")
    a(f"""v_xor_b32 v9, 64, v8
    s_mov_b32 s62, 0
    s_mov_b32 s69, 1
    s_mov_b32 m0, {QAREA}""")
    a("s_branch L_wtile\nL_wo:")
    if abl & (2 | 512): a("s_branch L_step")
    if not abl & 1: ldswait(12, 1, cache="s70")
    a(f"""s_lshl_b32 s57, {HKV}, 2
    s_add_u32 s57, s57, {B}
    s_lshl_b32 s57, s57, 17
    s_lshl_b32 s58, {J}, 7
    s_add_u32 s57, s57, s58
    v_lshl_add_u32 v8, v5, 10, v6
    v_xor_b32 v9, 64, v8
    s_mov_b32 s62, 0
    s_mov_b32 s69, 1
    s_mov_b32 s70, 8192
    s_mov_b32 m0, {QAREA}""")
    pad('L', True)
    srd(40, 12, "s57", 127*1024+128)
    a("s_branch L_wtile")

    a("L_notL:")
    if not latebar: a("s_barrier")
    a("""s_cmp_ge_u32 s3, 4
    s_cbranch_scc1 L_C""")
    if abl & 1:
        a("s_waitcnt lgkmcnt(0)"); end()
    if latebar: a("s_cmp_eq_u32 s3, 1\ns_cbranch_scc1 L_nb0\ns_barrier\nL_nb0:")
    a(f"s_setprio {aprio}")
    trbase()
    a("""v_and_b32 v1, 7, v0
    v_lshlrev_b32 v1, 3, v1
    v_lshl_add_u32 v1, v2, 1, v1
    v_lshlrev_b32 v30, 3, v3
    v_lshlrev_b32 v29, 4, v0
    s_waitcnt lgkmcnt(0)""")
    srd(40, 28, None, WS_SIZE)
    a(f"""s_cmp_eq_u32 s3, 3
    s_cbranch_scc1 L_A2
    s_mov_b32 s57, {B}
    s_mov_b32 s59, 1
    s_cmp_eq_u32 s3, 1
    s_cbranch_scc0 L_A1
    s_load_dword {TAG}, s[28:29], 0
    L_qh:
    s_mov_b32 s60, 0x3f803f80
    s_mov_b32 s61, 0x3f803f80""")
    for r in range(32, 96, 2): a(f"v_mov_b64 v[{r}:{r+1}], s[60:61]")
    tr_addr(str(QAREA))
    a(f"""v_lshlrev_b32 v4, 10, v3
    v_lshl_add_u32 v4, v2, 4, v4
    v_add_u32 v4, {XIMG}, v4
    s_lshl_b32 s62, s57, 8""")
    for gq in range(4):
        a(f"v_add_u32 v{24+gq}, s62, v4")
        if gq < 3: a("s_add_u32 s62, s62, 256\ns_and_b32 s62, s62, 0x3ff")
    a(f"""v_and_b32 v10, 3, v3
    v_lshlrev_b32 v17, 2, v10
    v_add_u32 v17, 64, v17
    v_lshlrev_b32 v11, 16, v10
    s_lshl_b32 s62, s57, 11
    s_lshl_b32 s60, {HKV}, 13
    s_add_u32 s62, s62, s60
    s_add_u32 s62, s62, {QBUF}
    s_mov_b32 s60, {J}
    s_cmp_eq_u32 s3, 1
    s_cbranch_scc1 L_q1
    v_mul_u32_u24 v11, 7168, v10
    s_mul_i32 s62, s57, 28672
    s_add_u32 s62, s62, {HBUF}
    s_mov_b32 s60, s58
    L_q1:
    v_lshrrev_b32 v10, 2, v3
    v_lshl_add_u32 v11, v10, 6, v11
    v_lshl_add_u32 v16, v2, 4, v11
    s_lshl_b32 s60, s60, 8
    s_add_u32 s73, s62, s60
    s_getreg_b32 s63, hwreg(HW_REG_XCC_ID, 0, 4)""")
    if latebar: a("s_cmp_eq_u32 s3, 1\ns_cbranch_scc0 L_nb1\ns_barrier\nL_nb1:")
    ldswait(0, "s59", sleep=0)
    stamp(2)
    a(M4)
    for s in range(4): a(f"ds_read_b128 v[{32+4*s}:{35+4*s}], v24 offset:{64*s}")
    a("s_mov_b64 exec, -1")
    for t in range(4): tr(0, t)
    def gram(s):
        c = "0" if s == 0 else "v[160:163]"
        return f"v_mfma_f32_16x16x32_bf16 v[160:163], v[{32+4*s}:{35+4*s}], v[{32+4*s}:{35+4*s}], {c}"
    def dmf(s, t):
        c = "0" if s == 0 else f"v[{164+4*t}:{167+4*t}]"
        r = 96 + (s*4+t)*4
        return f"v_mfma_f32_16x16x32_bf16 v[{164+4*t}:{167+4*t}], v[{r}:{r+3}], v[{32+4*s}:{35+4*s}], {c}"
    for s in range(4):
        a("s_waitcnt lgkmcnt(0)")
        if s < 3:
            a(M4)
            for q in range(4): a(f"ds_read_b128 v[{48+16*s+4*q}:{51+16*s+4*q}], v{25+s} offset:{64*q}")
            a("s_mov_b64 exec, -1")
            for t in range(4): tr(s+1, t)
        else:
            a(f"s_sub_u32 s60, s3, 1\ns_lshl_b32 s60, s60, 2\nv_add_u32 v18, s60, v21\nv_mov_b32 v19, 1\nds_write_b32 v18, v19 offset:8")
        for q in range(4): a(gram(4*s+q))
        if s < 3:
            for t in range(4): a(dmf(s, t))
    a("ds_bpermute_b32 v19, v17, v160")
    for t in range(4): a(dmf(3, t))
    a(f"""s_cmp_eq_u32 s3, 1
    s_cbranch_scc0 L_q2
    s_add_u32 {TAG}, {TAG}, {hx(TAGC)}
    L_q2:
    s_waitcnt lgkmcnt(0)
    v_mul_f32 v24, {hx(f2u(-1/512))}, v19
    v_mov_b32 v98, {TAG}
    v_mov_b32 v99, s63""")
    for r in range(164, 180): a(f"v_fmac_f32_dpp v{r}, v{r}, v24 row_shl:4 row_mask:0xf bank_mask:0xf bound_ctrl:1")
    a("v_cvt_pk_bf16_f32 v96, v164, v165\nv_cvt_pk_bf16_f32 v97, v166, v167")
    for t in range(1, 4): a(f"v_cvt_pk_bf16_f32 v{164+4*t}, v{164+4*t}, v{165+4*t}\nv_cvt_pk_bf16_f32 v{165+4*t}, v{166+4*t}, v{167+4*t}")
    for t in range(1, 4):
        a(f"v_mov_b32_dpp v96, v{164+4*t} row_shr:{4*t} row_mask:0xf bank_mask:{hex(1<<t)}")
        a(f"v_mov_b32_dpp v97, v{165+4*t} row_shr:{4*t} row_mask:0xf bank_mask:{hex(1<<t)}")
    far = "buffer_store_dwordx4 v[96:99], v16, s[40:43], s73 offen sc1"
    a(f"""s_cmp_eq_u32 s3, 1
    s_cbranch_scc1 L_qnear
    {far}""")
    stamp(3)
    end()
    a("L_qnear:")
    if abl & 2048:
        setflag(4, 1); setflag(12, 1); end()
    a("buffer_store_dwordx4 v[96:99], v16, s[40:43], s73 offen" if qlocal else far)
    stamp(3)
    a(f"""v_cmp_eq_u32 vcc, 1, v3
    v_cndmask_b32 v18, v160, v161, vcc
    v_cmp_eq_u32 vcc, 2, v3
    v_cndmask_b32 v18, v18, v162, vcc
    v_cmp_eq_u32 vcc, 3, v3
    v_cndmask_b32 v18, v18, v163, vcc
    s_mov_b32 s61, {hx(f2u(1e-5))}
    v_mul_f32 v18, {hx(f2u(1/512))}, v18
    v_fma_f32 v18, -v24, v24, v18
    v_max_f32 v18, 0, v18
    v_add_f32 v26, s61, v18
    v_rsq_f32 v26, v26
    v_lshlrev_b32 v10, 3, v0
    v_mul_f32 v27, v26, v26
    v_fma_f32 v27, v27, v18, s61
    v_rsq_f32 v27, v27
    v_add_u32 v11, {STATL}, v10
    v_add_u32 v10, {QIMG}, v10
    v_mul_f32 v27, v26, v27
    v_mul_f32 v26, {hx(f2u(128**-0.5 * LOG2E))}, v26
    s_mov_b64 exec, 15
    ds_write_b64 v11, v[26:27]
    s_mov_b64 exec, -1
    s_lshl_b32 s62, {HEAD}, 13
    s_add_u32 s62, s62, {QBUF}
    s_add_u32 s61, s62, 4096
    s_mov_b32 s58, 0x3f80
    s_mov_b32 s59, 0x3f800000""")
    if tq: ldswait(0, tq, sleep=2)
    elif qdelay: a(f"s_sleep {qdelay}")
    a(f"s_mov_b32 {CNT}, {spin}\nL_pq:")
    for i in range(8): a(f"buffer_load_dwordx4 v[{100+4*i}:{103+4*i}], v29, s[40:43], {('s62','s61')[i//4]} offen offset:{(i%4)*1024} sc1")
    a("s_waitcnt vmcnt(0)")
    check([102 + 4*i for i in range(8)])
    a("s_cbranch_scc1 L_pq_ok")
    if qlocal:
        a(f"""s_cmp_eq_u32 {CNT}, {spin - qlocal + 1}
        s_cbranch_scc0 L_pq_n
        {far}
        L_pq_n:""")
    a(f"""s_sub_u32 {CNT}, {CNT}, 1
    s_cbranch_scc0 L_pq
    L_pq_ok:""")
    if stamps: a(f"s_sub_u32 s98, {spin}, {CNT}"); stamp(5, "s98")
    for kq in range(4):
        for x in range(2):
            for d in range(2):
                for h in range(2):
                    acc = 132 + x*4 + d*2 + h
                    a(f"v_dot2_f32_bf16 v{acc}, v{100 + (kq*2+x)*4 + d}, s{58+h}, " + ("0" if kq == 0 else f"v{acc}"))
    for i in range(4): a(f"v_cvt_pk_bf16_f32 v{132+i}, v{132+2*i}, v{133+2*i}")
    a("""ds_write_b64 v10, v[132:133]
    ds_write_b64 v10, v[134:135] offset:512""")
    for i in range(8): a(f"v_cmpx_eq_u32 vcc, s63, v{103+4*i}")
    a(f"""s_cmp_eq_u64 exec, -1
    s_mov_b64 exec, -1
    s_cselect_b32 {LOC}, 1, 0""")
    if qlocal: a(f"s_cbranch_scc1 L_qloc\n{far}\nL_qloc:")
    a(f"""v_mov_b32 v26, {TAG}
    v_mov_b32 v27, {LOC}
    ds_write_b64 v21, v[26:27] offset:{TAGL-FL}""")
    setflag(4, 1)
    a(f"s_cmp_lt_u32 {J}, 4\ns_cbranch_scc1 L_hash")
    hjob("L_noh")
    a("s_branch L_hash\nL_noh:")
    setflag(12, 1)
    a("L_hash:")
    stamp(4)
    a(f"""s_cmp_lt_u32 {J}, 2
    s_cbranch_scc0 L_fin""")
    srd(44, 22, None, 1024); srd(48, 4, None, 4096)
    a(f"""s_lshl_b32 s57, {HKV}, 1
    s_add_u32 s57, s57, {J}
    s_lshl_b32 s58, {B}, 4
    s_add_u32 s58, s58, s57
    s_lshl_b32 s65, s58, 6
    s_lshl_b32 s57, s57, 6
    s_mov_b32 s74, 0x3f80
    s_mov_b32 s75, 0x3f800000
    buffer_load_ushort v28, v1, s[44:47], s57 offen
    buffer_load_ushort v4, v1, s[48:51], s65 offen
    s_lshl_b32 s64, s58, 12
    s_lshr_b32 s60, s64, 1
    s_add_u32 s60, s60, {MBUF}""")
    if not abl & 16:
        ldswait(0, t3, sleep=16)
        a(f"s_mov_b32 {CNT}, {spin}\nL_pm:")
        for i in range(2): a(f"buffer_load_dwordx4 v[{96+4*i}:{99+4*i}], v29, s[40:43], s60 offen offset:{i*1024} sc1")
        a("s_waitcnt vmcnt(0)")
        check([97 + 2*i for i in range(4)])
        a(f"""s_cbranch_scc1 L_pm_ok
        s_sleep {slp}
        s_sub_u32 {CNT}, {CNT}, 1
        s_cbranch_scc0 L_pm
        L_pm_ok:
""")
        for i in range(2):
            for d in range(2):
                for h in range(2): a(f"v_dot2_f32_bf16 v{112+2*d+h}, v{96+4*i+2*d}, s{74+h}, " + ("0" if i == 0 else f"v{112+2*d+h}"))
        a("s_nop 1\ns_call_b64 s[62:63], L_pg_ok")
    a(f"""s_waitcnt vmcnt(0)
    v_lshlrev_b32 v28, 16, v28
    v_lshlrev_b32 v4, 16, v4
    v_add_f32 v28, v28, v112
    v_mul_f32 v10, {hx(f2u(-LOG2E))}, v28
    v_exp_f32 v10, v10
    s_add_u32 s60, s64, {SBUF}
    v_add_f32 v10, 1.0, v10
    v_rcp_f32 v10, v10
    v_mov_b32 v25, {TAG}
    v_mul_f32 v28, v28, v10""")
    srd(44, 24, None, 4096)
    if prew & 2:
        for i in range(4): a(f"buffer_load_dwordx4 v[{96+4*i}:{99+4*i}], v29, s[40:43], s60 offen offset:{i*1024} sc1")
        a("s_waitcnt vmcnt(0)")
    stamp(6)
    if warm & 4: a.warm('F')
    if lastbar: a("s_barrier")
    if wolast: a("s_barrier")
    a("s_barrier")
    if abl & 32: a("s_branch L_fin")
    if fdelay: a(f"s_sleep {fdelay}")
    a("""s_call_b64 s[62:63], L_gather
    v_fma_f32 v28, v28, v112, v4
    v_cvt_pk_bf16_f32 v28, v28, v28
    s_mov_b32 exec_lo, 0x00ff00ff
    s_mov_b32 exec_hi, 0x00ff00ff
    buffer_store_short v28, v1, s[44:47], s65 offen""")
    stamp(11)
    pad('F', True)
    a("""s_cmp_eq_u32 s2, 0
    s_cbranch_scc0 L_fin
    v_mov_b32 v10, 0
    s_mov_b64 exec, 1
    buffer_store_dword v25, v10, s[40:43], 0 offen sc1""")
    if probe:
        kind, K = probe
        a("""s_memrealtime s[92:93]
        s_sleep 40
        s_load_dwordx8 s[76:83], s[26:27], 0 glc
        s_load_dwordx8 s[84:91], s[26:27], 128 glc
        s_waitcnt lgkmcnt(0)""")
        def red(op, dst, base):
            a(f"s_mov_b32 {dst}, s{base}")
            for i in range(1, 8): a(f"{op} {dst}, {dst}, s{base+i}")
        red("s_min_u32", "s57", 76); red("s_max_u32", "s58", 76); red("s_min_u32", "s59", 84); red("s_max_u32", "s60", 84)
        a({"skew": "s_sub_u32 s61, s58, s57", "span": "s_sub_u32 s61, s92, s57", "zero": "s_mov_b32 s61, 0",
           "tail": "s_sub_u32 s61, s92, s60", "endspread": "s_sub_u32 s61, s60, s59", "stream": "s_sub_u32 s61, s60, s58",
           "s70": "s_sub_u32 s61, s83, s76\ns_add_u32 s61, s61, 100", "s20": "s_sub_u32 s61, s78, s76\ns_add_u32 s61, s61, 100",
           "s40": "s_sub_u32 s61, s80, s76\ns_add_u32 s61, s61, 100", "s10": "s_sub_u32 s61, s77, s76\ns_add_u32 s61, s61, 100"}[kind])
        a(f"""s_min_u32 s61, s61, 5000
        s_mul_i32 s61, s61, {K}
        s_add_u32 s61, s61, s92
        s_add_u32 s61, s61, 300
        L_prw:
        s_memrealtime s[92:93]
        s_waitcnt lgkmcnt(0)
        s_sub_u32 s57, s92, s61
        s_cmp_lt_i32 s57, 0
        s_cbranch_scc1 L_prw""")
    a("""
    L_fin:""")
    flush_stamps()
    a("L_end:\ns_endpgm")
    a("L_A1:")
    if abl & 1024:
        ldswait(4, 1, sleep=8); setflag(12, 1); a("s_branch L_fin")
    hjob("L_fin")
    ldswait(4, 1, sleep=8)
    gettag()
    a(f"s_mov_b32 s59, {pw1+2}\ns_branch L_qh")
    a("L_A2:")
    if tch:
        a(f"""v_mov_b32 v11, 0
        s_mov_b64 exec, 1
        s_lshl_b32 s61, {HEAD}, 21""")
        srd(32, 8, "s61", 1 << 21)
        a("buffer_load_dword v40, v11, s[32:35], 0 offen nt")
        if tch & 2:
            for lo, size in ((16, 512*3584), (20, 1792*1024), (12, 4096*1024)):
                srd(32, lo, None, size)
                a(f"s_lshl_b32 s61, {HKV}, 19" if lo == 12 else "s_mov_b32 s61, 0")
                a(f"buffer_load_dword v{40+lo}, v11, s[32:35], s61 offen nt")
        a("s_mov_b64 exec, -1")
    if gref:
        a(f"""s_cmp_lt_u32 s2, 8
        s_cbranch_scc0 L_noref
        s_atomic_umax s76, s[26:27], 0
        L_noref:""")
        ldswait(0, gref, sleep=8)
        a("""s_load_dword s80, s[26:27], 0
        s_waitcnt lgkmcnt(0)
        s_sub_u32 s81, s80, s76
        s_cmp_lt_u32 s81, 500
        s_cselect_b32 s80, s80, s76""")
        setflag(40, "s80")
    a(f"s_cmp_lt_u32 {J}, 4\ns_cbranch_scc0 L_fin")
    if abl & 16:
        ldswait(4, 1, sleep=8); setflag(12, 1); a("s_branch L_fin")
    srd(44, 18, None, 3584)
    a(f"""s_lshl_b32 s66, {B}, 2
    s_add_u32 s66, s66, {J}
    s_mul_i32 s57, s66, 224
    buffer_load_dwordx2 v[24:25], v30, s[44:47], s57 offen
    buffer_load_dwordx2 v[26:27], v30, s[44:47], s57 offen offset:128
    v_mov_b32 v11, 7168
    v_lshlrev_b32 v10, 4, v3
    v_mad_u32_u24 v10, v2, v11, v10
    v_min_u32 v16, 11, v3
    v_lshlrev_b32 v16, 4, v16
    v_mad_u32_u24 v11, v2, v11, v16
    s_lshl_b32 s57, s57, 1
    s_add_u32 s57, s57, {HBUF}
    s_add_u32 s58, s57, 28672
    s_add_u32 s59, s58, 28672
    s_add_u32 s60, s59, 28672""")
    tr_addr(str(QAREA))
    ldswait(4, 1, sleep=8)
    gettag()
    ldswait(0, pw1 + 2, sleep=8)
    n = 0
    for s in range(4):
        for t in range(4):
            if n >= 14: a("s_waitcnt lgkmcnt(12)")
            tr(s, t); n += 2
    a(f"v_lshlrev_b32 v28, 3, v2\nv_add_u32 v28, {STATL+4}, v28\nds_read_b32 v28, v28\ns_waitcnt lgkmcnt(0)")
    setflag(12, 1)
    ldswait(0, t2, sleep=16)
    a(f"s_mov_b32 {CNT}, {spin}\nL_ph:")
    for x in range(2):
        for i in range(4): a(f"buffer_load_dwordx4 v[{32+16*x+4*i}:{35+16*x+4*i}], v{10+x}, s[40:43], s{57+i} offen offset:{256*x} sc1")
    a("s_waitcnt vmcnt(0)")
    check([34 + 4*i for i in range(8)])
    a(f"""s_cbranch_scc1 L_ph_ok
    s_sleep {slp}
    s_sub_u32 {CNT}, {CNT}, 1
    s_cbranch_scc0 L_ph
    L_ph_ok:
    s_mov_b32 s58, 0x3f80
    s_mov_b32 s59, 0x3f800000""")
    for x in range(2):
        for d in range(2):
            for h in range(2): a(f"v_dot2_f32_bf16 v{72+x*4+d*2+h}, v{24+2*x+d}, s{58+h}, 0")
    for kq in range(4):
        for x in range(2):
            for d in range(2):
                for h in range(2): a(f"v_dot2_f32_bf16 v{64+x*4+d*2+h}, v{32+16*x+4*kq+d}, s{58+h}, " + ("0" if kq == 0 else f"v{64+x*4+d*2+h}"))
    for i in range(8): a(f"v_fma_f32 v{64+i}, v{64+i}, v28, v{72+i}")
    k1 = -2 * LOG2E * 0.7978845608028654
    a(f"s_mov_b32 s58, {hx(f2u(k1*0.044715))}\nv_mov_b32 v28, {hx(f2u(k1))}")
    for i in range(8): a(f"v_mul_f32 v{72+i}, v{64+i}, v{64+i}")
    for i in range(8): a(f"v_fma_f32 v{72+i}, v{72+i}, s58, v28")
    for i in range(8): a(f"v_mul_f32 v{72+i}, v{72+i}, v{64+i}")
    for i in range(8): a(f"v_exp_f32 v{72+i}, v{72+i}")
    for i in range(8): a(f"v_add_f32 v{72+i}, 1.0, v{72+i}")
    for i in range(8): a(f"v_rcp_f32 v{72+i}, v{72+i}")
    for i in range(8): a(f"v_mul_f32 v{64+i}, v{64+i}, v{72+i}")
    for i in range(4): a(f"v_cvt_pk_bf16_f32 v{64+i}, v{64+2*i}, v{65+2*i}")
    a(f"""v_cmp_gt_u32 vcc, 12, v3
    v_lshl_add_u32 v10, v2, 8, v30
    v_add_u32 v10, {HIMG}, v10
    v_cndmask_b32 v66, 0, v66, vcc
    v_cndmask_b32 v67, 0, v67, vcc
    v_and_b32 v11, 3, v0
    v_lshlrev_b32 v11, 8, v11
    v_lshl_add_u32 v11, v2, 4, v11
    v_add_u32 v11, {HIMG}, v11
    ds_write_b64 v10, v[64:65]
    ds_write_b64 v10, v[66:67] offset:128""")
    for s in range(4): a(f"ds_read_b128 v[{32+4*s}:{35+4*s}], v11 offset:{64*s}")
    a(f"""s_lshl_b32 s57, {HKV}, 12
    s_lshl_b32 s58, s66, 7
    s_add_u32 s57, s57, s58
    s_add_u32 s57, s57, {MBUF}
    v_lshlrev_b32 v31, 2, v3
    v_and_b32 v16, 1, v2
    v_lshl_add_u32 v31, v16, 6, v31
    v_lshrrev_b32 v16, 1, v2
    v_lshl_add_u32 v31, v16, 11, v31
    s_waitcnt lgkmcnt(0)""")
    for s in range(4):
        for t in range(4):
            c = "0" if s == 0 else f"v[{160+4*t}:{163+4*t}]"
            r = 96 + (s*4+t)*4
            a(f"v_mfma_f32_16x16x32_bf16 v[{160+4*t}:{163+4*t}], v[{32+4*s}:{35+4*s}], v[{r}:{r+3}], {c}")
    for b in range(4): a(f"v_mov_b32 v{65+2*b}, {TAG}")
    for b in range(4): a(f"v_mov_b32 v{64+2*b}, v{160+b}")
    for t in range(1, 4):
        for b in range(4): a(f"v_mov_b32_dpp v{64+2*b}, v{160+4*t+b} quad_perm:[0,1,2,3] row_mask:{hex(1<<t)} bank_mask:0xf")
    for b in range(4): a(f"v_mov_b32_dpp v{72+b}, v{64+2*b} quad_perm:[1,0,3,2] row_mask:0xf bank_mask:0xf")
    for b in range(4): a(f"v_cvt_pk_bf16_f32 v{64+2*b}, v{64+2*b}, v{72+b}")
    a("s_mov_b32 exec_lo, 0x55555555\ns_mov_b32 exec_hi, 0x55555555")
    def mstores(fl):
        for b in range(4):
            a(f"buffer_store_dwordx2 v[{64+2*b}:{65+2*b}], v31, s[40:43], s57 offen {fl}")
            if b < 3: a("s_add_u32 s57, s57, 32768")
    stamp(6)
    a(f"s_cmp_eq_u32 {LOC}, 1\ns_cbranch_scc0 L_mfar")
    mstores("")
    a("s_branch L_fin\nL_mfar:")
    mstores("sc1")
    a("s_branch L_fin")
    gl = lambda r: [f"buffer_load_dwordx4 v[{r+4*i}:{r+3+4*i}], v29, s[40:43], s60 offen offset:{i*1024} sc1" for i in range(4)]
    gt = lambda r: [r + 1 + 2*i for i in range(8)]
    def gsum(r):
        for i in range(4):
            for d in range(2):
                for h in range(2): a(f"v_dot2_f32_bf16 v{112+2*d+h}, v{r+4*i+2*d}, s{74+h}, " + ("0" if i == 0 else f"v{112+2*d+h}"))
    a("L_gather:")
    pad('F', True)
    a(f"""    s_mov_b32 {CNT}, {spin}""")
    sets = [96, 128, 144, 160][:nset if pipe2 else 1]
    R = len(sets)
    for r in sets[:-1]:
        for l in gl(r): a(l)
        a(f"s_sleep {pipe2}")
    a("L_pg:")
    for i in range(R):
        for l in gl(sets[(i - 1) % R]): a(l)
        a(f"s_waitcnt vmcnt({4*(R-1)})")
        check(gt(sets[i]))
        a(f"s_cbranch_scc1 L_pg_ok{i}")
        pad('F', True)
    if fback: a(f"s_sleep {fback}")
    a(f"""s_sub_u32 {CNT}, {CNT}, 1
    s_cbranch_scc0 L_pg""")
    for i in range(R - 1, -1, -1):
        a(f"L_pg_ok{i}:"); pad('F', True); gsum(sets[i])
        if i: a("s_nop 1\ns_branch L_pg_ok")
    a("s_nop 0\nL_pg_ok:")
    for r in range(112, 116): a(f"v_add_f32_dpp v{r}, v{r}, v{r} row_ror:8 row_mask:0xf bank_mask:0xf")
    a("""v_permlane16_swap_b32 v112, v113
    v_permlane16_swap_b32 v114, v115
    v_add_f32 v112, v112, v113
    v_add_f32 v114, v114, v115
    v_permlane32_swap_b32 v112, v114
    v_add_f32 v112, v112, v114
    s_setpc_b64 s[62:63]""")

    TH, SC, NC, LC, SW = "s59", "s61", "s60", "s56", "s47"
    a(f"""L_C:
    s_sub_u32 {SW}, s3, 4""")
    trbase()
    a(f"""v_add_u32 v12, {QAREA}, v7
    v_xor_b32 v13, 32, v12
    v_xor_b32 v14, 64, v12
    v_xor_b32 v15, 0x60, v12
    v_and_b32 v16, 7, v3
    v_lshlrev_b32 v16, 1, v16
    v_lshrrev_b32 v17, 3, v3
    v_or_b32 v16, v16, v17
    v_lshlrev_b32 v17, 2, v2
    v_xor_b32 v16, v16, v17
    v_lshlrev_b32 v16, 4, v16
    v_lshl_add_u32 v16, v3, 8, v16
    s_lshl_b32 s57, {SW}, 13
    v_add_u32 v8, s57, v16
    v_xor_b32 v9, 16, v8
    v_xor_b32 v10, 32, v8
    v_xor_b32 v11, 48, v8
    v_lshrrev_b32 v16, 2, v0
    v_and_b32 v17, 7, v16
    v_lshlrev_b32 v17, 1, v17
    v_lshrrev_b32 v18, 3, v16
    v_or_b32 v17, v17, v18
    v_bfe_u32 v18, v0, 1, 1
    v_xor_b32 v17, v17, v18
    v_lshlrev_b32 v17, 4, v17
    v_lshl_add_u32 v17, v16, 8, v17
    v_and_b32 v18, 1, v0
    v_lshl_add_u32 v17, v18, 3, v17
    s_lshl_b32 s57, {SW}, 6
    v_xor_b32 v4, s57, v17
    v_xor_b32 v5, 32, v4
    v_and_b32 v16, 3, v3
    v_lshlrev_b32 v17, 6, v2
    v_lshl_add_u32 v23, v16, 8, v17
    v_add_u32 v23, {QIMG}, v23
    v_lshl_add_u32 v6, v16, 4, v17
    v_add_u32 v6, {PBUF}, v6
    v_lshrrev_b32 v18, 2, v3
    v_lshl_add_u32 v1, v18, 10, v6
    s_lshl_b32 s57, {SW}, 8
    v_add_u32 v1, s57, v1
    v_lshlrev_b32 v19, 3, v16
    v_add_u32 v19, {MLX}, v19
    s_lshl_b32 s57, {SW}, 5
    v_add_u32 v22, s57, v19
    s_lshl_b32 s57, {SW}, 2
    v_add_u32 v7, s57, v21
    v_lshl_add_u32 v24, v18, 2, v2
    v_lshlrev_b32 v24, 7, v24
    v_lshl_add_u32 v44, v16, 12, v24
    v_lshlrev_b32 v45, 2, v3
    v_and_b32 v17, 1, v2
    v_lshl_add_u32 v45, v17, 6, v45
    v_lshrrev_b32 v17, 1, v2
    v_lshl_add_u32 v45, v17, 12, v45
    v_lshlrev_b32 v46, 4, v0""")
    for r in range(72, 80, 2): a(f"v_mov_b64 v[{r}:{r+1}], 0")
    a(f"""s_lshl_b32 s66, {HEAD}, 14
    s_lshl_b32 s57, {SW}, 10
    s_add_u32 s66, s66, s57
    s_lshl_b32 s57, {J}, 4
    s_add_u32 s66, s66, s57
    s_add_u32 s66, s66, {OBUF}
    s_lshl_b32 s67, {SW}, 3
    s_add_u32 s67, s67, {HKV}
    s_lshl_b32 s67, s67, 2
    s_add_u32 s67, s67, {B}
    s_lshl_b32 s67, s67, 12
    s_add_u32 s67, s67, {OBUF}
    s_lshl_b32 s68, {SW}, 16
    s_lshl_b32 s57, {J}, 13
    s_add_u32 s68, s68, s57
    s_lshl_b32 s57, {HEAD}, 7
    s_add_u32 s68, s68, s57
    s_add_u32 s68, s68, {SBUF}
    s_lshl_b32 s57, {B}, 3
    s_add_u32 s57, s57, {STATL}
    v_mov_b32 v24, s57
    s_add_u32 {TH}, {SW}, 2
    s_mov_b32 {NC}, 0
    s_mov_b32 s74, 0x000f000f
    s_mov_b32 s75, 0x000f000f
    s_mov_b32 {CNT}, {spin}
    s_waitcnt lgkmcnt(0)""")
    srd(40, 28, None, WS_SIZE)
    if latebar: a("s_barrier")
    if warm & 2: a.warm('C')
    if not abl & 1: ldswait(4, 1, cache=LC, sleep=2)
    stamp(2)
    QF = 120
    a("ds_read_b32 v24, v24")
    for s in range(4): a(f"ds_read_b128 v[{QF+4*s}:{QF+3+4*s}], v23 offset:{16*s}")
    a(f"""ds_read_b64 v[26:27], v21 offset:{TAGL-FL}
    s_mov_b32 {LC}, 0
    s_waitcnt lgkmcnt(0)
    v_readfirstlane_b32 {SC}, v24
    v_readfirstlane_b32 {TAG}, v26
    v_readfirstlane_b32 {LOC}, v27
    L_kloop:""")
    pad('C', True)
    ldswait(0, TH, cache=LC, cached=True)
    for s in range(4):
        for t in range(2): a(f"ds_read_b128 v[{88+(s*2+t)*4}:{91+(s*2+t)*4}], v{8+s} offset:{t*4096}")
    a(f"""s_add_u32 {TH}, {TH}, 4
    s_sub_u32 s57, {TH}, 2
    s_min_u32 s57, s57, 32
    v_mov_b32 v20, s57""")
    for s in range(4):
        a(f"s_waitcnt lgkmcnt({6-2*s})")
        if s == 3: a("ds_write_b32 v7, v20 offset:16")
        for t in range(2):
            c = "0" if s == 0 else f"v[{32+4*t}:{35+4*t}]"
            a(f"v_mfma_f32_16x16x32_bf16 v[{32+4*t}:{35+4*t}], v[{88+(s*2+t)*4}:{91+(s*2+t)*4}], v[{QF+4*s}:{QF+3+4*s}], {c}")
    pad('C')
    for s in range(4): a(f"v_add_u32 v{8+s}, 0x8000, v{8+s}")
    for s in range(4): a(f"v_and_b32 v{8+s}, 0x1ffff, v{8+s}")
    a("s_mov_b64 exec, s[74:75]")
    for r in range(0, 8, 2): a(f"v_mov_b64 v[{56+r}:{57+r}], v[{32+r}:{33+r}]")
    a(f"""s_mov_b64 exec, -1
    s_lshl_b64 s[74:75], s[74:75], 4
    s_add_u32 {NC}, {NC}, 1
    s_and_b32 s57, {NC}, 3
    s_cbranch_scc1 L_kloop
    s_mov_b32 s74, 0x000f000f
    s_mov_b32 s75, 0x000f000f
    s_cmp_eq_u32 {NC}, 8
    s_cbranch_scc1 L_soft""")
    for r in range(0, 8, 2): a(f"v_mov_b64 v[{64+r}:{65+r}], v[{56+r}:{57+r}]")
    a("s_branch L_kloop\nL_soft:")
    stamp(16)
    pad('C')
    dp = "row_mask:0xf bank_mask:0xf"
    def allred(op, r, t):
        a(f"""{op}_dpp v{r}, v{r}, v{r} row_ror:4 {dp}
        {op}_dpp v{r}, v{r}, v{r} row_ror:8 {dp}
        v_mov_b32 v{t}, v{r}
        v_permlane32_swap_b32 v{r}, v{t}
        {op} v{r}, v{r}, v{t}
        v_mov_b32 v{t}, v{r}
        v_permlane16_swap_b32 v{r}, v{t}
        {op} v{r}, v{r}, v{t}""")
    a("v_max3_f32 v16, v56, v57, v58")
    for r in range(59, 71, 2): a(f"v_max3_f32 v16, v16, v{r}, v{r+1}")
    a("v_max_f32 v16, v16, v71")
    allred("v_max_f32", 16, 24)
    a(f"v_mul_f32 v16, {SC}, v16")
    for r in range(56, 72): a(f"v_fma_f32 v{r}, v{r}, {SC}, -v16")
    pad('C')
    for r in range(56, 72): a(f"v_exp_f32 v{r}, v{r}")
    pad('C')
    a("v_add_f32 v17, v56, v57\nv_add_f32 v18, v58, v59")
    for r in range(60, 72, 2): a(f"v_add_f32 v17, v17, v{r}\nv_add_f32 v18, v18, v{r+1}")
    a("v_add_f32 v17, v17, v18")
    allred("v_add_f32", 17, 24)
    a("""ds_write_b64 v22, v[16:17]
    v_mov_b32 v20, 1
    s_mov_b64 exec, 1
    ds_add_u32 v21, v20 offset:32
    s_mov_b64 exec, -1""")
    pad('C')
    ldswait(32, 4, cache="s57", sleep=1)
    pad('C')
    for w in range(4): a(f"ds_read_b64 v[{32+2*w}:{33+2*w}], v19 offset:{32*w}")
    a("""s_waitcnt lgkmcnt(0)
    v_max3_f32 v42, v32, v34, v36
    v_max_f32 v42, v42, v38""")
    for w in range(4): a(f"v_sub_f32 v{32+2*w}, v{32+2*w}, v42")
    a("v_sub_f32 v16, v16, v42")
    for w in range(4): a(f"v_exp_f32 v{32+2*w}, v{32+2*w}")
    a(f"""v_exp_f32 v16, v16
    v_mul_f32 v17, v32, v33
    v_fmac_f32 v17, v34, v35
    v_fmac_f32 v17, v36, v37
    v_fmac_f32 v17, v38, v39
    v_rcp_f32 v18, v17
    v_log_f32 v17, v17
    v_mov_b32 v43, {TAG}
    v_mul_f32 v16, v16, v18
    v_add_f32 v42, v42, v17""")
    pad('C')
    for r in range(56, 72): a(f"v_mul_f32 v{r}, v16, v{r}")
    for r in range(0, 8): a(f"v_cvt_pk_bf16_f32 v{56+r}, v{56+2*r}, v{57+2*r}")
    a(f"""ds_write_b128 v1, v[60:63]
    ds_write_b128 v1, v[56:59] offset:4096
    v_mov_b32 v20, 1
    s_mov_b64 exec, 1
    ds_add_u32 v21, v20 offset:36
    s_mov_b64 exec, -1
    v_mov_b32 v53, {TAG}
    s_mov_b32 {TH}, 34""")
    ldswait(36, 4, cache="s57", sleep=1)
    stamp(17)
    def vtile(last):
        if last and lastbar: a("ds_read_b128 v[28:31], v6\ns_barrier")
        else:
            ldswait(0, TH, cache=LC, cached=True, sleep=0 if last else csl)
            a("ds_read_b128 v[28:31], v6")
        for t in range(2):
            for u in range(2): a(f"ds_read_b64_tr_b16 v[{80+4*t+2*u}:{81+4*t+2*u}], v{4+t} offset:{u*4096}")
        if not last:
            a(f"""s_sub_u32 s57, {TH}, 1
            v_mov_b32 v20, s57
            s_add_u32 {TH}, {TH}, 1
            v_add_u32 v6, 0x100, v6""")
        for t in range(2):
            a(f"s_waitcnt lgkmcnt({2-2*t})")
            a(f"v_mfma_f32_16x16x32_bf16 v[{72+4*t}:{75+4*t}], v[{80+4*t}:{83+4*t}], v[28:31], v[{72+4*t}:{75+4*t}]")
    a("L_vloop:")
    pad('C')
    vtile(False)
    a(f"""ds_write_b32 v7, v20 offset:16
    v_add_u32 v4, 0x2000, v4
    v_add_u32 v5, 0x2000, v5
    v_and_b32 v4, 0x1ffff, v4
    v_and_b32 v5, 0x1ffff, v5""")
    def wofrags():
        n = 0
        for s in range(4):
            for t in range(4):
                if n >= 12: a("s_waitcnt lgkmcnt(12)")
                tr(s, t, 88); n += 2
                pad('C')
    if not wolast:
        a(f"""s_cmp_lt_u32 {TH}, {pwo + 4}
        s_cbranch_scc1 L_vloop
        s_cmp_eq_u32 {TH}, {pwo + 4}
        s_cbranch_scc0 L_nowo""")
        wofrags()
        a("s_waitcnt lgkmcnt(0)\nL_nowo:")
    if prew & 1:
        a(f"s_cmp_eq_u32 {TH}, 58\ns_cbranch_scc0 L_nopw")
        for i in range(4): a(f"buffer_load_dwordx4 v[{56+4*i}:{59+4*i}], v46, s[40:43], s67 offen offset:{i*1024} sc1")
        a("L_nopw:")
    a(f"""
    s_cmp_lt_u32 {TH}, 65
    s_cbranch_scc1 L_vloop""")
    pad('C', True)
    vtile(True)
    stamp(3)
    if abl & 32:
        if wolast: a("s_barrier")
        end()
    a(f"""s_mov_b32 exec_lo, 0x00ff00ff
    s_mov_b32 exec_hi, 0x00ff00ff
    v_cvt_pk_bf16_f32 v40, v72, v73
    v_cvt_pk_bf16_f32 v41, v74, v75
    v_cvt_pk_bf16_f32 v32, v76, v77
    v_cvt_pk_bf16_f32 v33, v78, v79
    s_cmp_eq_u32 {LOC}, 1
    v_mov_b32_dpp v40, v32 quad_perm:[0,1,2,3] row_mask:0xf bank_mask:0x2
    v_mov_b32_dpp v41, v33 quad_perm:[0,1,2,3] row_mask:0xf bank_mask:0x2
    s_cbranch_scc0 L_ofar
    buffer_store_dwordx4 v[40:43], v44, s[40:43], s66 offen
    L_onear:
    s_mov_b64 exec, -1""")
    stamp(8)
    if light:
        a(f"""L_pl:
        buffer_load_dwordx4 v[68:71], v46, s[40:43], s67 offen offset:3072 sc1
        s_waitcnt vmcnt(0)
        v_cmp_ne_u32 vcc, {TAG}, v71
        s_cmp_eq_u64 vcc, 0
        s_cbranch_scc1 L_po
        s_sub_u32 {CNT}, {CNT}, 1
        s_cbranch_scc0 L_pl""")
    old = [f"buffer_load_dwordx4 v[{56+4*i}:{59+4*i}], v46, s[40:43], s67 offen offset:{i*1024} sc1" for i in range(4)]
    if wolast:
        for l in old: a(l)
        a("s_barrier")
        wofrags()
        a("s_branch L_po1")
    a("L_po:")
    for l in old: a(l)
    a("L_po1:\ns_waitcnt vmcnt(0)")
    check([59 + 4*i for i in range(4)])
    a(f"""s_cbranch_scc1 L_po_ok
    s_sub_u32 {CNT}, {CNT}, 1
    s_cbranch_scc0 L_po
    L_po_ok:""")
    stamp(9)
    pad('C')
    if stamps: a(f"s_sub_u32 s98, {spin}, {CNT}"); stamp(12, "s98")
    a("v_mov_b32 v18, v58")
    for s in range(4):
        for d in range(2): a(f"v_mov_b32_dpp v{58+4*s+d}, v{56+4*s+d} row_shl:8 row_mask:0xf bank_mask:0xf bound_ctrl:1")
    if wolast: a("s_waitcnt lgkmcnt(0)")
    def omf(s, t):
        c = "0" if s == 0 else f"v[{72+4*t}:{75+4*t}]"
        r = 88 + (s*4+t)*4
        return f"v_mfma_f32_16x16x32_bf16 v[{72+4*t}:{75+4*t}], v[{56+4*s}:{59+4*s}], v[{r}:{r+3}], {c}"
    P = ["quad_perm:[1,0,3,2]", "quad_perm:[2,3,0,1]", "row_half_mirror"]
    wv = [f"v_max_f32_dpp v19, v18, v18 {P[0]} {dp}", f"v_max_f32_dpp v19, v19, v19 {P[1]} {dp}", f"v_max_f32_dpp v19, v19, v19 {P[2]} {dp}",
          "v_sub_f32 v18, v18, v19", "v_exp_f32 v18, v18",
          f"v_add_f32_dpp v19, v18, v18 {P[0]} {dp}", f"v_add_f32_dpp v19, v19, v19 {P[1]} {dp}", f"v_add_f32_dpp v19, v19, v19 {P[2]} {dp}",
          "v_rcp_f32 v19, v19", "v_mul_f32 v18, v18, v19"]
    wv.append("\n".join(f"v_mov_b32_dpp v{32+i}, v18 row_newbcast:{i} row_mask:0x5 bank_mask:0xf" for i in range(4)))
    wv.append("\n".join(f"v_mov_b32_dpp v{32+i}, v18 row_newbcast:{4+i} row_mask:0xa bank_mask:0xf" for i in range(4)))
    T4 = [52, 36, 37, 38]
    def wsum(t): return f"v_mul_f32 v{T4[t]}, v32, v{72+4*t}\n" + "\n".join(f"v_fmac_f32 v{T4[t]}, v{32+i}, v{72+4*t+i}" for i in range(1, 4))
    order = [(s, t) for th in (0, 2) for s in range(4) for t in (th, th + 1)]
    for i, (s, t) in enumerate(order):
        a(omf(s, t))
        if i < len(wv): a(wv[i])
        pad('C')
        if i == 13: a(wsum(0))
        if i == 14: a(wsum(1))
    a("v_permlane16_swap_b32 v52, v36")
    a(wsum(2)); a("v_add_f32 v52, v52, v36"); a(wsum(3))
    pad('C', True)
    a("""v_permlane16_swap_b32 v37, v38
    v_add_f32 v37, v37, v38
    v_permlane32_swap_b32 v52, v37
    v_mov_b32_dpp v36, v52 quad_perm:[1,0,3,2] row_mask:0xf bank_mask:0xf
    s_mov_b32 exec_lo, 0x55555555
    s_mov_b32 exec_hi, 0x55555555
    v_cvt_pk_bf16_f32 v52, v52, v36
    buffer_store_dwordx2 v[52:53], v45, s[40:43], s68 offen sc1""")
    stamp(10)
    if cbar: a("s_barrier")
    end()
    a("L_ofar:\nbuffer_store_dwordx4 v[40:43], v44, s[40:43], s66 offen sc1\ns_branch L_onear")
    a.close_chains()
    errs = full_check(a)
    assert not errs, "\n".join(errs)
    nv = 232 if (stamps or lite) else 184
    a.raw(f""".section .rodata,"a"
.p2align 6
.amdhsa_kernel {name}
  .amdhsa_next_free_vgpr {nv}
  .amdhsa_next_free_sgpr 102
  .amdhsa_accum_offset {nv}
  .amdhsa_group_segment_fixed_size 0
  .amdhsa_kernarg_size 104
  .amdhsa_user_sgpr_count 2
  .amdhsa_user_sgpr_kernarg_segment_ptr 1
  .amdhsa_system_sgpr_workgroup_id_x 1
.end_amdhsa_kernel""")
    return a.text()

if __name__ == "__main__":
    out = sys.argv[1]
    kw = eval("dict(%s)" % (sys.argv[2] if len(sys.argv) > 2 else ""))
    open(out, "w").write(gen(**kw))
```

```python
import struct, sys
sys.path.insert(0, "work")
from asmdsl import Asm, full_check

NAME = "recurrent_scan__gqa_block_cached__mixer_channel_mlp__decode_kernel"
def f2u(x): return struct.unpack("<I", struct.pack("<f", x))[0]
def hx(x): return "0x%08x" % (x & 0xffffffff)

QBUF, HBUF, MBUF, OBUF, SBUF, STAMPS = 0x10000, 0x50000, 0x80000, 0x100000, 0x180000, 0x200000
WS_SIZE = 0x400000
QAREA, HAREA = 131072, 147456
FL = HAREA
TAGL, STATL, MLX, QIMG, HIMG, XIMG, PBUF = HAREA + 48, HAREA + 64, HAREA + 128, HAREA + 1024, HAREA + 2048, HAREA + 4096, HAREA + 8192
TB = 16384
OSTR = 528
MLOFF = 2304
TAGC = 0x9E3779B9
SPIN = 20479
LOG2E = 1.4426950408889634
M4 = "s_mov_b32 exec_lo, 0x000f000f\ns_mov_b32 exec_hi, 0x000f000f"
J, HEAD, HKV, B = "s52", "s53", "s54", "s55"
TAG, CNT, LOC = "s30", "s31", "s72"

HEADER = open("recurrent_scan__gqa_block_cached__mixer_channel_mlp__decode.s.ref").read().split("; Override launch")[0]

def gen(name=NAME, stamps=False, lite=False, kvf="nt", wf="nt", spin=SPIN, N=21, rot=1, slp=8, qdelay=4, mapping="mod",
        qlocal=3, s2delay=20, s3delay=1, pw1=8, pw2=12, pwo=40, csl=1, abl=0, lprio=3, aprio=2, pipe2=0, gran=1, burst=True, cpre=True, ilw=True, touch=False, kmaj=False, t3=48, mpipe=False, tq=7, t2=34, bar2=1, irot=1, Nhi=36, T=271, T0=1200, nb=4, lv=None, prew=0, light=False, lastbar=True, tch=0, gref=0, wolast=True, latebar=True, warm=7, padstep=192, compact=True, nset=2, cbar=False, fdelay=0, fback=0, odelay=0, probe=None):
    a = Asm()
    def pad(c, force=False):
        if warm & {'L': 1, 'C': 2, 'F': 4, 'Q': 8}[c]: a.pad(c, padstep, force)
    if lv is None: lv = [(None, N)] + ([(0, Nhi)] if Nhi not in (None, N) else [])
    adapt = len(lv) > 1
    if wolast: pwo = 64
    NMAX = max(n for _, n in lv)
    def stamp(k, val=None):
        if stamps or (lite and k == 0):
            if val is None:
                a(f"s_memrealtime s[98:99]\ns_waitcnt lgkmcnt(0)"); val = "s98"
            a(f"v_writelane_b32 v230, {val}, {k}")
    def flush_stamps():
        if not (stamps or lite): return
        stamp(0, "s96")
        a("s_mov_b64 exec, -1")
        a("s_getreg_b32 s64, hwreg(HW_REG_XCC_ID, 0, 4)\nv_writelane_b32 v230, s64, 15")
        if stamps: a("s_memtime s[98:99]\ns_waitcnt lgkmcnt(0)\ns_sub_u32 s98, s98, s100\nv_writelane_b32 v230, s98, 14")
        a("s_memrealtime s[98:99]\ns_waitcnt lgkmcnt(0)\nv_writelane_b32 v230, s98, 13")
        a(f"""s_lshl_b32 s64, s2, 3
        s_add_u32 s64, s64, s3
        s_lshl_b32 s64, s64, 7
        s_add_u32 s64, s64, {STAMPS}
        s_mov_b32 s48, s28
        s_mov_b32 s49, s29
        s_mov_b32 s50, {WS_SIZE}
        s_mov_b32 s51, 0x20000
        v_lshlrev_b32 v231, 2, v0
        s_mov_b32 exec_hi, 0
        buffer_store_dword v230, v231, s[48:51], s64 offen""")
    def end():
        flush_stamps(); a("s_endpgm")
    def srd(d, lo, off, size):
        if off is None:
            a(f"s_mov_b32 s{d}, s{lo}\ns_mov_b32 s{d+1}, s{lo+1}")
        else:
            a(f"s_add_u32 s{d}, s{lo}, {off}\ns_addc_u32 s{d+1}, s{lo+1}, 0")
        a(f"s_mov_b32 s{d+2}, {size}\ns_mov_b32 s{d+3}, 0x20000")
    def check(tags):
        for t in tags: a(f"v_cmpx_eq_u32 vcc, {TAG}, v{t}")
        a("s_cmp_eq_u64 exec, -1\ns_mov_b64 exec, -1")
    uid = [0]
    def ldswait(off, thr, cache="s56", sleep=csl, vt=20, cached=False):
        uid[0] += 1; u = uid[0]
        if cached: a(f"s_cmp_ge_i32 {cache}, {thr}\ns_cbranch_scc1 L_lw{u}_ok")
        a(f"""L_lw{u}:
        ds_read_b32 v{vt}, v21 offset:{off}
        s_waitcnt lgkmcnt(0)
        v_readfirstlane_b32 {cache}, v{vt}
        s_cmp_ge_i32 {cache}, {thr}
        s_cbranch_scc1 L_lw{u}_ok""")
        if sleep: a(f"s_sleep {sleep}")
        a(f"s_sub_u32 s71, s71, 1\ns_cbranch_scc0 L_lw{u}\ns_endpgm\nL_lw{u}_ok:")
    def setflag(off, val, vt=20):
        a(f"v_mov_b32 v{vt}, {val}\nds_write_b32 v21, v{vt} offset:{off}")
    def tr(s, t, base=96):
        r = base + (s * 4 + t) * 4
        for u in range(2): a(f"ds_read_b64_tr_b16 v[{r+2*u}:{r+2*u+1}], v{12+t} offset:{s*4096+u*512}")
    def tr_addr(area):
        a(f"""v_add_u32 v12, {area}, v7
        v_xor_b32 v13, 32, v12
        v_xor_b32 v14, 64, v12
        v_xor_b32 v15, 0x60, v12""")
    def trbase():
        a("""v_and_b32 v10, 1, v2
        v_bfe_u32 v7, v0, 3, 1
        v_lshl_add_u32 v7, v10, 1, v7
        v_lshlrev_b32 v7, 5, v7
        v_and_b32 v10, 3, v0
        v_lshl_add_u32 v7, v10, 3, v7
        v_bfe_u32 v10, v0, 2, 2
        v_lshl_add_u32 v7, v10, 7, v7
        v_lshl_add_u32 v7, v2, 10, v7""")
    def hjob(skip):
        a(f"""s_sub_u32 s58, {J}, 4
        s_lshl_b32 s58, s58, 5
        s_add_u32 s58, s58, {HEAD}
        s_cmp_ge_u32 s58, 112
        s_cbranch_scc1 {skip}
        s_and_b32 s57, s58, 3
        s_lshr_b32 s58, s58, 2""")
    def gettag():
        a(f"""ds_read_b64 v[22:23], v21 offset:{TAGL-FL}
        s_waitcnt lgkmcnt(0)
        v_readfirstlane_b32 {TAG}, v22
        v_readfirstlane_b32 {LOC}, v23""")

    a.raw(HEADER.rstrip("\n"))
    a.raw("; @launch grid=(256,1,1) block=(512,1,1) lds=163840")
    a.raw('.amdgcn_target "amdgcn-amd-amdhsa--gfx950"\n.text')
    a.raw(f".globl {name}\n.p2align 8\n.type {name},@function")
    a.label(name)
    a("""s_load_dwordx16 s[4:19], s[0:1], 0
    s_load_dwordx8 s[20:27], s[0:1], 64
    s_load_dwordx2 s[28:29], s[0:1], 96""")
    if adapt: a("s_memrealtime s[76:77]")
    if stamps or lite: a("s_memrealtime s[96:97]\ns_memtime s[100:101]")
    a(f"""s_cmp_ge_u32 s2, 256
    s_cbranch_scc1 L_end
    v_lshrrev_b32 v1, 6, v0
    v_and_b32 v0, 63, v0
    v_readfirstlane_b32 s3, v1
    v_lshrrev_b32 v2, 4, v0
    v_and_b32 v3, 15, v0
    v_mov_b32 v21, {FL}
    s_mov_b32 s71, 0x40000""")
    if mapping == "div": a(f"s_and_b32 {J}, s2, 7\ns_lshr_b32 {HEAD}, s2, 3")
    else: a(f"s_lshr_b32 {J}, s2, 5\ns_and_b32 {HEAD}, s2, 31")
    a(f"""s_and_b32 {HKV}, {HEAD}, 7
    s_lshr_b32 {B}, {HEAD}, 3
    s_cmp_eq_u32 s3, 0
    s_cbranch_scc1 L_isL""")
    if warm & 1:
        a("s_cmp_eq_u32 s3, 3\ns_cbranch_scc0 L_notL"); a.warm('L')
    a("s_branch L_notL\nL_isL:")
    NN, PV, HR, OA, OB, RR, CV = "s59", "s60", "s61", "s63", "s64", "s65", "s66"
    a(f"""s_setprio {lprio}
    v_mov_b64 v[24:25], 0
    v_mov_b64 v[26:27], 0
    ds_write_b128 v21, v[24:27]
    ds_write_b128 v21, v[24:27] offset:32
    v_mov_b32 v28, 0
    v_mov_b32 v25, 1
    v_mov_b32 v26, 2
    v_mov_b32 v27, 3
    ds_write_b128 v21, v[24:27] offset:16
    v_lshrrev_b32 v5, 3, v0
    v_and_b32 v6, 7, v0
    v_and_b32 v10, 1, v2
    v_lshlrev_b32 v10, 1, v10
    v_xor_b32 v6, v6, v10
    v_lshlrev_b32 v6, 4, v6
    v_lshl_add_u32 v8, v5, 13, v6
    v_xor_b32 v9, 64, v8
    v_lshlrev_b32 v4, 4, v0
    v_lshlrev_b32 v16, 1, v2
    v_xor_b32 v16, v16, v3
    v_lshlrev_b32 v16, 4, v16
    v_lshl_add_u32 v16, v2, 8, v16
    v_xor_b32 v17, 0x80, v16
    v_xor_b32 v18, 16, v16
    v_xor_b32 v19, 0x90, v16
    s_lshl_b32 s58, {B}, 13
    s_add_u32 s58, s58, {J}
    s_lshl_b32 s57, {HKV}, 3
    s_add_u32 s58, s58, s57
    s_lshl_b32 s58, s58, 7
    s_lshl_b32 s67, {HEAD}, 21
    s_lshl_b32 s57, {J}, 18
    s_add_u32 s67, s67, s57
    s_mov_b32 s62, 0
    s_mov_b32 m0, {QAREA}
    s_waitcnt lgkmcnt(0)""")
    if not latebar: a("s_barrier")
    if probe and probe[0] == "ev" and probe[2] == -2: a("s_memrealtime s[88:89]\ns_waitcnt lgkmcnt(0)")
    srd(40, 10, "s58", 127*8192+128)
    if compact and not abl & (2 | 128):
        a(f"""L_wq:
        buffer_load_dwordx4 v8, s[40:43], s62 offen {wf} lds
        s_add_u32 m0, m0, 1024
        s_add_u32 s62, s62, 0x10000
        buffer_load_dwordx4 v9, s[40:43], s62 offen {wf} lds
        s_add_u32 m0, m0, 1024
        s_add_u32 s62, s62, 0x10000
        s_cmp_lt_u32 s62, 0x100000
        s_cbranch_scc1 L_wq""")
    for k in range(0 if (abl & (2 | 128) or compact) else 16):
        a(f"buffer_load_dwordx4 v{8+(k&1)}, s[40:43], s62 offen {wf} lds")
        if k < 15: a("s_add_u32 m0, m0, 1024\ns_add_u32 s62, s62, 0x10000")
    a(f"s_mov_b32 m0, {XIMG}")
    srd(44, 4, None, 4096)
    for k in range(4): a(f"buffer_load_dwordx4 v4, s[44:47], 0 offen offset:{k*1024} lds")
    a(f"""s_add_u32 s32, s6, s67
    s_addc_u32 s33, s7, 0
    s_add_u32 s34, s8, s67
    s_addc_u32 s35, s9, 0
    s_mov_b32 s46, 0x40000
    s_mov_b64 s[44:45], s[32:33]
    s_lshr_b32 {RR}, s2, 3
    s_and_b32 {RR}, {RR}, {7 if rot else 0}""")
    if irot: a(f"s_lshl_b32 s57, {J}, 3\ns_or_b32 {RR}, {RR}, s57")
    a(f"s_lshl_b32 {RR}, {RR}, 12")
    if compact:
        a(f"s_mov_b32 s68, 0\nL_burst:\ns_xor_b32 {OA}, {RR}, s68\ns_xor_b32 {OB}, {OA}, 4096\ns_mov_b32 m0, s68")
        for k in range(8):
            if k == 4: a("s_add_u32 m0, s68, 4096")
            a(f"buffer_load_dwordx4 v{16+(k&3)}, s[44:47], {(OA,OB)[k//4]} offen offset:{(k&3)*1024} {kvf} lds")
        a(f"s_add_u32 s68, s68, 8192\ns_cmp_lt_u32 s68, {nb << 13}\ns_cbranch_scc1 L_burst")
    for n in range(0 if compact else nb):
        a(f"s_xor_b32 {OA}, {RR}, {n << 13}\ns_xor_b32 {OB}, {OA}, 4096\ns_mov_b32 m0, {n << 13}")
        for k in range(8):
            if k == 4: a(f"s_mov_b32 m0, {(n << 13) + 4096}")
            a(f"buffer_load_dwordx4 v{16+(k&3)}, s[44:47], {(OA,OB)[k//4]} offen offset:{(k&3)*1024} {kvf} lds")
    a(f"""s_mov_b32 {NN}, {nb}
    s_mov_b32 {PV}, 1
    s_mov_b32 {HR}, {(1 << nb) - 1}
    s_mov_b32 s78, s76
    s_mov_b32 s79, {T0 + nb*T}
    v_mov_b32 v20, 1""")
    if latebar: a("s_barrier")
    if probe and probe[0] == "ev" and probe[2] == -1: a("s_memrealtime s[88:89]\ns_waitcnt lgkmcnt(0)")
    a(f"""s_waitcnt vmcnt({8*nb})
    ds_write_b32 v21, v20""")
    if probe and probe[0] == "ev" and probe[2] == 0: a("s_memrealtime s[88:89]\ns_waitcnt lgkmcnt(0)")
    def publish(age):
        a(f"""s_lshr_b32 s58, {HR}, {age}
        s_bcnt1_i32_b32 s58, s58
        s_add_u32 {PV}, {PV}, s58
        s_and_b32 {HR}, {HR}, {(1 << age) - 1}
        v_mov_b32 v20, {PV}
        ds_write_b32 v21, v20""")
    def mode(lbl):
        if adapt:
            a("""s_sub_u32 s57, s76, s78
            s_mul_i32 s57, s57, 10
            s_sub_u32 s57, s57, s79
            s_memrealtime s[76:77]""")
            for i in range(len(lv) - 1, 0, -1):
                a(f"s_cmp_ge_i32 s57, {lv[i][0]}\ns_cbranch_scc1 {lbl}{i}")
    def cmin(): a(f"v_min3_i32 v23, v24, v25, v26\nv_min_i32 v23, v23, v27\nv_readfirstlane_b32 {CV}, v23")
    a("L_step:")
    pad('L', True)
    a(f"""s_sub_u32 s67, {NN}, 15
    s_waitcnt lgkmcnt(0)""")
    if gref: a("v_readfirstlane_b32 s80, v28\ns_cmp_eq_u32 s80, 0\ns_cselect_b32 s78, s78, s80")
    a("""s_cmp_gt_i32 s67, 0
    s_cbranch_scc0 L_free""")
    cmin()
    a(f"""s_cmp_ge_i32 {CV}, s67
    s_cbranch_scc0 L_stall
    L_free:
    s_and_b32 {OA}, {NN}, 31
    s_lshl_b32 {OA}, {OA}, 13
    s_xor_b32 {OA}, {OA}, {RR}
    s_xor_b32 {OB}, {OA}, 4096
    s_and_b32 s68, {NN}, 15
    s_lshl_b32 s68, s68, 13
    s_bitcmp1_b32 {NN}, 5
    s_cselect_b64 s[44:45], s[34:35], s[32:33]
    s_add_u32 {NN}, {NN}, 1
    s_mov_b32 m0, s68""")
    def kvbody(n):
        for k in range(8):
            if k == 4: a("s_add_u32 m0, s68, 4096")
            a(f"s_waitcnt vmcnt({n-1})")
            if k == (n - 1) % 8: publish((n - 1) // 8)
            a(f"buffer_load_dwordx4 v{16+(k&3)}, s[44:47], {(OA,OB)[k//4]} offen offset:{(k&3)*1024} {kvf} lds")
            if k == 6: a("ds_read_b128 v[24:27], v21 offset:16")
            if k == 5 and gref: a("ds_read_b32 v28, v21 offset:40")
    mode("L_kvhi")
    kvbody(lv[0][1])
    a("L_kvj:")
    if probe and probe[0] == "ev":
        a(f"s_cmp_eq_u32 {NN}, {probe[2]}\ns_cbranch_scc0 L_pev\ns_waitcnt lgkmcnt(0)\ns_mov_b32 s88, s76\nL_pev:")
    pad('L', True)
    a(f"""    s_lshl_b32 {HR}, {HR}, 1
    s_or_b32 {HR}, {HR}, 1
    s_add_u32 s79, s79, {T}
    s_cmp_eq_u32 {NN}, {pw1}
    s_cbranch_scc1 L_w1
    s_cmp_eq_u32 {NN}, {pwo}
    s_cbranch_scc1 L_wo
    s_cmp_lt_u32 {NN}, 64
    s_cbranch_scc1 L_step""")
    a("L_drain:")
    stamp(1)
    AM = (NMAX + 7) // 8
    for q in range(AM - 1, -1, -1):
        pad('L')
        if wolast and q == 1: continue
        a(f"s_waitcnt vmcnt({8*q})")
        if q in ((0, 2) if wolast else (0,)) and lastbar: a("s_barrier")
        else: publish(q)
    a("s_waitcnt lgkmcnt(0)")
    if probe:
        a("""s_memrealtime s[80:81]
        s_mov_b32 s84, s26
        s_mov_b32 s85, s27
        s_mov_b32 s86, 256
        s_mov_b32 s87, 0x20000
        s_and_b32 s82, s2, 7
        s_lshl_b32 s82, s82, 2
        s_waitcnt lgkmcnt(0)
        v_mov_b32 v30, 0
        v_mov_b32 v31, s78
        v_mov_b32 v32, s80
        s_mov_b64 exec, 1
        s_cmp_lt_u32 s2, 8
        s_cbranch_scc0 L_pr1
        buffer_store_dword v31, v30, s[84:87], s82 offen sc1
        v_mov_b32 v33, s88
        buffer_store_dword v33, v30, s[84:87], s82 offen offset:64 sc1
        L_pr1:
        s_and_b32 s83, s2, 0x18
        s_cbranch_scc1 L_pr2
        buffer_atomic_umax v32, v30, s[84:87], s82 offen offset:128
        L_pr2:
        s_waitcnt vmcnt(0)""")
    stamp(2)
    end()
    for i in range(1, len(lv)):
        a(f"L_kvhi{i}:"); pad('L', True); kvbody(lv[i][1]); a("s_branch L_kvj")
    a("L_stall:")
    for q in range(AM - 1, -1, -1):
        pad('L')
        a(f"s_waitcnt vmcnt({8*q})"); publish(q)
        a("ds_read_b128 v[24:27], v21 offset:16\ns_waitcnt lgkmcnt(0)")
        cmin()
        a(f"""s_cmp_ge_i32 {CV}, s67
        s_cbranch_scc1 L_free""")
    a("s_sleep 1\ns_sub_u32 s71, s71, 1\ns_cbranch_scc0 L_stall\ns_endpgm")
    def wbody(n):
        for k in range(8):
            pad('L')
            a(f"s_waitcnt vmcnt({n-1})")
            if k == (n - 1) % 8: publish((n - 1) // 8)
            a(f"buffer_load_dwordx4 v{8+(k&1)}, s[40:43], s62 offen {wf} lds")
            a("s_add_u32 m0, m0, 1024\ns_add_u32 s62, s62, s70")
    a("L_wtile:\ns_waitcnt lgkmcnt(0)")
    mode("L_whi")
    wbody(lv[0][1])
    a(f"""L_wj:
    s_lshl_b32 {HR}, {HR}, 1
    s_add_u32 s79, s79, {T}
    s_sub_u32 s69, s69, 1
    s_cbranch_scc0 L_wtile
    s_cmp_lt_u32 {NN}, 64
    s_cbranch_scc1 L_step
    s_branch L_drain""")
    for i in range(1, len(lv)):
        a(f"L_whi{i}:"); wbody(lv[i][1]); a("s_branch L_wj")
    a("""    L_w1:""")
    if abl & (2 | 256): a("s_branch L_step")
    a(f"s_cmp_lt_u32 {J}, 4\ns_cbranch_scc1 L_w2")
    hjob("L_step")
    a(f"""s_mul_i32 s57, s57, 3584
    s_add_u32 s58, s58, s57
    s_lshl_b32 s58, s58, 7
    v_mul_u32_u24 v8, 3584, v5
    v_add_u32 v8, v8, v6
    s_mov_b32 s70, {8*3584}""")
    srd(40, 16, "s58", 127*3584+128)
    a(f"""s_branch L_wmid
    L_w2:
    s_lshl_b32 s57, {B}, 2
    s_add_u32 s57, s57, {J}
    s_mul_i32 s57, s57, {112*1024}
    s_lshl_b32 s58, {HKV}, 7
    s_add_u32 s57, s57, s58
    v_lshl_add_u32 v8, v5, 10, v6
    s_mov_b32 s70, 8192""")
    srd(40, 20, "s57", 111*1024+128)
    a("L_wmid:")
    pad('L', True)
    if not abl & 1: ldswait(8, 1, cache="s69")
    a(f"""v_xor_b32 v9, 64, v8
    s_mov_b32 s62, 0
    s_mov_b32 s69, 1
    s_mov_b32 m0, {QAREA}""")
    a("s_branch L_wtile\nL_wo:")
    if abl & (2 | 512): a("s_branch L_step")
    if not abl & 1: ldswait(12, 1, cache="s70")
    a(f"""s_lshl_b32 s57, {HKV}, 2
    s_add_u32 s57, s57, {B}
    s_lshl_b32 s57, s57, 17
    s_lshl_b32 s58, {J}, 7
    s_add_u32 s57, s57, s58
    v_lshl_add_u32 v8, v5, 10, v6
    v_xor_b32 v9, 64, v8
    s_mov_b32 s62, 0
    s_mov_b32 s69, 1
    s_mov_b32 s70, 8192
    s_mov_b32 m0, {QAREA}""")
    pad('L', True)
    srd(40, 12, "s57", 127*1024+128)
    a("s_branch L_wtile")

    a("L_notL:")
    if not latebar: a("s_barrier")
    a("""s_cmp_ge_u32 s3, 4
    s_cbranch_scc1 L_C""")
    if abl & 1:
        a("s_waitcnt lgkmcnt(0)"); end()
    if latebar: a("s_cmp_eq_u32 s3, 1\ns_cbranch_scc1 L_nb0\ns_barrier\nL_nb0:")
    a(f"s_setprio {aprio}")
    trbase()
    a("""v_and_b32 v1, 7, v0
    v_lshlrev_b32 v1, 3, v1
    v_lshl_add_u32 v1, v2, 1, v1
    v_lshlrev_b32 v30, 3, v3
    v_lshlrev_b32 v29, 4, v0
    s_waitcnt lgkmcnt(0)""")
    srd(40, 28, None, WS_SIZE)
    a(f"""s_cmp_eq_u32 s3, 3
    s_cbranch_scc1 L_A2
    s_mov_b32 s57, {B}
    s_mov_b32 s59, 1
    s_cmp_eq_u32 s3, 1
    s_cbranch_scc0 L_A1
    s_load_dword {TAG}, s[28:29], 0
    L_qh:
    s_mov_b32 s60, 0x3f803f80
    s_mov_b32 s61, 0x3f803f80""")
    for r in range(32, 96, 2): a(f"v_mov_b64 v[{r}:{r+1}], s[60:61]")
    tr_addr(str(QAREA))
    a(f"""v_lshlrev_b32 v4, 10, v3
    v_lshl_add_u32 v4, v2, 4, v4
    v_add_u32 v4, {XIMG}, v4
    s_lshl_b32 s62, s57, 8""")
    for gq in range(4):
        a(f"v_add_u32 v{24+gq}, s62, v4")
        if gq < 3: a("s_add_u32 s62, s62, 256\ns_and_b32 s62, s62, 0x3ff")
    a(f"""v_and_b32 v10, 3, v3
    v_lshlrev_b32 v17, 2, v10
    v_add_u32 v17, 64, v17
    v_lshlrev_b32 v11, 16, v10
    s_lshl_b32 s62, s57, 11
    s_lshl_b32 s60, {HKV}, 13
    s_add_u32 s62, s62, s60
    s_add_u32 s62, s62, {QBUF}
    s_mov_b32 s60, {J}
    s_cmp_eq_u32 s3, 1
    s_cbranch_scc1 L_q1
    v_mul_u32_u24 v11, 7168, v10
    s_mul_i32 s62, s57, 28672
    s_add_u32 s62, s62, {HBUF}
    s_mov_b32 s60, s58
    L_q1:
    v_lshrrev_b32 v10, 2, v3
    v_lshl_add_u32 v11, v10, 6, v11
    v_lshl_add_u32 v16, v2, 4, v11
    s_lshl_b32 s60, s60, 8
    s_add_u32 s73, s62, s60
    s_getreg_b32 s63, hwreg(HW_REG_XCC_ID, 0, 4)""")
    if latebar: a("s_cmp_eq_u32 s3, 1\ns_cbranch_scc0 L_nb1\ns_barrier\nL_nb1:")
    ldswait(0, "s59", sleep=0)
    stamp(2)
    a(M4)
    for s in range(4): a(f"ds_read_b128 v[{32+4*s}:{35+4*s}], v24 offset:{64*s}")
    a("s_mov_b64 exec, -1")
    for t in range(4): tr(0, t)
    def gram(s):
        c = "0" if s == 0 else "v[160:163]"
        return f"v_mfma_f32_16x16x32_bf16 v[160:163], v[{32+4*s}:{35+4*s}], v[{32+4*s}:{35+4*s}], {c}"
    def dmf(s, t):
        c = "0" if s == 0 else f"v[{164+4*t}:{167+4*t}]"
        r = 96 + (s*4+t)*4
        return f"v_mfma_f32_16x16x32_bf16 v[{164+4*t}:{167+4*t}], v[{r}:{r+3}], v[{32+4*s}:{35+4*s}], {c}"
    for s in range(4):
        a("s_waitcnt lgkmcnt(0)")
        if s < 3:
            a(M4)
            for q in range(4): a(f"ds_read_b128 v[{48+16*s+4*q}:{51+16*s+4*q}], v{25+s} offset:{64*q}")
            a("s_mov_b64 exec, -1")
            for t in range(4): tr(s+1, t)
        else:
            a(f"s_sub_u32 s60, s3, 1\ns_lshl_b32 s60, s60, 2\nv_add_u32 v18, s60, v21\nv_mov_b32 v19, 1\nds_write_b32 v18, v19 offset:8")
        for q in range(4): a(gram(4*s+q))
        if s < 3:
            for t in range(4): a(dmf(s, t))
    a("ds_bpermute_b32 v19, v17, v160")
    for t in range(4): a(dmf(3, t))
    a(f"""s_cmp_eq_u32 s3, 1
    s_cbranch_scc0 L_q2
    s_add_u32 {TAG}, {TAG}, {hx(TAGC)}
    L_q2:
    s_waitcnt lgkmcnt(0)
    v_mul_f32 v24, {hx(f2u(-1/512))}, v19
    v_mov_b32 v98, {TAG}
    v_mov_b32 v99, s63""")
    for r in range(164, 180): a(f"v_fmac_f32_dpp v{r}, v{r}, v24 row_shl:4 row_mask:0xf bank_mask:0xf bound_ctrl:1")
    a("v_cvt_pk_bf16_f32 v96, v164, v165\nv_cvt_pk_bf16_f32 v97, v166, v167")
    for t in range(1, 4): a(f"v_cvt_pk_bf16_f32 v{164+4*t}, v{164+4*t}, v{165+4*t}\nv_cvt_pk_bf16_f32 v{165+4*t}, v{166+4*t}, v{167+4*t}")
    for t in range(1, 4):
        a(f"v_mov_b32_dpp v96, v{164+4*t} row_shr:{4*t} row_mask:0xf bank_mask:{hex(1<<t)}")
        a(f"v_mov_b32_dpp v97, v{165+4*t} row_shr:{4*t} row_mask:0xf bank_mask:{hex(1<<t)}")
    far = "buffer_store_dwordx4 v[96:99], v16, s[40:43], s73 offen sc1"
    a(f"""s_cmp_eq_u32 s3, 1
    s_cbranch_scc1 L_qnear
    {far}""")
    stamp(3)
    end()
    a("L_qnear:")
    if abl & 2048:
        setflag(4, 1); setflag(12, 1); end()
    a("buffer_store_dwordx4 v[96:99], v16, s[40:43], s73 offen" if qlocal else far)
    stamp(3)
    a(f"""v_cmp_eq_u32 vcc, 1, v3
    v_cndmask_b32 v18, v160, v161, vcc
    v_cmp_eq_u32 vcc, 2, v3
    v_cndmask_b32 v18, v18, v162, vcc
    v_cmp_eq_u32 vcc, 3, v3
    v_cndmask_b32 v18, v18, v163, vcc
    s_mov_b32 s61, {hx(f2u(1e-5))}
    v_mul_f32 v18, {hx(f2u(1/512))}, v18
    v_fma_f32 v18, -v24, v24, v18
    v_max_f32 v18, 0, v18
    v_add_f32 v26, s61, v18
    v_rsq_f32 v26, v26
    v_lshlrev_b32 v10, 3, v0
    v_mul_f32 v27, v26, v26
    v_fma_f32 v27, v27, v18, s61
    v_rsq_f32 v27, v27
    v_add_u32 v11, {STATL}, v10
    v_add_u32 v10, {QIMG}, v10
    v_mul_f32 v27, v26, v27
    v_mul_f32 v26, {hx(f2u(128**-0.5 * LOG2E))}, v26
    s_mov_b64 exec, 15
    ds_write_b64 v11, v[26:27]
    s_mov_b64 exec, -1
    s_lshl_b32 s62, {HEAD}, 13
    s_add_u32 s62, s62, {QBUF}
    s_add_u32 s61, s62, 4096
    s_mov_b32 s58, 0x3f80
    s_mov_b32 s59, 0x3f800000""")
    if tq: ldswait(0, tq, sleep=2)
    elif qdelay: a(f"s_sleep {qdelay}")
    a(f"s_mov_b32 {CNT}, {spin}\nL_pq:")
    for i in range(8): a(f"buffer_load_dwordx4 v[{100+4*i}:{103+4*i}], v29, s[40:43], {('s62','s61')[i//4]} offen offset:{(i%4)*1024} sc1")
    a("s_waitcnt vmcnt(0)")
    check([102 + 4*i for i in range(8)])
    a("s_cbranch_scc1 L_pq_ok")
    if qlocal:
        a(f"""s_cmp_eq_u32 {CNT}, {spin - qlocal + 1}
        s_cbranch_scc0 L_pq_n
        {far}
        L_pq_n:""")
    a(f"""s_sub_u32 {CNT}, {CNT}, 1
    s_cbranch_scc0 L_pq
    L_pq_ok:""")
    if stamps: a(f"s_sub_u32 s98, {spin}, {CNT}"); stamp(5, "s98")
    for kq in range(4):
        for x in range(2):
            for d in range(2):
                for h in range(2):
                    acc = 132 + x*4 + d*2 + h
                    a(f"v_dot2_f32_bf16 v{acc}, v{100 + (kq*2+x)*4 + d}, s{58+h}, " + ("0" if kq == 0 else f"v{acc}"))
    for i in range(4): a(f"v_cvt_pk_bf16_f32 v{132+i}, v{132+2*i}, v{133+2*i}")
    a("""ds_write_b64 v10, v[132:133]
    ds_write_b64 v10, v[134:135] offset:512""")
    for i in range(8): a(f"v_cmpx_eq_u32 vcc, s63, v{103+4*i}")
    a(f"""s_cmp_eq_u64 exec, -1
    s_mov_b64 exec, -1
    s_cselect_b32 {LOC}, 1, 0""")
    if qlocal: a(f"s_cbranch_scc1 L_qloc\n{far}\nL_qloc:")
    a(f"""v_mov_b32 v26, {TAG}
    v_mov_b32 v27, {LOC}
    ds_write_b64 v21, v[26:27] offset:{TAGL-FL}""")
    setflag(4, 1)
    a(f"s_cmp_lt_u32 {J}, 4\ns_cbranch_scc1 L_hash")
    hjob("L_noh")
    a("s_branch L_hash\nL_noh:")
    setflag(12, 1)
    a("L_hash:")
    stamp(4)
    a(f"""s_cmp_lt_u32 {J}, 2
    s_cbranch_scc0 L_fin""")
    srd(44, 22, None, 1024); srd(48, 4, None, 4096)
    a(f"""s_lshl_b32 s57, {HKV}, 1
    s_add_u32 s57, s57, {J}
    s_lshl_b32 s58, {B}, 4
    s_add_u32 s58, s58, s57
    s_lshl_b32 s65, s58, 6
    s_lshl_b32 s57, s57, 6
    s_mov_b32 s74, 0x3f80
    s_mov_b32 s75, 0x3f800000
    buffer_load_ushort v28, v1, s[44:47], s57 offen
    buffer_load_ushort v4, v1, s[48:51], s65 offen
    s_lshl_b32 s64, s58, 12
    s_lshr_b32 s60, s64, 1
    s_add_u32 s60, s60, {MBUF}""")
    if not abl & 16:
        ldswait(0, t3, sleep=16)
        a(f"s_mov_b32 {CNT}, {spin}\nL_pm:")
        for i in range(2): a(f"buffer_load_dwordx4 v[{96+4*i}:{99+4*i}], v29, s[40:43], s60 offen offset:{i*1024} sc1")
        a("s_waitcnt vmcnt(0)")
        check([97 + 2*i for i in range(4)])
        a(f"""s_cbranch_scc1 L_pm_ok
        s_sleep {slp}
        s_sub_u32 {CNT}, {CNT}, 1
        s_cbranch_scc0 L_pm
        L_pm_ok:
""")
        for i in range(2):
            for d in range(2):
                for h in range(2): a(f"v_dot2_f32_bf16 v{112+2*d+h}, v{96+4*i+2*d}, s{74+h}, " + ("0" if i == 0 else f"v{112+2*d+h}"))
        a("s_nop 1\ns_call_b64 s[62:63], L_pg_ok")
    a(f"""s_waitcnt vmcnt(0)
    v_lshlrev_b32 v28, 16, v28
    v_lshlrev_b32 v4, 16, v4
    v_add_f32 v28, v28, v112
    v_mul_f32 v10, {hx(f2u(-LOG2E))}, v28
    v_exp_f32 v10, v10
    s_add_u32 s60, s64, {SBUF}
    v_add_f32 v10, 1.0, v10
    v_rcp_f32 v10, v10
    v_mov_b32 v25, {TAG}
    v_mul_f32 v28, v28, v10""")
    srd(44, 24, None, 4096)
    if prew & 2:
        for i in range(4): a(f"buffer_load_dwordx4 v[{96+4*i}:{99+4*i}], v29, s[40:43], s60 offen offset:{i*1024} sc1")
        a("s_waitcnt vmcnt(0)")
    stamp(6)
    if warm & 4: a.warm('F')
    if lastbar: a("s_barrier")
    if wolast: a("s_barrier")
    a("s_barrier")
    if abl & 32: a("s_branch L_fin")
    if fdelay: a(f"s_sleep {fdelay}")
    a("""s_call_b64 s[62:63], L_gather
    v_fma_f32 v28, v28, v112, v4
    v_cvt_pk_bf16_f32 v28, v28, v28
    s_mov_b32 exec_lo, 0x00ff00ff
    s_mov_b32 exec_hi, 0x00ff00ff
    buffer_store_short v28, v1, s[44:47], s65 offen""")
    stamp(11)
    pad('F', True)
    a("""s_cmp_eq_u32 s2, 0
    s_cbranch_scc0 L_fin
    v_mov_b32 v10, 0
    s_mov_b64 exec, 1
    buffer_store_dword v25, v10, s[40:43], 0 offen sc1""")
    if probe:
        kind, K = probe[:2]
        a("""s_memrealtime s[92:93]
        s_sleep 40
        s_load_dwordx8 s[76:83], s[26:27], 0 glc
        s_load_dwordx8 s[84:91], s[26:27], """ + ("64" if kind == "ev" else "128") + """ glc
        s_waitcnt lgkmcnt(0)""")
        def red(op, dst, base):
            a(f"s_mov_b32 {dst}, s{base}")
            for i in range(1, 8): a(f"{op} {dst}, {dst}, s{base+i}")
        red("s_min_u32", "s57", 76); red("s_max_u32", "s58", 76); red("s_min_u32", "s59", 84); red("s_max_u32", "s60", 84)
        evs = "s_mov_b32 s61, 0\n" + "\n".join(f"s_sub_u32 s62, s{84+i}, s{76+i}\ns_add_u32 s61, s61, s62" for i in range(8)) + "\ns_lshr_b32 s61, s61, 3"
        a({"ev": evs, "skew": "s_sub_u32 s61, s58, s57", "span": "s_sub_u32 s61, s92, s57", "zero": "s_mov_b32 s61, 0",
           "tail": "s_sub_u32 s61, s92, s60", "endspread": "s_sub_u32 s61, s60, s59", "stream": "s_sub_u32 s61, s60, s58",
           "s70": "s_sub_u32 s61, s83, s76\ns_add_u32 s61, s61, 100", "s20": "s_sub_u32 s61, s78, s76\ns_add_u32 s61, s61, 100",
           "s40": "s_sub_u32 s61, s80, s76\ns_add_u32 s61, s61, 100", "s10": "s_sub_u32 s61, s77, s76\ns_add_u32 s61, s61, 100"}[kind])
        a(f"""s_min_u32 s61, s61, 5000
        s_mul_i32 s61, s61, {K}
        s_add_u32 s61, s61, s92
        s_add_u32 s61, s61, 300
        L_prw:
        s_memrealtime s[92:93]
        s_waitcnt lgkmcnt(0)
        s_sub_u32 s57, s92, s61
        s_cmp_lt_i32 s57, 0
        s_cbranch_scc1 L_prw""")
    a("""
    L_fin:""")
    flush_stamps()
    a("L_end:\ns_endpgm")
    a("L_A1:")
    if abl & 1024:
        ldswait(4, 1, sleep=8); setflag(12, 1); a("s_branch L_fin")
    hjob("L_fin")
    ldswait(4, 1, sleep=8)
    gettag()
    a(f"s_mov_b32 s59, {pw1+2}\ns_branch L_qh")
    a("L_A2:")
    if tch:
        a(f"""v_mov_b32 v11, 0
        s_mov_b64 exec, 1
        s_lshl_b32 s61, {HEAD}, 21""")
        srd(32, 8, "s61", 1 << 21)
        a("buffer_load_dword v40, v11, s[32:35], 0 offen nt")
        if tch & 2:
            for lo, size in ((16, 512*3584), (20, 1792*1024), (12, 4096*1024)):
                srd(32, lo, None, size)
                a(f"s_lshl_b32 s61, {HKV}, 19" if lo == 12 else "s_mov_b32 s61, 0")
                a(f"buffer_load_dword v{40+lo}, v11, s[32:35], s61 offen nt")
        a("s_mov_b64 exec, -1")
    if gref:
        a(f"""s_cmp_lt_u32 s2, 8
        s_cbranch_scc0 L_noref
        s_atomic_umax s76, s[26:27], 0
        L_noref:""")
        ldswait(0, gref, sleep=8)
        a("""s_load_dword s80, s[26:27], 0
        s_waitcnt lgkmcnt(0)
        s_sub_u32 s81, s80, s76
        s_cmp_lt_u32 s81, 500
        s_cselect_b32 s80, s80, s76""")
        setflag(40, "s80")
    a(f"s_cmp_lt_u32 {J}, 4\ns_cbranch_scc0 L_fin")
    if abl & 16:
        ldswait(4, 1, sleep=8); setflag(12, 1); a("s_branch L_fin")
    srd(44, 18, None, 3584)
    a(f"""s_lshl_b32 s66, {B}, 2
    s_add_u32 s66, s66, {J}
    s_mul_i32 s57, s66, 224
    buffer_load_dwordx2 v[24:25], v30, s[44:47], s57 offen
    buffer_load_dwordx2 v[26:27], v30, s[44:47], s57 offen offset:128
    v_mov_b32 v11, 7168
    v_lshlrev_b32 v10, 4, v3
    v_mad_u32_u24 v10, v2, v11, v10
    v_min_u32 v16, 11, v3
    v_lshlrev_b32 v16, 4, v16
    v_mad_u32_u24 v11, v2, v11, v16
    s_lshl_b32 s57, s57, 1
    s_add_u32 s57, s57, {HBUF}
    s_add_u32 s58, s57, 28672
    s_add_u32 s59, s58, 28672
    s_add_u32 s60, s59, 28672""")
    tr_addr(str(QAREA))
    ldswait(4, 1, sleep=8)
    gettag()
    ldswait(0, pw1 + 2, sleep=8)
    n = 0
    for s in range(4):
        for t in range(4):
            if n >= 14: a("s_waitcnt lgkmcnt(12)")
            tr(s, t); n += 2
    a(f"v_lshlrev_b32 v28, 3, v2\nv_add_u32 v28, {STATL+4}, v28\nds_read_b32 v28, v28\ns_waitcnt lgkmcnt(0)")
    setflag(12, 1)
    ldswait(0, t2, sleep=16)
    a(f"s_mov_b32 {CNT}, {spin}\nL_ph:")
    for x in range(2):
        for i in range(4): a(f"buffer_load_dwordx4 v[{32+16*x+4*i}:{35+16*x+4*i}], v{10+x}, s[40:43], s{57+i} offen offset:{256*x} sc1")
    a("s_waitcnt vmcnt(0)")
    check([34 + 4*i for i in range(8)])
    a(f"""s_cbranch_scc1 L_ph_ok
    s_sleep {slp}
    s_sub_u32 {CNT}, {CNT}, 1
    s_cbranch_scc0 L_ph
    L_ph_ok:
    s_mov_b32 s58, 0x3f80
    s_mov_b32 s59, 0x3f800000""")
    for x in range(2):
        for d in range(2):
            for h in range(2): a(f"v_dot2_f32_bf16 v{72+x*4+d*2+h}, v{24+2*x+d}, s{58+h}, 0")
    for kq in range(4):
        for x in range(2):
            for d in range(2):
                for h in range(2): a(f"v_dot2_f32_bf16 v{64+x*4+d*2+h}, v{32+16*x+4*kq+d}, s{58+h}, " + ("0" if kq == 0 else f"v{64+x*4+d*2+h}"))
    for i in range(8): a(f"v_fma_f32 v{64+i}, v{64+i}, v28, v{72+i}")
    k1 = -2 * LOG2E * 0.7978845608028654
    a(f"s_mov_b32 s58, {hx(f2u(k1*0.044715))}\nv_mov_b32 v28, {hx(f2u(k1))}")
    for i in range(8): a(f"v_mul_f32 v{72+i}, v{64+i}, v{64+i}")
    for i in range(8): a(f"v_fma_f32 v{72+i}, v{72+i}, s58, v28")
    for i in range(8): a(f"v_mul_f32 v{72+i}, v{72+i}, v{64+i}")
    for i in range(8): a(f"v_exp_f32 v{72+i}, v{72+i}")
    for i in range(8): a(f"v_add_f32 v{72+i}, 1.0, v{72+i}")
    for i in range(8): a(f"v_rcp_f32 v{72+i}, v{72+i}")
    for i in range(8): a(f"v_mul_f32 v{64+i}, v{64+i}, v{72+i}")
    for i in range(4): a(f"v_cvt_pk_bf16_f32 v{64+i}, v{64+2*i}, v{65+2*i}")
    a(f"""v_cmp_gt_u32 vcc, 12, v3
    v_lshl_add_u32 v10, v2, 8, v30
    v_add_u32 v10, {HIMG}, v10
    v_cndmask_b32 v66, 0, v66, vcc
    v_cndmask_b32 v67, 0, v67, vcc
    v_and_b32 v11, 3, v0
    v_lshlrev_b32 v11, 8, v11
    v_lshl_add_u32 v11, v2, 4, v11
    v_add_u32 v11, {HIMG}, v11
    ds_write_b64 v10, v[64:65]
    ds_write_b64 v10, v[66:67] offset:128""")
    for s in range(4): a(f"ds_read_b128 v[{32+4*s}:{35+4*s}], v11 offset:{64*s}")
    a(f"""s_lshl_b32 s57, {HKV}, 12
    s_lshl_b32 s58, s66, 7
    s_add_u32 s57, s57, s58
    s_add_u32 s57, s57, {MBUF}
    v_lshlrev_b32 v31, 2, v3
    v_and_b32 v16, 1, v2
    v_lshl_add_u32 v31, v16, 6, v31
    v_lshrrev_b32 v16, 1, v2
    v_lshl_add_u32 v31, v16, 11, v31
    s_waitcnt lgkmcnt(0)""")
    for s in range(4):
        for t in range(4):
            c = "0" if s == 0 else f"v[{160+4*t}:{163+4*t}]"
            r = 96 + (s*4+t)*4
            a(f"v_mfma_f32_16x16x32_bf16 v[{160+4*t}:{163+4*t}], v[{32+4*s}:{35+4*s}], v[{r}:{r+3}], {c}")
    for b in range(4): a(f"v_mov_b32 v{65+2*b}, {TAG}")
    for b in range(4): a(f"v_mov_b32 v{64+2*b}, v{160+b}")
    for t in range(1, 4):
        for b in range(4): a(f"v_mov_b32_dpp v{64+2*b}, v{160+4*t+b} quad_perm:[0,1,2,3] row_mask:{hex(1<<t)} bank_mask:0xf")
    for b in range(4): a(f"v_mov_b32_dpp v{72+b}, v{64+2*b} quad_perm:[1,0,3,2] row_mask:0xf bank_mask:0xf")
    for b in range(4): a(f"v_cvt_pk_bf16_f32 v{64+2*b}, v{64+2*b}, v{72+b}")
    a("s_mov_b32 exec_lo, 0x55555555\ns_mov_b32 exec_hi, 0x55555555")
    def mstores(fl):
        for b in range(4):
            a(f"buffer_store_dwordx2 v[{64+2*b}:{65+2*b}], v31, s[40:43], s57 offen {fl}")
            if b < 3: a("s_add_u32 s57, s57, 32768")
    stamp(6)
    a(f"s_cmp_eq_u32 {LOC}, 1\ns_cbranch_scc0 L_mfar")
    mstores("")
    a("s_branch L_fin\nL_mfar:")
    mstores("sc1")
    a("s_branch L_fin")
    gl = lambda r: [f"buffer_load_dwordx4 v[{r+4*i}:{r+3+4*i}], v29, s[40:43], s60 offen offset:{i*1024} sc1" for i in range(4)]
    gt = lambda r: [r + 1 + 2*i for i in range(8)]
    def gsum(r):
        for i in range(4):
            for d in range(2):
                for h in range(2): a(f"v_dot2_f32_bf16 v{112+2*d+h}, v{r+4*i+2*d}, s{74+h}, " + ("0" if i == 0 else f"v{112+2*d+h}"))
    a("L_gather:")
    pad('F', True)
    a(f"""    s_mov_b32 {CNT}, {spin}""")
    sets = [96, 128, 144, 160][:nset if pipe2 else 1]
    R = len(sets)
    for r in sets[:-1]:
        for l in gl(r): a(l)
        a(f"s_sleep {pipe2}")
    a("L_pg:")
    for i in range(R):
        for l in gl(sets[(i - 1) % R]): a(l)
        a(f"s_waitcnt vmcnt({4*(R-1)})")
        check(gt(sets[i]))
        a(f"s_cbranch_scc1 L_pg_ok{i}")
        pad('F', True)
    if fback: a(f"s_sleep {fback}")
    a(f"""s_sub_u32 {CNT}, {CNT}, 1
    s_cbranch_scc0 L_pg""")
    for i in range(R - 1, -1, -1):
        a(f"L_pg_ok{i}:"); pad('F', True); gsum(sets[i])
        if i: a("s_nop 1\ns_branch L_pg_ok")
    a("s_nop 0\nL_pg_ok:")
    for r in range(112, 116): a(f"v_add_f32_dpp v{r}, v{r}, v{r} row_ror:8 row_mask:0xf bank_mask:0xf")
    a("""v_permlane16_swap_b32 v112, v113
    v_permlane16_swap_b32 v114, v115
    v_add_f32 v112, v112, v113
    v_add_f32 v114, v114, v115
    v_permlane32_swap_b32 v112, v114
    v_add_f32 v112, v112, v114
    s_setpc_b64 s[62:63]""")

    TH, SC, NC, LC, SW = "s59", "s61", "s60", "s56", "s47"
    a(f"""L_C:
    s_sub_u32 {SW}, s3, 4""")
    trbase()
    a(f"""v_add_u32 v12, {QAREA}, v7
    v_xor_b32 v13, 32, v12
    v_xor_b32 v14, 64, v12
    v_xor_b32 v15, 0x60, v12
    v_and_b32 v16, 7, v3
    v_lshlrev_b32 v16, 1, v16
    v_lshrrev_b32 v17, 3, v3
    v_or_b32 v16, v16, v17
    v_lshlrev_b32 v17, 2, v2
    v_xor_b32 v16, v16, v17
    v_lshlrev_b32 v16, 4, v16
    v_lshl_add_u32 v16, v3, 8, v16
    s_lshl_b32 s57, {SW}, 13
    v_add_u32 v8, s57, v16
    v_xor_b32 v9, 16, v8
    v_xor_b32 v10, 32, v8
    v_xor_b32 v11, 48, v8
    v_lshrrev_b32 v16, 2, v0
    v_and_b32 v17, 7, v16
    v_lshlrev_b32 v17, 1, v17
    v_lshrrev_b32 v18, 3, v16
    v_or_b32 v17, v17, v18
    v_bfe_u32 v18, v0, 1, 1
    v_xor_b32 v17, v17, v18
    v_lshlrev_b32 v17, 4, v17
    v_lshl_add_u32 v17, v16, 8, v17
    v_and_b32 v18, 1, v0
    v_lshl_add_u32 v17, v18, 3, v17
    s_lshl_b32 s57, {SW}, 6
    v_xor_b32 v4, s57, v17
    v_xor_b32 v5, 32, v4
    v_and_b32 v16, 3, v3
    v_lshlrev_b32 v17, 6, v2
    v_lshl_add_u32 v23, v16, 8, v17
    v_add_u32 v23, {QIMG}, v23
    v_lshl_add_u32 v6, v16, 4, v17
    v_add_u32 v6, {PBUF}, v6
    v_lshrrev_b32 v18, 2, v3
    v_lshl_add_u32 v1, v18, 10, v6
    s_lshl_b32 s57, {SW}, 8
    v_add_u32 v1, s57, v1
    v_lshlrev_b32 v19, 3, v16
    v_add_u32 v19, {MLX}, v19
    s_lshl_b32 s57, {SW}, 5
    v_add_u32 v22, s57, v19
    s_lshl_b32 s57, {SW}, 2
    v_add_u32 v7, s57, v21
    v_lshl_add_u32 v24, v18, 2, v2
    v_lshlrev_b32 v24, 7, v24
    v_lshl_add_u32 v44, v16, 12, v24
    v_lshlrev_b32 v45, 2, v3
    v_and_b32 v17, 1, v2
    v_lshl_add_u32 v45, v17, 6, v45
    v_lshrrev_b32 v17, 1, v2
    v_lshl_add_u32 v45, v17, 12, v45
    v_lshlrev_b32 v46, 4, v0""")
    for r in range(72, 80, 2): a(f"v_mov_b64 v[{r}:{r+1}], 0")
    a(f"""s_lshl_b32 s66, {HEAD}, 14
    s_lshl_b32 s57, {SW}, 10
    s_add_u32 s66, s66, s57
    s_lshl_b32 s57, {J}, 4
    s_add_u32 s66, s66, s57
    s_add_u32 s66, s66, {OBUF}
    s_lshl_b32 s67, {SW}, 3
    s_add_u32 s67, s67, {HKV}
    s_lshl_b32 s67, s67, 2
    s_add_u32 s67, s67, {B}
    s_lshl_b32 s67, s67, 12
    s_add_u32 s67, s67, {OBUF}
    s_lshl_b32 s68, {SW}, 16
    s_lshl_b32 s57, {J}, 13
    s_add_u32 s68, s68, s57
    s_lshl_b32 s57, {HEAD}, 7
    s_add_u32 s68, s68, s57
    s_add_u32 s68, s68, {SBUF}
    s_lshl_b32 s57, {B}, 3
    s_add_u32 s57, s57, {STATL}
    v_mov_b32 v24, s57
    s_add_u32 {TH}, {SW}, 2
    s_mov_b32 {NC}, 0
    s_mov_b32 s74, 0x000f000f
    s_mov_b32 s75, 0x000f000f
    s_mov_b32 {CNT}, {spin}
    s_waitcnt lgkmcnt(0)""")
    srd(40, 28, None, WS_SIZE)
    if latebar: a("s_barrier")
    if warm & 2: a.warm('C')
    if not abl & 1: ldswait(4, 1, cache=LC, sleep=2)
    stamp(2)
    QF = 120
    a("ds_read_b32 v24, v24")
    for s in range(4): a(f"ds_read_b128 v[{QF+4*s}:{QF+3+4*s}], v23 offset:{16*s}")
    a(f"""ds_read_b64 v[26:27], v21 offset:{TAGL-FL}
    s_mov_b32 {LC}, 0
    s_waitcnt lgkmcnt(0)
    v_readfirstlane_b32 {SC}, v24
    v_readfirstlane_b32 {TAG}, v26
    v_readfirstlane_b32 {LOC}, v27
    L_kloop:""")
    pad('C', True)
    ldswait(0, TH, cache=LC, cached=True)
    for s in range(4):
        for t in range(2): a(f"ds_read_b128 v[{88+(s*2+t)*4}:{91+(s*2+t)*4}], v{8+s} offset:{t*4096}")
    a(f"""s_add_u32 {TH}, {TH}, 4
    s_sub_u32 s57, {TH}, 2
    s_min_u32 s57, s57, 32
    v_mov_b32 v20, s57""")
    for s in range(4):
        a(f"s_waitcnt lgkmcnt({6-2*s})")
        if s == 3: a("ds_write_b32 v7, v20 offset:16")
        for t in range(2):
            c = "0" if s == 0 else f"v[{32+4*t}:{35+4*t}]"
            a(f"v_mfma_f32_16x16x32_bf16 v[{32+4*t}:{35+4*t}], v[{88+(s*2+t)*4}:{91+(s*2+t)*4}], v[{QF+4*s}:{QF+3+4*s}], {c}")
    pad('C')
    for s in range(4): a(f"v_add_u32 v{8+s}, 0x8000, v{8+s}")
    for s in range(4): a(f"v_and_b32 v{8+s}, 0x1ffff, v{8+s}")
    a("s_mov_b64 exec, s[74:75]")
    for r in range(0, 8, 2): a(f"v_mov_b64 v[{56+r}:{57+r}], v[{32+r}:{33+r}]")
    a(f"""s_mov_b64 exec, -1
    s_lshl_b64 s[74:75], s[74:75], 4
    s_add_u32 {NC}, {NC}, 1
    s_and_b32 s57, {NC}, 3
    s_cbranch_scc1 L_kloop
    s_mov_b32 s74, 0x000f000f
    s_mov_b32 s75, 0x000f000f
    s_cmp_eq_u32 {NC}, 8
    s_cbranch_scc1 L_soft""")
    for r in range(0, 8, 2): a(f"v_mov_b64 v[{64+r}:{65+r}], v[{56+r}:{57+r}]")
    a("s_branch L_kloop\nL_soft:")
    stamp(16)
    pad('C')
    dp = "row_mask:0xf bank_mask:0xf"
    def allred(op, r, t):
        a(f"""{op}_dpp v{r}, v{r}, v{r} row_ror:4 {dp}
        {op}_dpp v{r}, v{r}, v{r} row_ror:8 {dp}
        v_mov_b32 v{t}, v{r}
        v_permlane32_swap_b32 v{r}, v{t}
        {op} v{r}, v{r}, v{t}
        v_mov_b32 v{t}, v{r}
        v_permlane16_swap_b32 v{r}, v{t}
        {op} v{r}, v{r}, v{t}""")
    a("v_max3_f32 v16, v56, v57, v58")
    for r in range(59, 71, 2): a(f"v_max3_f32 v16, v16, v{r}, v{r+1}")
    a("v_max_f32 v16, v16, v71")
    allred("v_max_f32", 16, 24)
    a(f"v_mul_f32 v16, {SC}, v16")
    for r in range(56, 72): a(f"v_fma_f32 v{r}, v{r}, {SC}, -v16")
    pad('C')
    for r in range(56, 72): a(f"v_exp_f32 v{r}, v{r}")
    pad('C')
    a("v_add_f32 v17, v56, v57\nv_add_f32 v18, v58, v59")
    for r in range(60, 72, 2): a(f"v_add_f32 v17, v17, v{r}\nv_add_f32 v18, v18, v{r+1}")
    a("v_add_f32 v17, v17, v18")
    allred("v_add_f32", 17, 24)
    a("""ds_write_b64 v22, v[16:17]
    v_mov_b32 v20, 1
    s_mov_b64 exec, 1
    ds_add_u32 v21, v20 offset:32
    s_mov_b64 exec, -1""")
    pad('C')
    ldswait(32, 4, cache="s57", sleep=1)
    pad('C')
    for w in range(4): a(f"ds_read_b64 v[{32+2*w}:{33+2*w}], v19 offset:{32*w}")
    a("""s_waitcnt lgkmcnt(0)
    v_max3_f32 v42, v32, v34, v36
    v_max_f32 v42, v42, v38""")
    for w in range(4): a(f"v_sub_f32 v{32+2*w}, v{32+2*w}, v42")
    a("v_sub_f32 v16, v16, v42")
    for w in range(4): a(f"v_exp_f32 v{32+2*w}, v{32+2*w}")
    a(f"""v_exp_f32 v16, v16
    v_mul_f32 v17, v32, v33
    v_fmac_f32 v17, v34, v35
    v_fmac_f32 v17, v36, v37
    v_fmac_f32 v17, v38, v39
    v_rcp_f32 v18, v17
    v_log_f32 v17, v17
    v_mov_b32 v43, {TAG}
    v_mul_f32 v16, v16, v18
    v_add_f32 v42, v42, v17""")
    pad('C')
    for r in range(56, 72): a(f"v_mul_f32 v{r}, v16, v{r}")
    for r in range(0, 8): a(f"v_cvt_pk_bf16_f32 v{56+r}, v{56+2*r}, v{57+2*r}")
    a(f"""ds_write_b128 v1, v[60:63]
    ds_write_b128 v1, v[56:59] offset:4096
    v_mov_b32 v20, 1
    s_mov_b64 exec, 1
    ds_add_u32 v21, v20 offset:36
    s_mov_b64 exec, -1
    v_mov_b32 v53, {TAG}
    s_mov_b32 {TH}, 34""")
    ldswait(36, 4, cache="s57", sleep=1)
    stamp(17)
    def vtile(last):
        if last and lastbar: a("ds_read_b128 v[28:31], v6\ns_barrier")
        else:
            ldswait(0, TH, cache=LC, cached=True, sleep=0 if last else csl)
            a("ds_read_b128 v[28:31], v6")
        for t in range(2):
            for u in range(2): a(f"ds_read_b64_tr_b16 v[{80+4*t+2*u}:{81+4*t+2*u}], v{4+t} offset:{u*4096}")
        if not last:
            a(f"""s_sub_u32 s57, {TH}, 1
            v_mov_b32 v20, s57
            s_add_u32 {TH}, {TH}, 1
            v_add_u32 v6, 0x100, v6""")
        for t in range(2):
            a(f"s_waitcnt lgkmcnt({2-2*t})")
            a(f"v_mfma_f32_16x16x32_bf16 v[{72+4*t}:{75+4*t}], v[{80+4*t}:{83+4*t}], v[28:31], v[{72+4*t}:{75+4*t}]")
    a("L_vloop:")
    pad('C')
    vtile(False)
    a(f"""ds_write_b32 v7, v20 offset:16
    v_add_u32 v4, 0x2000, v4
    v_add_u32 v5, 0x2000, v5
    v_and_b32 v4, 0x1ffff, v4
    v_and_b32 v5, 0x1ffff, v5""")
    def wofrags():
        n = 0
        for s in range(4):
            for t in range(4):
                if n >= 12: a("s_waitcnt lgkmcnt(12)")
                tr(s, t, 88); n += 2
                pad('C')
    if not wolast:
        a(f"""s_cmp_lt_u32 {TH}, {pwo + 4}
        s_cbranch_scc1 L_vloop
        s_cmp_eq_u32 {TH}, {pwo + 4}
        s_cbranch_scc0 L_nowo""")
        wofrags()
        a("s_waitcnt lgkmcnt(0)\nL_nowo:")
    if prew & 1:
        a(f"s_cmp_eq_u32 {TH}, 58\ns_cbranch_scc0 L_nopw")
        for i in range(4): a(f"buffer_load_dwordx4 v[{56+4*i}:{59+4*i}], v46, s[40:43], s67 offen offset:{i*1024} sc1")
        a("L_nopw:")
    a(f"""
    s_cmp_lt_u32 {TH}, 65
    s_cbranch_scc1 L_vloop""")
    pad('C', True)
    vtile(True)
    stamp(3)
    if abl & 32:
        if wolast: a("s_barrier")
        end()
    a(f"""s_mov_b32 exec_lo, 0x00ff00ff
    s_mov_b32 exec_hi, 0x00ff00ff
    v_cvt_pk_bf16_f32 v40, v72, v73
    v_cvt_pk_bf16_f32 v41, v74, v75
    v_cvt_pk_bf16_f32 v32, v76, v77
    v_cvt_pk_bf16_f32 v33, v78, v79
    s_cmp_eq_u32 {LOC}, 1
    v_mov_b32_dpp v40, v32 quad_perm:[0,1,2,3] row_mask:0xf bank_mask:0x2
    v_mov_b32_dpp v41, v33 quad_perm:[0,1,2,3] row_mask:0xf bank_mask:0x2
    s_cbranch_scc0 L_ofar
    buffer_store_dwordx4 v[40:43], v44, s[40:43], s66 offen
    L_onear:
    s_mov_b64 exec, -1""")
    stamp(8)
    if light:
        a(f"""L_pl:
        buffer_load_dwordx4 v[68:71], v46, s[40:43], s67 offen offset:3072 sc1
        s_waitcnt vmcnt(0)
        v_cmp_ne_u32 vcc, {TAG}, v71
        s_cmp_eq_u64 vcc, 0
        s_cbranch_scc1 L_po
        s_sub_u32 {CNT}, {CNT}, 1
        s_cbranch_scc0 L_pl""")
    old = [f"buffer_load_dwordx4 v[{56+4*i}:{59+4*i}], v46, s[40:43], s67 offen offset:{i*1024} sc1" for i in range(4)]
    if wolast:
        for l in old: a(l)
        a("s_barrier")
        wofrags()
        a("s_branch L_po1")
    a("L_po:")
    for l in old: a(l)
    a("L_po1:\ns_waitcnt vmcnt(0)")
    check([59 + 4*i for i in range(4)])
    a(f"""s_cbranch_scc1 L_po_ok
    s_sub_u32 {CNT}, {CNT}, 1
    s_cbranch_scc0 L_po
    L_po_ok:""")
    stamp(9)
    pad('C')
    if stamps: a(f"s_sub_u32 s98, {spin}, {CNT}"); stamp(12, "s98")
    a("v_mov_b32 v18, v58")
    for s in range(4):
        for d in range(2): a(f"v_mov_b32_dpp v{58+4*s+d}, v{56+4*s+d} row_shl:8 row_mask:0xf bank_mask:0xf bound_ctrl:1")
    if wolast: a("s_waitcnt lgkmcnt(0)")
    def omf(s, t):
        c = "0" if s == 0 else f"v[{72+4*t}:{75+4*t}]"
        r = 88 + (s*4+t)*4
        return f"v_mfma_f32_16x16x32_bf16 v[{72+4*t}:{75+4*t}], v[{56+4*s}:{59+4*s}], v[{r}:{r+3}], {c}"
    P = ["quad_perm:[1,0,3,2]", "quad_perm:[2,3,0,1]", "row_half_mirror"]
    wv = [f"v_max_f32_dpp v19, v18, v18 {P[0]} {dp}", f"v_max_f32_dpp v19, v19, v19 {P[1]} {dp}", f"v_max_f32_dpp v19, v19, v19 {P[2]} {dp}",
          "v_sub_f32 v18, v18, v19", "v_exp_f32 v18, v18",
          f"v_add_f32_dpp v19, v18, v18 {P[0]} {dp}", f"v_add_f32_dpp v19, v19, v19 {P[1]} {dp}", f"v_add_f32_dpp v19, v19, v19 {P[2]} {dp}",
          "v_rcp_f32 v19, v19", "v_mul_f32 v18, v18, v19"]
    wv.append("\n".join(f"v_mov_b32_dpp v{32+i}, v18 row_newbcast:{i} row_mask:0x5 bank_mask:0xf" for i in range(4)))
    wv.append("\n".join(f"v_mov_b32_dpp v{32+i}, v18 row_newbcast:{4+i} row_mask:0xa bank_mask:0xf" for i in range(4)))
    T4 = [52, 36, 37, 38]
    def wsum(t): return f"v_mul_f32 v{T4[t]}, v32, v{72+4*t}\n" + "\n".join(f"v_fmac_f32 v{T4[t]}, v{32+i}, v{72+4*t+i}" for i in range(1, 4))
    order = [(s, t) for th in (0, 2) for s in range(4) for t in (th, th + 1)]
    for i, (s, t) in enumerate(order):
        a(omf(s, t))
        if i < len(wv): a(wv[i])
        pad('C')
        if i == 13: a(wsum(0))
        if i == 14: a(wsum(1))
    a("v_permlane16_swap_b32 v52, v36")
    a(wsum(2)); a("v_add_f32 v52, v52, v36"); a(wsum(3))
    pad('C', True)
    a("""v_permlane16_swap_b32 v37, v38
    v_add_f32 v37, v37, v38
    v_permlane32_swap_b32 v52, v37
    v_mov_b32_dpp v36, v52 quad_perm:[1,0,3,2] row_mask:0xf bank_mask:0xf
    s_mov_b32 exec_lo, 0x55555555
    s_mov_b32 exec_hi, 0x55555555
    v_cvt_pk_bf16_f32 v52, v52, v36
    buffer_store_dwordx2 v[52:53], v45, s[40:43], s68 offen sc1""")
    stamp(10)
    if cbar: a("s_barrier")
    end()
    a("L_ofar:\nbuffer_store_dwordx4 v[40:43], v44, s[40:43], s66 offen sc1\ns_branch L_onear")
    a.close_chains()
    errs = full_check(a)
    assert not errs, "\n".join(errs)
    nv = 232 if (stamps or lite) else 184
    a.raw(f""".section .rodata,"a"
.p2align 6
.amdhsa_kernel {name}
  .amdhsa_next_free_vgpr {nv}
  .amdhsa_next_free_sgpr 102
  .amdhsa_accum_offset {nv}
  .amdhsa_group_segment_fixed_size 0
  .amdhsa_kernarg_size 104
  .amdhsa_user_sgpr_count 2
  .amdhsa_user_sgpr_kernarg_segment_ptr 1
  .amdhsa_system_sgpr_workgroup_id_x 1
.end_amdhsa_kernel""")
    return a.text()

if __name__ == "__main__":
    out = sys.argv[1]
    kw = eval("dict(%s)" % (sys.argv[2] if len(sys.argv) > 2 else ""))
    open(out, "w").write(gen(**kw))
```

```python
import struct, sys
sys.path.insert(0, "work")
from asmdsl import Asm, full_check

NAME = "recurrent_scan__gqa_block_cached__mixer_channel_mlp__decode_kernel"
def f2u(x): return struct.unpack("<I", struct.pack("<f", x))[0]
def hx(x): return "0x%08x" % (x & 0xffffffff)

QBUF, HBUF, MBUF, OBUF, SBUF, STAMPS = 0x10000, 0x50000, 0x80000, 0x100000, 0x180000, 0x200000
WS_SIZE = 0x400000
QAREA, HAREA = 131072, 147456
FL = HAREA
TAGL, STATL, MLX, QIMG, HIMG, XIMG, PBUF = HAREA + 48, HAREA + 64, HAREA + 128, HAREA + 1024, HAREA + 2048, HAREA + 4096, HAREA + 8192
TB = 16384
OSTR = 528
MLOFF = 2304
TAGC = 0x9E3779B9
SPIN = 131071
LOG2E = 1.4426950408889634
M4 = "s_mov_b32 exec_lo, 0x000f000f\ns_mov_b32 exec_hi, 0x000f000f"
J, HEAD, HKV, B = "s52", "s53", "s54", "s55"
TAG, CNT, LOC = "s30", "s31", "s72"

HEADER = open("recurrent_scan__gqa_block_cached__mixer_channel_mlp__decode.s.ref").read().split("; Override launch")[0]


DOC = """;
;   wave 0      loader: every bulk byte (wq tile, x, all K tiles, w1 or w2 tile, all V tiles, wo tile) goes HBM -> LDS by
;               workgroup lags the nominal rate) so that the dies share the HBM bandwidth evenly.
; Hand-offs between workgroups go through d_ws as self-validating granules {data, tag}; tag = d_ws[0] + const, stored back
; at the end, so words of earlier launches never match.  Stores stay in the die's L2 only when all 32 workgroups of the group
; instruction cache early."""

def gen(name=NAME, stamps=False, lite=False, kvf="nt", wf="nt", spin=SPIN, N=21, rot=1, slp=8, qdelay=4, mapping="mod",
        qlocal=3, s2delay=20, s3delay=1, pw1=8, pw2=12, pwo=40, csl=1, abl=0, lprio=3, aprio=2, pipe2=0, gran=1, burst=True, cpre=True, ilw=True, touch=False, kmaj=False, t3=48, mpipe=False, tq=7, t2=34, bar2=1, irot=1, Nhi=36, T=271, T0=1200, nb=4, lv=None, prew=0, light=False, lastbar=True, tch=0, gref=0, wolast=True, latebar=True, warm=7, padstep=192, compact=True, nset=2, cbar=False, fdelay=0, fback=0, odelay=0, probe=None, kalt=False, seqburst=True):
    a = Asm()
    def pad(c, force=False):
        if warm & {'L': 1, 'C': 2, 'F': 4, 'Q': 8}[c]: a.pad(c, padstep, force)
    if lv is None: lv = [(None, N)] + ([(0, Nhi)] if Nhi not in (None, N) else [])
    adapt = len(lv) > 1
    if wolast: pwo = 64
    NMAX = max(n for _, n in lv)
    def stamp(k, val=None):
        if stamps or (lite and k == 0):
            if val is None:
                a(f"s_memrealtime s[98:99]\ns_waitcnt lgkmcnt(0)"); val = "s98"
            a(f"v_writelane_b32 v230, {val}, {k}")
    def flush_stamps():
        if not (stamps or lite): return
        stamp(0, "s96")
        a("s_mov_b64 exec, -1")
        a("s_getreg_b32 s64, hwreg(HW_REG_XCC_ID, 0, 4)\nv_writelane_b32 v230, s64, 15")
        if stamps: a("s_memtime s[98:99]\ns_waitcnt lgkmcnt(0)\ns_sub_u32 s98, s98, s100\nv_writelane_b32 v230, s98, 14")
        a("s_memrealtime s[98:99]\ns_waitcnt lgkmcnt(0)\nv_writelane_b32 v230, s98, 13")
        a(f"""s_lshl_b32 s64, s2, 3
        s_add_u32 s64, s64, s3
        s_lshl_b32 s64, s64, 7
        s_add_u32 s64, s64, {STAMPS}
        s_mov_b32 s48, s28
        s_mov_b32 s49, s29
        s_mov_b32 s50, {WS_SIZE}
        s_mov_b32 s51, 0x20000
        v_lshlrev_b32 v231, 2, v0
        s_mov_b32 exec_hi, 0
        buffer_store_dword v230, v231, s[48:51], s64 offen""")
    def end():
        flush_stamps(); a("s_endpgm")
    def srd(d, lo, off, size):
        if off is None:
            a(f"s_mov_b32 s{d}, s{lo}\ns_mov_b32 s{d+1}, s{lo+1}")
        else:
            a(f"s_add_u32 s{d}, s{lo}, {off}\ns_addc_u32 s{d+1}, s{lo+1}, 0")
        a(f"s_mov_b32 s{d+2}, {size}\ns_mov_b32 s{d+3}, 0x20000")
    def check(tags):
        for t in tags: a(f"v_cmpx_eq_u32 vcc, {TAG}, v{t}")
        a("s_cmp_eq_u64 exec, -1\ns_mov_b64 exec, -1")
    uid = [0]
    def ldswait(off, thr, cache="s56", sleep=csl, vt=20, cached=False):
        uid[0] += 1; u = uid[0]
        if cached: a(f"s_cmp_ge_i32 {cache}, {thr}\ns_cbranch_scc1 L_lw{u}_ok")
        a(f"""L_lw{u}:
        ds_read_b32 v{vt}, v21 offset:{off}
        s_waitcnt lgkmcnt(0)
        v_readfirstlane_b32 {cache}, v{vt}
        s_cmp_ge_i32 {cache}, {thr}
        s_cbranch_scc1 L_lw{u}_ok""")
        if sleep: a(f"s_sleep {sleep}")
        a(f"s_sub_u32 s71, s71, 1\ns_cbranch_scc0 L_lw{u}\ns_endpgm\nL_lw{u}_ok:")
    def setflag(off, val, vt=20):
        a(f"v_mov_b32 v{vt}, {val}\nds_write_b32 v21, v{vt} offset:{off}")
    def tr(s, t, base=96):
        r = base + (s * 4 + t) * 4
        for u in range(2): a(f"ds_read_b64_tr_b16 v[{r+2*u}:{r+2*u+1}], v{12+t} offset:{s*4096+u*512}")
    def tr_addr(area):
        a(f"""v_add_u32 v12, {area}, v7
        v_xor_b32 v13, 32, v12
        v_xor_b32 v14, 64, v12
        v_xor_b32 v15, 0x60, v12""")
    def trbase():
        a("""v_and_b32 v10, 1, v2
        v_bfe_u32 v7, v0, 3, 1
        v_lshl_add_u32 v7, v10, 1, v7
        v_lshlrev_b32 v7, 5, v7
        v_and_b32 v10, 3, v0
        v_lshl_add_u32 v7, v10, 3, v7
        v_bfe_u32 v10, v0, 2, 2
        v_lshl_add_u32 v7, v10, 7, v7
        v_lshl_add_u32 v7, v2, 10, v7""")
    def hjob(skip):
        a(f"""s_sub_u32 s58, {J}, 4
        s_lshl_b32 s58, s58, 5
        s_add_u32 s58, s58, {HEAD}
        s_cmp_ge_u32 s58, 112
        s_cbranch_scc1 {skip}
        s_and_b32 s57, s58, 3
        s_lshr_b32 s58, s58, 2""")
    def gettag():
        a(f"""ds_read_b64 v[22:23], v21 offset:{TAGL-FL}
        s_waitcnt lgkmcnt(0)
        v_readfirstlane_b32 {TAG}, v22
        v_readfirstlane_b32 {LOC}, v23""")

    a.raw(HEADER.rstrip("\n"))
    a.raw("; @launch grid=(256,1,1) block=(512,1,1) lds=163840")
    a.raw(DOC)
    a.raw('.amdgcn_target "amdgcn-amd-amdhsa--gfx950"\n.text')
    a.raw(f".globl {name}\n.p2align 8\n.type {name},@function")
    a.label(name)
    a("""s_load_dwordx16 s[4:19], s[0:1], 0
    s_load_dwordx8 s[20:27], s[0:1], 64
    s_load_dwordx2 s[28:29], s[0:1], 96""")
    if adapt: a("s_memrealtime s[76:77]")
    if stamps or lite: a("s_memrealtime s[96:97]\ns_memtime s[100:101]")
    a(f"""s_cmp_ge_u32 s2, 256
    s_cbranch_scc1 L_end
    v_lshrrev_b32 v1, 6, v0
    v_and_b32 v0, 63, v0
    v_readfirstlane_b32 s3, v1
    v_lshrrev_b32 v2, 4, v0
    v_and_b32 v3, 15, v0
    v_mov_b32 v21, {FL}
    s_mov_b32 s71, 0x200000""")
    if mapping == "div": a(f"s_and_b32 {J}, s2, 7\ns_lshr_b32 {HEAD}, s2, 3")
    else: a(f"s_lshr_b32 {J}, s2, 5\ns_and_b32 {HEAD}, s2, 31")
    a(f"""s_and_b32 {HKV}, {HEAD}, 7
    s_lshr_b32 {B}, {HEAD}, 3
    s_cmp_eq_u32 s3, 0
    s_cbranch_scc1 L_isL""")
    if warm & 8:
        a("s_cmp_eq_u32 s3, 2\ns_cbranch_scc0 L_nq"); a.warm('Q'); a("s_branch L_notL\nL_nq:")
    if warm & 1:
        a("s_cmp_eq_u32 s3, 3\ns_cbranch_scc0 L_notL"); a.warm('L')
    a("s_branch L_notL\nL_isL:")
    NN, PV, HR, OA, OB, RR, CV = "s59", "s60", "s61", "s63", "s64", "s65", "s66"
    a(f"""s_setprio {lprio}
    v_mov_b64 v[24:25], 0
    v_mov_b64 v[26:27], 0
    ds_write_b128 v21, v[24:27]
    ds_write_b128 v21, v[24:27] offset:32
    v_mov_b32 v28, 0
    v_mov_b32 v25, 1
    v_mov_b32 v26, 2
    v_mov_b32 v27, 3
    ds_write_b128 v21, v[24:27] offset:16
    v_lshrrev_b32 v5, 3, v0
    v_and_b32 v6, 7, v0
    v_and_b32 v10, 1, v2
    v_lshlrev_b32 v10, 1, v10
    v_xor_b32 v6, v6, v10
    v_lshlrev_b32 v6, 4, v6
    v_lshl_add_u32 v8, v5, 13, v6
    v_xor_b32 v9, 64, v8
    v_lshlrev_b32 v4, 4, v0
    v_lshlrev_b32 v16, 1, v2
    v_xor_b32 v16, v16, v3
    v_lshlrev_b32 v16, 4, v16
    v_lshl_add_u32 v16, v2, 8, v16
    v_xor_b32 v17, 0x80, v16
    v_xor_b32 v18, 16, v16
    v_xor_b32 v19, 0x90, v16
    s_lshl_b32 s58, {B}, 13
    s_add_u32 s58, s58, {J}
    s_lshl_b32 s57, {HKV}, 3
    s_add_u32 s58, s58, s57
    s_lshl_b32 s58, s58, 7
    s_lshl_b32 s67, {HEAD}, 21
    s_lshl_b32 s57, {J}, 18
    s_add_u32 s67, s67, s57
    s_mov_b32 s62, 0
    s_mov_b32 m0, {QAREA}
    s_waitcnt lgkmcnt(0)""")
    if not latebar: a("s_barrier")
    if probe and probe[0] == "ev" and probe[2] == -2: a("s_memrealtime s[88:89]\ns_waitcnt lgkmcnt(0)")
    srd(40, 10, "s58", 127*8192+128)
    if compact and not abl & (2 | 128):
        a(f"""L_wq:
        buffer_load_dwordx4 v8, s[40:43], s62 offen {wf} lds
        s_add_u32 m0, m0, 1024
        s_add_u32 s62, s62, 0x10000
        buffer_load_dwordx4 v9, s[40:43], s62 offen {wf} lds
        s_add_u32 m0, m0, 1024
        s_add_u32 s62, s62, 0x10000
        s_cmp_lt_u32 s62, 0x100000
        s_cbranch_scc1 L_wq""")
    for k in range(0 if (abl & (2 | 128) or compact) else 16):
        a(f"buffer_load_dwordx4 v{8+(k&1)}, s[40:43], s62 offen {wf} lds")
        if k < 15: a("s_add_u32 m0, m0, 1024\ns_add_u32 s62, s62, 0x10000")
    a(f"s_mov_b32 m0, {XIMG}")
    srd(44, 4, None, 4096)
    for k in range(4): a(f"buffer_load_dwordx4 v4, s[44:47], 0 offen offset:{k*1024} lds")
    a(f"""s_add_u32 s32, s6, s67
    s_addc_u32 s33, s7, 0
    s_add_u32 s34, s8, s67
    s_addc_u32 s35, s9, 0
    s_mov_b32 s46, 0x40000
    s_mov_b64 s[44:45], s[32:33]
    s_lshr_b32 {RR}, s2, 3
    s_and_b32 {RR}, {RR}, {7 if rot else 0}""")
    if irot: a(f"s_lshl_b32 s57, {J}, 3\ns_or_b32 {RR}, {RR}, s57")
    a(f"s_lshl_b32 {RR}, {RR}, 12")
    GO = (OA, OB, "s74", "s75")
    pair = [(k, g) for k in range(4) for g in (0, 2, 1, 3)]
    def pairaddr(): a(f"s_xor_b32 {OB}, {OA}, 4096\ns_xor_b32 s74, {OA}, 8192\ns_xor_b32 s75, {OA}, 12288")
    def pairload(k, g): a(f"buffer_load_dwordx4 v{16+k}, s[44:47], {GO[g]} offen offset:{k*1024} {kvf} lds")
    if kalt and not seqburst:
        assert nb % 2 == 0
        a(f"s_mov_b32 s68, 0\nL_burst:\ns_xor_b32 {OA}, {RR}, s68")
        pairaddr()
        for k, g in pair:
            a(f"s_add_u32 m0, s68, {g*4096}"); pairload(k, g)
        a(f"s_add_u32 s68, s68, 16384\ns_cmp_lt_u32 s68, {nb << 13}\ns_cbranch_scc1 L_burst")
    else:
        a(f"s_mov_b32 s68, 0\nL_burst:\ns_xor_b32 {OA}, {RR}, s68\ns_xor_b32 {OB}, {OA}, 4096\ns_mov_b32 m0, s68")
        for k in range(8):
            if k == 4: a("s_add_u32 m0, s68, 4096")
            a(f"buffer_load_dwordx4 v{16+(k&3)}, s[44:47], {(OA,OB)[k//4]} offen offset:{(k&3)*1024} {kvf} lds")
        a(f"s_add_u32 s68, s68, 8192\ns_cmp_lt_u32 s68, {nb << 13}\ns_cbranch_scc1 L_burst")
    a(f"""s_mov_b32 {NN}, {nb}
    s_mov_b32 {PV}, 1
    s_mov_b32 {HR}, {(0x5555 & ((1 << nb) - 1)) if kalt else (1 << nb) - 1}
    s_mov_b32 s78, s76
    s_mov_b32 s79, {T0 + nb*T}
    v_mov_b32 v20, 1""")
    if latebar: a("s_barrier")
    if probe and probe[0] == "ev" and probe[2] == -1: a("s_memrealtime s[88:89]\ns_waitcnt lgkmcnt(0)")
    a(f"""s_waitcnt vmcnt({8*nb})
    ds_write_b32 v21, v20""")
    if probe and probe[0] == "ev" and probe[2] == 0: a("s_memrealtime s[88:89]\ns_waitcnt lgkmcnt(0)")
    def publish(age):
        a(f"""s_lshr_b32 s58, {HR}, {age}
        s_bcnt1_i32_b32 s58, s58
        {f"s_lshl1_add_u32 {PV}, s58, {PV}" if kalt else f"s_add_u32 {PV}, {PV}, s58"}
        s_and_b32 {HR}, {HR}, {(1 << age) - 1}
        v_mov_b32 v20, {PV}
        ds_write_b32 v21, v20""")
    def mode(lbl):
        if adapt:
            a("""s_sub_u32 s57, s76, s78
            s_mul_i32 s57, s57, 10
            s_sub_u32 s57, s57, s79
            s_memrealtime s[76:77]""")
            for i in range(len(lv) - 1, 0, -1):
                a(f"s_cmp_ge_i32 s57, {lv[i][0]}\ns_cbranch_scc1 {lbl}{i}")
    def cmin(): a(f"v_min3_i32 v23, v24, v25, v26\nv_min_i32 v23, v23, v27\nv_readfirstlane_b32 {CV}, v23")
    a("L_step:")
    pad('L', True)
    a(f"""s_sub_u32 s67, {NN}, {14 if kalt else 15}
    s_waitcnt lgkmcnt(0)""")
    if gref: a("v_readfirstlane_b32 s80, v28\ns_cmp_eq_u32 s80, 0\ns_cselect_b32 s78, s78, s80")
    a("""s_cmp_gt_i32 s67, 0
    s_cbranch_scc0 L_free""")
    cmin()
    a(f"""s_cmp_ge_i32 {CV}, s67
    s_cbranch_scc0 L_stall
    L_free:
    s_and_b32 {OA}, {NN}, 31
    s_lshl_b32 {OA}, {OA}, 13
    s_xor_b32 {OA}, {OA}, {RR}
    s_and_b32 s68, {NN}, 15
    s_lshl_b32 s68, s68, 13
    s_bitcmp1_b32 {NN}, 5
    s_cselect_b64 s[44:45], s[34:35], s[32:33]
    s_add_u32 {NN}, {NN}, {2 if kalt else 1}
    s_mov_b32 m0, s68""")
    if kalt: pairaddr()
    else: a(f"s_xor_b32 {OB}, {OA}, 4096")
    def kvbody(n):
        for i, (k, g) in enumerate(pair if kalt else []):
            if i == 8: a(f"s_lshl_b32 {HR}, {HR}, 1"); pad('L')
            if i: a(f"s_add_u32 m0, s68, {g*4096}")
            a(f"s_waitcnt vmcnt({n-1})")
            if i % 8 == (n - 1) % 8: publish((n - 1) // 8)
            pairload(k, g)
            if i == 14: a("ds_read_b128 v[24:27], v21 offset:16")
        for k in range(0 if kalt else 8):
            if k == 4: a("s_add_u32 m0, s68, 4096")
            a(f"s_waitcnt vmcnt({n-1})")
            if k == (n - 1) % 8: publish((n - 1) // 8)
            a(f"buffer_load_dwordx4 v{16+(k&3)}, s[44:47], {(OA,OB)[k//4]} offen offset:{(k&3)*1024} {kvf} lds")
            if k == 6: a("ds_read_b128 v[24:27], v21 offset:16")
            if k == 5 and gref: a("ds_read_b32 v28, v21 offset:40")
    mode("L_kvhi")
    kvbody(lv[0][1])
    a("L_kvj:")
    if probe and probe[0] == "ev":
        a(f"s_cmp_eq_u32 {NN}, {probe[2]}\ns_cbranch_scc0 L_pev\ns_waitcnt lgkmcnt(0)\ns_mov_b32 s88, s76\nL_pev:")
    pad('L', True)
    a(f"""    s_lshl_b32 {HR}, {HR}, 1
    s_or_b32 {HR}, {HR}, 1
    s_add_u32 s79, s79, {2*T if kalt else T}
    s_cmp_eq_u32 {NN}, {pw1}
    s_cbranch_scc1 L_w1
    s_cmp_eq_u32 {NN}, {pwo}
    s_cbranch_scc1 L_wo
    s_cmp_lt_u32 {NN}, 64
    s_cbranch_scc1 L_step""")
    a("L_drain:")
    stamp(1)
    AM = (NMAX + 7) // 8
    for q in range(AM - 1, -1, -1):
        pad('L')
        if wolast and q == 1: continue
        a(f"s_waitcnt vmcnt({8*q})")
        if q in ((0, 2) if wolast else (0,)) and lastbar: a("s_barrier")
        else: publish(q)
    a("s_waitcnt lgkmcnt(0)")
    if probe:
        a("""s_memrealtime s[80:81]
        s_mov_b32 s84, s26
        s_mov_b32 s85, s27
        s_mov_b32 s86, 256
        s_mov_b32 s87, 0x20000
        s_and_b32 s82, s2, 7
        s_lshl_b32 s82, s82, 2
        s_waitcnt lgkmcnt(0)
        v_mov_b32 v30, 0
        v_mov_b32 v31, s78
        v_mov_b32 v32, s80
        s_mov_b64 exec, 1
        s_cmp_lt_u32 s2, 8
        s_cbranch_scc0 L_pr1
        buffer_store_dword v31, v30, s[84:87], s82 offen sc1
        v_mov_b32 v33, s88
        buffer_store_dword v33, v30, s[84:87], s82 offen offset:64 sc1
        L_pr1:
        s_and_b32 s83, s2, 0x18
        s_cbranch_scc1 L_pr2
        buffer_atomic_umax v32, v30, s[84:87], s82 offen offset:128
        L_pr2:
        s_waitcnt vmcnt(0)""")
    stamp(2)
    end()
    for i in range(1, len(lv)):
        a(f"L_kvhi{i}:"); pad('L', True); kvbody(lv[i][1]); a("s_branch L_kvj")
    a("L_stall:")
    for q in range(AM - 1, -1, -1):
        pad('L')
        a(f"s_waitcnt vmcnt({8*q})"); publish(q)
        a("ds_read_b128 v[24:27], v21 offset:16\ns_waitcnt lgkmcnt(0)")
        cmin()
        a(f"""s_cmp_ge_i32 {CV}, s67
        s_cbranch_scc1 L_free""")
    a("s_sleep 1\ns_sub_u32 s71, s71, 1\ns_cbranch_scc0 L_stall\ns_endpgm")
    def wbody(n):
        for k in range(8):
            pad('L')
            a(f"s_waitcnt vmcnt({n-1})")
            if k == (n - 1) % 8: publish((n - 1) // 8)
            a(f"buffer_load_dwordx4 v{8+(k&1)}, s[40:43], s62 offen {wf} lds")
            a("s_add_u32 m0, m0, 1024\ns_add_u32 s62, s62, s70")
    a("L_wtile:\ns_waitcnt lgkmcnt(0)")
    mode("L_whi")
    wbody(lv[0][1])
    a(f"""L_wj:
    s_lshl_b32 {HR}, {HR}, 1
    s_add_u32 s79, s79, {T}
    s_sub_u32 s69, s69, 1
    s_cbranch_scc0 L_wtile
    s_cmp_lt_u32 {NN}, 64
    s_cbranch_scc1 L_step
    s_branch L_drain""")
    for i in range(1, len(lv)):
        a(f"L_whi{i}:"); wbody(lv[i][1]); a("s_branch L_wj")
    a("""    L_w1:""")
    if abl & (2 | 256): a("s_branch L_step")
    a(f"s_cmp_lt_u32 {J}, 4\ns_cbranch_scc1 L_w2")
    hjob("L_step")
    a(f"""s_mul_i32 s57, s57, 3584
    s_add_u32 s58, s58, s57
    s_lshl_b32 s58, s58, 7
    v_mul_u32_u24 v8, 3584, v5
    v_add_u32 v8, v8, v6
    s_mov_b32 s70, {8*3584}""")
    srd(40, 16, "s58", 127*3584+128)
    a(f"""s_branch L_wmid
    L_w2:
    s_lshl_b32 s57, {B}, 2
    s_add_u32 s57, s57, {J}
    s_mul_i32 s57, s57, {112*1024}
    s_lshl_b32 s58, {HKV}, 7
    s_add_u32 s57, s57, s58
    v_lshl_add_u32 v8, v5, 10, v6
    s_mov_b32 s70, 8192""")
    srd(40, 20, "s57", 111*1024+128)
    a("L_wmid:")
    pad('L', True)
    if not abl & 1: ldswait(8, 1, cache="s69")
    a(f"""v_xor_b32 v9, 64, v8
    s_mov_b32 s62, 0
    s_mov_b32 s69, 1
    s_mov_b32 m0, {QAREA}""")
    a("s_branch L_wtile\nL_wo:")
    if abl & (2 | 512): a("s_branch L_step")
    if not abl & 1: ldswait(12, 1, cache="s70")
    a(f"""s_lshl_b32 s57, {HKV}, 2
    s_add_u32 s57, s57, {B}
    s_lshl_b32 s57, s57, 17
    s_lshl_b32 s58, {J}, 7
    s_add_u32 s57, s57, s58
    v_lshl_add_u32 v8, v5, 10, v6
    v_xor_b32 v9, 64, v8
    s_mov_b32 s62, 0
    s_mov_b32 s69, 1
    s_mov_b32 s70, 8192
    s_mov_b32 m0, {QAREA}""")
    pad('L', True)
    srd(40, 12, "s57", 127*1024+128)
    a("s_branch L_wtile")

    a("L_notL:")
    if not latebar: a("s_barrier")
    a("""s_cmp_ge_u32 s3, 4
    s_cbranch_scc1 L_C""")
    if abl & 1:
        a("s_waitcnt lgkmcnt(0)"); end()
    if latebar: a("s_cmp_eq_u32 s3, 1\ns_cbranch_scc1 L_nb0\ns_barrier\nL_nb0:")
    a(f"s_setprio {aprio}")
    trbase()
    a("""v_and_b32 v1, 7, v0
    v_lshlrev_b32 v1, 3, v1
    v_lshl_add_u32 v1, v2, 1, v1
    v_lshlrev_b32 v30, 3, v3
    v_lshlrev_b32 v29, 4, v0
    s_waitcnt lgkmcnt(0)""")
    srd(40, 28, None, WS_SIZE)
    a(f"""s_cmp_eq_u32 s3, 3
    s_cbranch_scc1 L_A2
    s_mov_b32 s57, {B}
    s_mov_b32 s59, 1
    s_cmp_eq_u32 s3, 1
    s_cbranch_scc0 L_A1
    s_load_dword {TAG}, s[28:29], 0
    L_qh:
    s_mov_b32 s60, 0x3f803f80
    s_mov_b32 s61, 0x3f803f80""")
    for r in range(32, 96, 2): a(f"v_mov_b64 v[{r}:{r+1}], s[60:61]")
    tr_addr(str(QAREA))
    a(f"""v_lshlrev_b32 v4, 10, v3
    v_lshl_add_u32 v4, v2, 4, v4
    v_add_u32 v4, {XIMG}, v4
    s_lshl_b32 s62, s57, 8""")
    for gq in range(4):
        a(f"v_add_u32 v{24+gq}, s62, v4")
        if gq < 3: a("s_add_u32 s62, s62, 256\ns_and_b32 s62, s62, 0x3ff")
    a(f"""v_and_b32 v10, 3, v3
    v_lshlrev_b32 v17, 2, v10
    v_add_u32 v17, 64, v17
    v_lshlrev_b32 v11, 16, v10
    s_lshl_b32 s62, s57, 11
    s_lshl_b32 s60, {HKV}, 13
    s_add_u32 s62, s62, s60
    s_add_u32 s62, s62, {QBUF}
    s_mov_b32 s60, {J}
    s_cmp_eq_u32 s3, 1
    s_cbranch_scc1 L_q1
    v_mul_u32_u24 v11, 7168, v10
    s_mul_i32 s62, s57, 28672
    s_add_u32 s62, s62, {HBUF}
    s_mov_b32 s60, s58
    L_q1:
    v_lshrrev_b32 v10, 2, v3
    v_lshl_add_u32 v11, v10, 6, v11
    v_lshl_add_u32 v16, v2, 4, v11
    s_lshl_b32 s60, s60, 8
    s_add_u32 s73, s62, s60
    s_getreg_b32 s63, hwreg(HW_REG_XCC_ID, 0, 4)""")
    if latebar: a("s_cmp_eq_u32 s3, 1\ns_cbranch_scc0 L_nb1\ns_barrier\nL_nb1:")
    ldswait(0, "s59", sleep=0)
    stamp(2)
    pad('Q', True)
    a(M4)
    for s in range(4): a(f"ds_read_b128 v[{32+4*s}:{35+4*s}], v24 offset:{64*s}")
    a("s_mov_b64 exec, -1")
    for t in range(4): tr(0, t)
    def gram(s):
        c = "0" if s == 0 else "v[160:163]"
        return f"v_mfma_f32_16x16x32_bf16 v[160:163], v[{32+4*s}:{35+4*s}], v[{32+4*s}:{35+4*s}], {c}"
    def dmf(s, t):
        c = "0" if s == 0 else f"v[{164+4*t}:{167+4*t}]"
        r = 96 + (s*4+t)*4
        return f"v_mfma_f32_16x16x32_bf16 v[{164+4*t}:{167+4*t}], v[{r}:{r+3}], v[{32+4*s}:{35+4*s}], {c}"
    for s in range(4):
        a("s_waitcnt lgkmcnt(0)")
        if s < 3:
            a(M4)
            for q in range(4): a(f"ds_read_b128 v[{48+16*s+4*q}:{51+16*s+4*q}], v{25+s} offset:{64*q}")
            a("s_mov_b64 exec, -1")
            for t in range(4): tr(s+1, t)
        else:
            a(f"s_sub_u32 s60, s3, 1\ns_lshl_b32 s60, s60, 2\nv_add_u32 v18, s60, v21\nv_mov_b32 v19, 1\nds_write_b32 v18, v19 offset:8")
        pad('Q')
        for q in range(4): a(gram(4*s+q))
        if s < 3:
            for t in range(4): a(dmf(s, t))
    a("ds_bpermute_b32 v19, v17, v160")
    for t in range(4): a(dmf(3, t))
    a(f"""s_cmp_eq_u32 s3, 1
    s_cbranch_scc0 L_q2
    s_add_u32 {TAG}, {TAG}, {hx(TAGC)}
    L_q2:
    s_waitcnt lgkmcnt(0)
    v_mul_f32 v24, {hx(f2u(-1/512))}, v19
    v_mov_b32 v98, {TAG}
    v_mov_b32 v99, s63""")
    for r in range(164, 180): a(f"v_fmac_f32_dpp v{r}, v{r}, v24 row_shl:4 row_mask:0xf bank_mask:0xf bound_ctrl:1")
    pad('Q')
    a("v_cvt_pk_bf16_f32 v96, v164, v165\nv_cvt_pk_bf16_f32 v97, v166, v167")
    for t in range(1, 4): a(f"v_cvt_pk_bf16_f32 v{164+4*t}, v{164+4*t}, v{165+4*t}\nv_cvt_pk_bf16_f32 v{165+4*t}, v{166+4*t}, v{167+4*t}")
    for t in range(1, 4):
        a(f"v_mov_b32_dpp v96, v{164+4*t} row_shr:{4*t} row_mask:0xf bank_mask:{hex(1<<t)}")
        a(f"v_mov_b32_dpp v97, v{165+4*t} row_shr:{4*t} row_mask:0xf bank_mask:{hex(1<<t)}")
    far = "buffer_store_dwordx4 v[96:99], v16, s[40:43], s73 offen sc1"
    a(f"""s_cmp_eq_u32 s3, 1
    s_cbranch_scc1 L_qnear
    {far}""")
    stamp(3)
    end()
    a("L_qnear:")
    pad('Q')
    if abl & 2048:
        setflag(4, 1); setflag(12, 1); end()
    a("buffer_store_dwordx4 v[96:99], v16, s[40:43], s73 offen" if qlocal else far)
    stamp(3)
    a(f"""v_cmp_eq_u32 vcc, 1, v3
    v_cndmask_b32 v18, v160, v161, vcc
    v_cmp_eq_u32 vcc, 2, v3
    v_cndmask_b32 v18, v18, v162, vcc
    v_cmp_eq_u32 vcc, 3, v3
    v_cndmask_b32 v18, v18, v163, vcc
    s_mov_b32 s61, {hx(f2u(1e-5))}
    v_mul_f32 v18, {hx(f2u(1/512))}, v18
    v_fma_f32 v18, -v24, v24, v18
    v_max_f32 v18, 0, v18
    v_add_f32 v26, s61, v18
    v_rsq_f32 v26, v26
    v_lshlrev_b32 v10, 3, v0
    v_mul_f32 v27, v26, v26
    v_fma_f32 v27, v27, v18, s61
    v_rsq_f32 v27, v27
    v_add_u32 v11, {STATL}, v10
    v_add_u32 v10, {QIMG}, v10
    v_mul_f32 v27, v26, v27
    v_mul_f32 v26, {hx(f2u(128**-0.5 * LOG2E))}, v26
    s_mov_b64 exec, 15
    ds_write_b64 v11, v[26:27]
    s_mov_b64 exec, -1
    s_lshl_b32 s62, {HEAD}, 13
    s_add_u32 s62, s62, {QBUF}
    s_add_u32 s61, s62, 4096
    s_mov_b32 s58, 0x3f80
    s_mov_b32 s59, 0x3f800000""")
    pad('Q')
    if tq: ldswait(0, tq, sleep=2)
    elif qdelay: a(f"s_sleep {qdelay}")
    a(f"s_mov_b32 {CNT}, {spin}\nL_pq:")
    for i in range(8): a(f"buffer_load_dwordx4 v[{100+4*i}:{103+4*i}], v29, s[40:43], {('s62','s61')[i//4]} offen offset:{(i%4)*1024} sc1")
    a("s_waitcnt vmcnt(0)")
    check([102 + 4*i for i in range(8)])
    a("s_cbranch_scc1 L_pq_ok")
    if qlocal:
        a(f"""s_cmp_eq_u32 {CNT}, {spin - qlocal + 1}
        s_cbranch_scc0 L_pq_n
        {far}
        L_pq_n:""")
    a(f"""s_sub_u32 {CNT}, {CNT}, 1
    s_cbranch_scc0 L_pq
    L_pq_ok:""")
    if stamps: a(f"s_sub_u32 s98, {spin}, {CNT}"); stamp(5, "s98")
    for kq in range(4):
        pad('Q')
        for x in range(2):
            for d in range(2):
                for h in range(2):
                    acc = 132 + x*4 + d*2 + h
                    a(f"v_dot2_f32_bf16 v{acc}, v{100 + (kq*2+x)*4 + d}, s{58+h}, " + ("0" if kq == 0 else f"v{acc}"))
    for i in range(4): a(f"v_cvt_pk_bf16_f32 v{132+i}, v{132+2*i}, v{133+2*i}")
    a("""ds_write_b64 v10, v[132:133]
    ds_write_b64 v10, v[134:135] offset:512""")
    for i in range(8): a(f"v_cmpx_eq_u32 vcc, s63, v{103+4*i}")
    a(f"""s_cmp_eq_u64 exec, -1
    s_mov_b64 exec, -1
    s_cselect_b32 {LOC}, 1, 0""")
    if qlocal: a(f"s_cbranch_scc1 L_qloc\n{far}\nL_qloc:")
    a(f"""v_mov_b32 v26, {TAG}
    v_mov_b32 v27, {LOC}
    ds_write_b64 v21, v[26:27] offset:{TAGL-FL}""")
    pad('Q', True)
    setflag(4, 1)
    a(f"s_cmp_lt_u32 {J}, 4\ns_cbranch_scc1 L_hash")
    hjob("L_noh")
    a("s_branch L_hash\nL_noh:")
    setflag(12, 1)
    a("L_hash:")
    stamp(4)
    a(f"""s_cmp_lt_u32 {J}, 2
    s_cbranch_scc0 L_fin""")
    srd(44, 22, None, 1024); srd(48, 4, None, 4096)
    a(f"""s_lshl_b32 s57, {HKV}, 1
    s_add_u32 s57, s57, {J}
    s_lshl_b32 s58, {B}, 4
    s_add_u32 s58, s58, s57
    s_lshl_b32 s65, s58, 6
    s_lshl_b32 s57, s57, 6
    s_mov_b32 s74, 0x3f80
    s_mov_b32 s75, 0x3f800000
    buffer_load_ushort v28, v1, s[44:47], s57 offen
    buffer_load_ushort v4, v1, s[48:51], s65 offen
    s_lshl_b32 s64, s58, 12
    s_lshr_b32 s60, s64, 1
    s_add_u32 s60, s60, {MBUF}""")
    if not abl & 16:
        ldswait(0, t3, sleep=16)
        a(f"s_mov_b32 {CNT}, {spin}\nL_pm:")
        for i in range(2): a(f"buffer_load_dwordx4 v[{96+4*i}:{99+4*i}], v29, s[40:43], s60 offen offset:{i*1024} sc1")
        a("s_waitcnt vmcnt(0)")
        check([97 + 2*i for i in range(4)])
        a(f"""s_cbranch_scc1 L_pm_ok
        s_sleep {slp}
        s_sub_u32 {CNT}, {CNT}, 1
        s_cbranch_scc0 L_pm
        L_pm_ok:
""")
        for i in range(2):
            for d in range(2):
                for h in range(2): a(f"v_dot2_f32_bf16 v{112+2*d+h}, v{96+4*i+2*d}, s{74+h}, " + ("0" if i == 0 else f"v{112+2*d+h}"))
        a("s_nop 1\ns_call_b64 s[62:63], L_pg_ok")
    a(f"""s_waitcnt vmcnt(0)
    v_lshlrev_b32 v28, 16, v28
    v_lshlrev_b32 v4, 16, v4
    v_add_f32 v28, v28, v112
    v_mul_f32 v10, {hx(f2u(-LOG2E))}, v28
    v_exp_f32 v10, v10
    s_add_u32 s60, s64, {SBUF}
    v_add_f32 v10, 1.0, v10
    v_rcp_f32 v10, v10
    v_mov_b32 v25, {TAG}
    v_mul_f32 v28, v28, v10""")
    srd(44, 24, None, 4096)
    if prew & 2:
        for i in range(4): a(f"buffer_load_dwordx4 v[{96+4*i}:{99+4*i}], v29, s[40:43], s60 offen offset:{i*1024} sc1")
        a("s_waitcnt vmcnt(0)")
    stamp(6)
    if warm & 4: a.warm('F')
    if lastbar: a("s_barrier")
    if wolast: a("s_barrier")
    a("s_barrier")
    if abl & 32: a("s_branch L_fin")
    if fdelay: a(f"s_sleep {fdelay}")
    a("""s_call_b64 s[62:63], L_gather
    v_fma_f32 v28, v28, v112, v4
    v_cvt_pk_bf16_f32 v28, v28, v28
    s_mov_b32 exec_lo, 0x00ff00ff
    s_mov_b32 exec_hi, 0x00ff00ff
    buffer_store_short v28, v1, s[44:47], s65 offen""")
    stamp(11)
    pad('F', True)
    a("""s_cmp_eq_u32 s2, 0
    s_cbranch_scc0 L_fin
    v_mov_b32 v10, 0
    s_mov_b64 exec, 1
    buffer_store_dword v25, v10, s[40:43], 0 offen sc1""")
    if probe:
        kind, K = probe[:2]
        a("""s_memrealtime s[92:93]
        s_sleep 40
        s_load_dwordx8 s[76:83], s[26:27], 0 glc
        s_load_dwordx8 s[84:91], s[26:27], """ + ("64" if kind == "ev" else "128") + """ glc
        s_waitcnt lgkmcnt(0)""")
        def red(op, dst, base):
            a(f"s_mov_b32 {dst}, s{base}")
            for i in range(1, 8): a(f"{op} {dst}, {dst}, s{base+i}")
        red("s_min_u32", "s57", 76); red("s_max_u32", "s58", 76); red("s_min_u32", "s59", 84); red("s_max_u32", "s60", 84)
        evs = "s_mov_b32 s61, 0\n" + "\n".join(f"s_sub_u32 s62, s{84+i}, s{76+i}\ns_add_u32 s61, s61, s62" for i in range(8)) + "\ns_lshr_b32 s61, s61, 3"
        a({"ev": evs, "skew": "s_sub_u32 s61, s58, s57", "span": "s_sub_u32 s61, s92, s57", "zero": "s_mov_b32 s61, 0",
           "tail": "s_sub_u32 s61, s92, s60", "endspread": "s_sub_u32 s61, s60, s59", "stream": "s_sub_u32 s61, s60, s58",
           "s70": "s_sub_u32 s61, s83, s76\ns_add_u32 s61, s61, 100", "s20": "s_sub_u32 s61, s78, s76\ns_add_u32 s61, s61, 100",
           "s40": "s_sub_u32 s61, s80, s76\ns_add_u32 s61, s61, 100", "s10": "s_sub_u32 s61, s77, s76\ns_add_u32 s61, s61, 100"}[kind])
        a(f"""s_min_u32 s61, s61, 5000
        s_mul_i32 s61, s61, {K}
        s_add_u32 s61, s61, s92
        s_add_u32 s61, s61, 300
        L_prw:
        s_memrealtime s[92:93]
        s_waitcnt lgkmcnt(0)
        s_sub_u32 s57, s92, s61
        s_cmp_lt_i32 s57, 0
        s_cbranch_scc1 L_prw""")
    a("""
    L_fin:""")
    flush_stamps()
    a("L_end:\ns_endpgm")
    a("L_A1:")
    if abl & 1024:
        ldswait(4, 1, sleep=8); setflag(12, 1); a("s_branch L_fin")
    hjob("L_fin")
    ldswait(4, 1, sleep=8)
    gettag()
    a(f"s_mov_b32 s59, {pw1+2}\ns_branch L_qh")
    a("L_A2:")
    if tch:
        a(f"""v_mov_b32 v11, 0
        s_mov_b64 exec, 1
        s_lshl_b32 s61, {HEAD}, 21""")
        srd(32, 8, "s61", 1 << 21)
        a("buffer_load_dword v40, v11, s[32:35], 0 offen nt")
        if tch & 2:
            for lo, size in ((16, 512*3584), (20, 1792*1024), (12, 4096*1024)):
                srd(32, lo, None, size)
                a(f"s_lshl_b32 s61, {HKV}, 19" if lo == 12 else "s_mov_b32 s61, 0")
                a(f"buffer_load_dword v{40+lo}, v11, s[32:35], s61 offen nt")
        a("s_mov_b64 exec, -1")
    if gref:
        a(f"""s_cmp_lt_u32 s2, 8
        s_cbranch_scc0 L_noref
        s_atomic_umax s76, s[26:27], 0
        L_noref:""")
        ldswait(0, gref, sleep=8)
        a("""s_load_dword s80, s[26:27], 0
        s_waitcnt lgkmcnt(0)
        s_sub_u32 s81, s80, s76
        s_cmp_lt_u32 s81, 500
        s_cselect_b32 s80, s80, s76""")
        setflag(40, "s80")
    a(f"s_cmp_lt_u32 {J}, 4\ns_cbranch_scc0 L_fin")
    if abl & 16:
        ldswait(4, 1, sleep=8); setflag(12, 1); a("s_branch L_fin")
    srd(44, 18, None, 3584)
    a(f"""s_lshl_b32 s66, {B}, 2
    s_add_u32 s66, s66, {J}
    s_mul_i32 s57, s66, 224
    buffer_load_dwordx2 v[24:25], v30, s[44:47], s57 offen
    buffer_load_dwordx2 v[26:27], v30, s[44:47], s57 offen offset:128
    v_mov_b32 v11, 7168
    v_lshlrev_b32 v10, 4, v3
    v_mad_u32_u24 v10, v2, v11, v10
    v_min_u32 v16, 11, v3
    v_lshlrev_b32 v16, 4, v16
    v_mad_u32_u24 v11, v2, v11, v16
    s_lshl_b32 s57, s57, 1
    s_add_u32 s57, s57, {HBUF}
    s_add_u32 s58, s57, 28672
    s_add_u32 s59, s58, 28672
    s_add_u32 s60, s59, 28672""")
    tr_addr(str(QAREA))
    ldswait(4, 1, sleep=8)
    gettag()
    ldswait(0, pw1 + 2, sleep=8)
    n = 0
    for s in range(4):
        for t in range(4):
            if n >= 14: a("s_waitcnt lgkmcnt(12)")
            tr(s, t); n += 2
    a(f"v_lshlrev_b32 v28, 3, v2\nv_add_u32 v28, {STATL+4}, v28\nds_read_b32 v28, v28\ns_waitcnt lgkmcnt(0)")
    setflag(12, 1)
    ldswait(0, t2, sleep=16)
    a(f"s_mov_b32 {CNT}, {spin}\nL_ph:")
    for x in range(2):
        for i in range(4): a(f"buffer_load_dwordx4 v[{32+16*x+4*i}:{35+16*x+4*i}], v{10+x}, s[40:43], s{57+i} offen offset:{256*x} sc1")
    a("s_waitcnt vmcnt(0)")
    check([34 + 4*i for i in range(8)])
    a(f"""s_cbranch_scc1 L_ph_ok
    s_sleep {slp}
    s_sub_u32 {CNT}, {CNT}, 1
    s_cbranch_scc0 L_ph
    L_ph_ok:
    s_mov_b32 s58, 0x3f80
    s_mov_b32 s59, 0x3f800000""")
    for x in range(2):
        for d in range(2):
            for h in range(2): a(f"v_dot2_f32_bf16 v{72+x*4+d*2+h}, v{24+2*x+d}, s{58+h}, 0")
    for kq in range(4):
        for x in range(2):
            for d in range(2):
                for h in range(2): a(f"v_dot2_f32_bf16 v{64+x*4+d*2+h}, v{32+16*x+4*kq+d}, s{58+h}, " + ("0" if kq == 0 else f"v{64+x*4+d*2+h}"))
    for i in range(8): a(f"v_fma_f32 v{64+i}, v{64+i}, v28, v{72+i}")
    k1 = -2 * LOG2E * 0.7978845608028654
    a(f"s_mov_b32 s58, {hx(f2u(k1*0.044715))}\nv_mov_b32 v28, {hx(f2u(k1))}")
    for i in range(8): a(f"v_mul_f32 v{72+i}, v{64+i}, v{64+i}")
    for i in range(8): a(f"v_fma_f32 v{72+i}, v{72+i}, s58, v28")
    for i in range(8): a(f"v_mul_f32 v{72+i}, v{72+i}, v{64+i}")
    for i in range(8): a(f"v_exp_f32 v{72+i}, v{72+i}")
    for i in range(8): a(f"v_add_f32 v{72+i}, 1.0, v{72+i}")
    for i in range(8): a(f"v_rcp_f32 v{72+i}, v{72+i}")
    for i in range(8): a(f"v_mul_f32 v{64+i}, v{64+i}, v{72+i}")
    for i in range(4): a(f"v_cvt_pk_bf16_f32 v{64+i}, v{64+2*i}, v{65+2*i}")
    a(f"""v_cmp_gt_u32 vcc, 12, v3
    v_lshl_add_u32 v10, v2, 8, v30
    v_add_u32 v10, {HIMG}, v10
    v_cndmask_b32 v66, 0, v66, vcc
    v_cndmask_b32 v67, 0, v67, vcc
    v_and_b32 v11, 3, v0
    v_lshlrev_b32 v11, 8, v11
    v_lshl_add_u32 v11, v2, 4, v11
    v_add_u32 v11, {HIMG}, v11
    ds_write_b64 v10, v[64:65]
    ds_write_b64 v10, v[66:67] offset:128""")
    for s in range(4): a(f"ds_read_b128 v[{32+4*s}:{35+4*s}], v11 offset:{64*s}")
    a(f"""s_lshl_b32 s57, {HKV}, 12
    s_lshl_b32 s58, s66, 7
    s_add_u32 s57, s57, s58
    s_add_u32 s57, s57, {MBUF}
    v_lshlrev_b32 v31, 2, v3
    v_and_b32 v16, 1, v2
    v_lshl_add_u32 v31, v16, 6, v31
    v_lshrrev_b32 v16, 1, v2
    v_lshl_add_u32 v31, v16, 11, v31
    s_waitcnt lgkmcnt(0)""")
    for s in range(4):
        for t in range(4):
            c = "0" if s == 0 else f"v[{160+4*t}:{163+4*t}]"
            r = 96 + (s*4+t)*4
            a(f"v_mfma_f32_16x16x32_bf16 v[{160+4*t}:{163+4*t}], v[{32+4*s}:{35+4*s}], v[{r}:{r+3}], {c}")
    for b in range(4): a(f"v_mov_b32 v{65+2*b}, {TAG}")
    for b in range(4): a(f"v_mov_b32 v{64+2*b}, v{160+b}")
    for t in range(1, 4):
        for b in range(4): a(f"v_mov_b32_dpp v{64+2*b}, v{160+4*t+b} quad_perm:[0,1,2,3] row_mask:{hex(1<<t)} bank_mask:0xf")
    for b in range(4): a(f"v_mov_b32_dpp v{72+b}, v{64+2*b} quad_perm:[1,0,3,2] row_mask:0xf bank_mask:0xf")
    for b in range(4): a(f"v_cvt_pk_bf16_f32 v{64+2*b}, v{64+2*b}, v{72+b}")
    a("s_mov_b32 exec_lo, 0x55555555\ns_mov_b32 exec_hi, 0x55555555")
    def mstores(fl):
        for b in range(4):
            a(f"buffer_store_dwordx2 v[{64+2*b}:{65+2*b}], v31, s[40:43], s57 offen {fl}")
            if b < 3: a("s_add_u32 s57, s57, 32768")
    stamp(6)
    a(f"s_cmp_eq_u32 {LOC}, 1\ns_cbranch_scc0 L_mfar")
    mstores("")
    a("s_branch L_fin\nL_mfar:")
    mstores("sc1")
    a("s_branch L_fin")
    gl = lambda r: [f"buffer_load_dwordx4 v[{r+4*i}:{r+3+4*i}], v29, s[40:43], s60 offen offset:{i*1024} sc1" for i in range(4)]
    gt = lambda r: [r + 1 + 2*i for i in range(8)]
    def gsum(r):
        for i in range(4):
            for d in range(2):
                for h in range(2): a(f"v_dot2_f32_bf16 v{112+2*d+h}, v{r+4*i+2*d}, s{74+h}, " + ("0" if i == 0 else f"v{112+2*d+h}"))
    a("L_gather:")
    pad('F', True)
    a(f"""    s_mov_b32 {CNT}, {spin}""")
    sets = [96, 128, 144, 160][:nset if pipe2 else 1]
    R = len(sets)
    for r in sets[:-1]:
        for l in gl(r): a(l)
        a(f"s_sleep {pipe2}")
    a("L_pg:")
    for i in range(R):
        for l in gl(sets[(i - 1) % R]): a(l)
        a(f"s_waitcnt vmcnt({4*(R-1)})")
        check(gt(sets[i]))
        a(f"s_cbranch_scc1 L_pg_ok{i}")
        pad('F', True)
    if fback: a(f"s_sleep {fback}")
    a(f"""s_sub_u32 {CNT}, {CNT}, 1
    s_cbranch_scc0 L_pg""")
    for i in range(R - 1, -1, -1):
        a(f"L_pg_ok{i}:"); pad('F', True); gsum(sets[i])
        if i: a("s_nop 1\ns_branch L_pg_ok")
    a("s_nop 0\nL_pg_ok:")
    for r in range(112, 116): a(f"v_add_f32_dpp v{r}, v{r}, v{r} row_ror:8 row_mask:0xf bank_mask:0xf")
    a("""v_permlane16_swap_b32 v112, v113
    v_permlane16_swap_b32 v114, v115
    v_add_f32 v112, v112, v113
    v_add_f32 v114, v114, v115
    v_permlane32_swap_b32 v112, v114
    v_add_f32 v112, v112, v114
    s_setpc_b64 s[62:63]""")

    TH, SC, NC, LC, SW = "s59", "s61", "s60", "s56", "s47"
    a(f"""L_C:
    s_sub_u32 {SW}, s3, 4""")
    trbase()
    a(f"""v_add_u32 v12, {QAREA}, v7
    v_xor_b32 v13, 32, v12
    v_xor_b32 v14, 64, v12
    v_xor_b32 v15, 0x60, v12
    v_and_b32 v16, 7, v3
    v_lshlrev_b32 v16, 1, v16
    v_lshrrev_b32 v17, 3, v3
    v_or_b32 v16, v16, v17
    v_lshlrev_b32 v17, 2, v2
    v_xor_b32 v16, v16, v17
    v_lshlrev_b32 v16, 4, v16
    v_lshl_add_u32 v16, v3, 8, v16
    s_lshl_b32 s57, {SW}, 13
    v_add_u32 v8, s57, v16
    v_xor_b32 v9, 16, v8
    v_xor_b32 v10, 32, v8
    v_xor_b32 v11, 48, v8
    v_lshrrev_b32 v16, 2, v0
    v_and_b32 v17, 7, v16
    v_lshlrev_b32 v17, 1, v17
    v_lshrrev_b32 v18, 3, v16
    v_or_b32 v17, v17, v18
    v_bfe_u32 v18, v0, 1, 1
    v_xor_b32 v17, v17, v18
    v_lshlrev_b32 v17, 4, v17
    v_lshl_add_u32 v17, v16, 8, v17
    v_and_b32 v18, 1, v0
    v_lshl_add_u32 v17, v18, 3, v17
    s_lshl_b32 s57, {SW}, 6
    v_xor_b32 v4, s57, v17
    v_xor_b32 v5, 32, v4
    v_and_b32 v16, 3, v3
    v_lshlrev_b32 v17, 6, v2
    v_lshl_add_u32 v23, v16, 8, v17
    v_add_u32 v23, {QIMG}, v23
    v_lshl_add_u32 v6, v16, 4, v17
    v_add_u32 v6, {PBUF}, v6
    v_lshrrev_b32 v18, 2, v3
    v_lshl_add_u32 v1, v18, 10, v6
    s_lshl_b32 s57, {SW}, 8
    v_add_u32 v1, s57, v1
    v_lshlrev_b32 v19, 3, v16
    v_add_u32 v19, {MLX}, v19
    s_lshl_b32 s57, {SW}, 5
    v_add_u32 v22, s57, v19
    s_lshl_b32 s57, {SW}, 2
    v_add_u32 v7, s57, v21
    v_lshl_add_u32 v24, v18, 2, v2
    v_lshlrev_b32 v24, 7, v24
    v_lshl_add_u32 v44, v16, 12, v24
    v_lshlrev_b32 v45, 2, v3
    v_and_b32 v17, 1, v2
    v_lshl_add_u32 v45, v17, 6, v45
    v_lshrrev_b32 v17, 1, v2
    v_lshl_add_u32 v45, v17, 12, v45
    v_lshlrev_b32 v46, 4, v0""")
    for r in range(72, 80, 2): a(f"v_mov_b64 v[{r}:{r+1}], 0")
    a(f"""s_lshl_b32 s66, {HEAD}, 14
    s_lshl_b32 s57, {SW}, 10
    s_add_u32 s66, s66, s57
    s_lshl_b32 s57, {J}, 4
    s_add_u32 s66, s66, s57
    s_add_u32 s66, s66, {OBUF}
    s_lshl_b32 s67, {SW}, 3
    s_add_u32 s67, s67, {HKV}
    s_lshl_b32 s67, s67, 2
    s_add_u32 s67, s67, {B}
    s_lshl_b32 s67, s67, 12
    s_add_u32 s67, s67, {OBUF}
    s_lshl_b32 s68, {SW}, 16
    s_lshl_b32 s57, {J}, 13
    s_add_u32 s68, s68, s57
    s_lshl_b32 s57, {HEAD}, 7
    s_add_u32 s68, s68, s57
    s_add_u32 s68, s68, {SBUF}
    s_lshl_b32 s57, {B}, 3
    s_add_u32 s57, s57, {STATL}
    v_mov_b32 v24, s57
    s_add_u32 {TH}, {SW}, 2
    s_mov_b32 {NC}, 0
    s_mov_b32 s74, 0x000f000f
    s_mov_b32 s75, 0x000f000f
    s_mov_b32 {CNT}, {spin}
    s_waitcnt lgkmcnt(0)""")
    srd(40, 28, None, WS_SIZE)
    if latebar: a("s_barrier")
    if warm & 2: a.warm('C')
    if not abl & 1: ldswait(4, 1, cache=LC, sleep=2)
    stamp(2)
    QF = 120
    a("ds_read_b32 v24, v24")
    for s in range(4): a(f"ds_read_b128 v[{QF+4*s}:{QF+3+4*s}], v23 offset:{16*s}")
    a(f"""ds_read_b64 v[26:27], v21 offset:{TAGL-FL}
    s_mov_b32 {LC}, 0
    s_waitcnt lgkmcnt(0)
    v_readfirstlane_b32 {SC}, v24
    v_readfirstlane_b32 {TAG}, v26
    v_readfirstlane_b32 {LOC}, v27
    L_kloop:""")
    pad('C', True)
    ldswait(0, TH, cache=LC, cached=True)
    for s in range(4):
        for t in range(2): a(f"ds_read_b128 v[{88+(s*2+t)*4}:{91+(s*2+t)*4}], v{8+s} offset:{t*4096}")
    a(f"""s_add_u32 {TH}, {TH}, 4
    s_sub_u32 s57, {TH}, 2
    s_min_u32 s57, s57, 32
    v_mov_b32 v20, s57""")
    for s in range(4):
        a(f"s_waitcnt lgkmcnt({6-2*s})")
        if s == 3: a("ds_write_b32 v7, v20 offset:16")
        for t in range(2):
            c = "0" if s == 0 else f"v[{32+4*t}:{35+4*t}]"
            a(f"v_mfma_f32_16x16x32_bf16 v[{32+4*t}:{35+4*t}], v[{88+(s*2+t)*4}:{91+(s*2+t)*4}], v[{QF+4*s}:{QF+3+4*s}], {c}")
    pad('C')
    for s in range(4): a(f"v_add_u32 v{8+s}, 0x8000, v{8+s}")
    for s in range(4): a(f"v_and_b32 v{8+s}, 0x1ffff, v{8+s}")
    a("s_mov_b64 exec, s[74:75]")
    for r in range(0, 8, 2): a(f"v_mov_b64 v[{56+r}:{57+r}], v[{32+r}:{33+r}]")
    a(f"""s_mov_b64 exec, -1
    s_lshl_b64 s[74:75], s[74:75], 4
    s_add_u32 {NC}, {NC}, 1
    s_and_b32 s57, {NC}, 3
    s_cbranch_scc1 L_kloop
    s_mov_b32 s74, 0x000f000f
    s_mov_b32 s75, 0x000f000f
    s_cmp_eq_u32 {NC}, 8
    s_cbranch_scc1 L_soft""")
    for r in range(0, 8, 2): a(f"v_mov_b64 v[{64+r}:{65+r}], v[{56+r}:{57+r}]")
    a("s_branch L_kloop\nL_soft:")
    stamp(16)
    pad('C')
    dp = "row_mask:0xf bank_mask:0xf"
    def allred(op, r, t):
        a(f"""{op}_dpp v{r}, v{r}, v{r} row_ror:4 {dp}
        {op}_dpp v{r}, v{r}, v{r} row_ror:8 {dp}
        v_mov_b32 v{t}, v{r}
        v_permlane32_swap_b32 v{r}, v{t}
        {op} v{r}, v{r}, v{t}
        v_mov_b32 v{t}, v{r}
        v_permlane16_swap_b32 v{r}, v{t}
        {op} v{r}, v{r}, v{t}""")
    a("v_max3_f32 v16, v56, v57, v58")
    for r in range(59, 71, 2): a(f"v_max3_f32 v16, v16, v{r}, v{r+1}")
    a("v_max_f32 v16, v16, v71")
    allred("v_max_f32", 16, 24)
    a(f"v_mul_f32 v16, {SC}, v16")
    for r in range(56, 72): a(f"v_fma_f32 v{r}, v{r}, {SC}, -v16")
    pad('C')
    for r in range(56, 72): a(f"v_exp_f32 v{r}, v{r}")
    pad('C')
    a("v_add_f32 v17, v56, v57\nv_add_f32 v18, v58, v59")
    for r in range(60, 72, 2): a(f"v_add_f32 v17, v17, v{r}\nv_add_f32 v18, v18, v{r+1}")
    a("v_add_f32 v17, v17, v18")
    allred("v_add_f32", 17, 24)
    a("""ds_write_b64 v22, v[16:17]
    v_mov_b32 v20, 1
    s_mov_b64 exec, 1
    ds_add_u32 v21, v20 offset:32
    s_mov_b64 exec, -1""")
    pad('C')
    ldswait(32, 4, cache="s57", sleep=1)
    pad('C')
    for w in range(4): a(f"ds_read_b64 v[{32+2*w}:{33+2*w}], v19 offset:{32*w}")
    a("""s_waitcnt lgkmcnt(0)
    v_max3_f32 v42, v32, v34, v36
    v_max_f32 v42, v42, v38""")
    for w in range(4): a(f"v_sub_f32 v{32+2*w}, v{32+2*w}, v42")
    a("v_sub_f32 v16, v16, v42")
    for w in range(4): a(f"v_exp_f32 v{32+2*w}, v{32+2*w}")
    a(f"""v_exp_f32 v16, v16
    v_mul_f32 v17, v32, v33
    v_fmac_f32 v17, v34, v35
    v_fmac_f32 v17, v36, v37
    v_fmac_f32 v17, v38, v39
    v_rcp_f32 v18, v17
    v_log_f32 v17, v17
    v_mov_b32 v43, {TAG}
    v_mul_f32 v16, v16, v18
    v_add_f32 v42, v42, v17""")
    pad('C')
    for r in range(56, 72): a(f"v_mul_f32 v{r}, v16, v{r}")
    for r in range(0, 8): a(f"v_cvt_pk_bf16_f32 v{56+r}, v{56+2*r}, v{57+2*r}")
    a(f"""ds_write_b128 v1, v[60:63]
    ds_write_b128 v1, v[56:59] offset:4096
    v_mov_b32 v20, 1
    s_mov_b64 exec, 1
    ds_add_u32 v21, v20 offset:36
    s_mov_b64 exec, -1
    v_mov_b32 v53, {TAG}
    s_mov_b32 {TH}, {35 if kalt else 34}""")
    ldswait(36, 4, cache="s57", sleep=1)
    stamp(17)
    a.raw("; ---- pass 2: every wave takes 32 of the 128 value columns of every V tile")
    NV = 2 if kalt else 1
    def vtile(last):
        pr = "\n".join(f"ds_read_b128 v[{(28, 152)[x]}:{(31, 155)[x]}], v6 offset:{256*x}" for x in range(NV))
        if last and lastbar: a(pr + "\ns_barrier")
        else:
            ldswait(0, TH, cache=LC, cached=True, sleep=0 if last else csl)
            a(pr)
        for x in range(NV):
            for t in range(2):
                for u in range(2):
                    r = (80, 156)[x] + 4*t + 2*u
                    a(f"ds_read_b64_tr_b16 v[{r}:{r+1}], v{4+t} offset:{x*8192 + u*4096}")
        if not last:
            a(f"""s_sub_u32 s57, {TH}, 1
            v_mov_b32 v20, s57
            s_add_u32 {TH}, {TH}, {NV}
            v_add_u32 v6, {256*NV}, v6""")
        for x in range(NV):
            for t in range(2):
                a(f"s_waitcnt lgkmcnt({4*(NV-1-x) + 2-2*t})")
                r = (80, 156)[x] + 4*t; p = (28, 152)[x]
                a(f"v_mfma_f32_16x16x32_bf16 v[{72+4*t}:{75+4*t}], v[{r}:{r+3}], v[{p}:{p+3}], v[{72+4*t}:{75+4*t}]")
    a("L_vloop:")
    pad('C')
    vtile(False)
    a(f"""ds_write_b32 v7, v20 offset:16
    v_add_u32 v4, {0x2000*NV}, v4
    v_add_u32 v5, {0x2000*NV}, v5
    v_and_b32 v4, 0x1ffff, v4
    v_and_b32 v5, 0x1ffff, v5""")
    def wofrags():
        n = 0
        for s in range(4):
            for t in range(4):
                if n >= 12: a("s_waitcnt lgkmcnt(12)")
                tr(s, t, 88); n += 2
                pad('C')
    if not wolast:
        a(f"""s_cmp_lt_u32 {TH}, {pwo + 4}
        s_cbranch_scc1 L_vloop
        s_cmp_eq_u32 {TH}, {pwo + 4}
        s_cbranch_scc0 L_nowo""")
        wofrags()
        a("s_waitcnt lgkmcnt(0)\nL_nowo:")
    if prew & 1:
        a(f"s_cmp_eq_u32 {TH}, 58\ns_cbranch_scc0 L_nopw")
        for i in range(4): a(f"buffer_load_dwordx4 v[{56+4*i}:{59+4*i}], v46, s[40:43], s67 offen offset:{i*1024} sc1")
        a("L_nopw:")
    a(f"""
    s_cmp_lt_u32 {TH}, 65
    s_cbranch_scc1 L_vloop""")
    pad('C', True)
    vtile(True)
    stamp(3)
    if abl & 32:
        if wolast: a("s_barrier")
        end()
    a(f"""s_mov_b32 exec_lo, 0x00ff00ff
    s_mov_b32 exec_hi, 0x00ff00ff
    v_cvt_pk_bf16_f32 v40, v72, v73
    v_cvt_pk_bf16_f32 v41, v74, v75
    v_cvt_pk_bf16_f32 v32, v76, v77
    v_cvt_pk_bf16_f32 v33, v78, v79
    s_cmp_eq_u32 {LOC}, 1
    v_mov_b32_dpp v40, v32 quad_perm:[0,1,2,3] row_mask:0xf bank_mask:0x2
    v_mov_b32_dpp v41, v33 quad_perm:[0,1,2,3] row_mask:0xf bank_mask:0x2
    s_cbranch_scc0 L_ofar
    buffer_store_dwordx4 v[40:43], v44, s[40:43], s66 offen
    L_onear:
    s_mov_b64 exec, -1""")
    stamp(8)
    if light:
        a(f"""L_pl:
        buffer_load_dwordx4 v[68:71], v46, s[40:43], s67 offen offset:3072 sc1
        s_waitcnt vmcnt(0)
        v_cmp_ne_u32 vcc, {TAG}, v71
        s_cmp_eq_u64 vcc, 0
        s_cbranch_scc1 L_po
        s_sub_u32 {CNT}, {CNT}, 1
        s_cbranch_scc0 L_pl""")
    old = [f"buffer_load_dwordx4 v[{56+4*i}:{59+4*i}], v46, s[40:43], s67 offen offset:{i*1024} sc1" for i in range(4)]
    if wolast:
        for l in old: a(l)
        a("s_barrier")
        wofrags()
        a("s_branch L_po1")
    a("L_po:")
    for l in old: a(l)
    a("L_po1:\ns_waitcnt vmcnt(0)")
    check([59 + 4*i for i in range(4)])
    a(f"""s_cbranch_scc1 L_po_ok
    s_sub_u32 {CNT}, {CNT}, 1
    s_cbranch_scc0 L_po
    L_po_ok:""")
    stamp(9)
    pad('C')
    if stamps: a(f"s_sub_u32 s98, {spin}, {CNT}"); stamp(12, "s98")
    a("v_mov_b32 v18, v58")
    for s in range(4):
        for d in range(2): a(f"v_mov_b32_dpp v{58+4*s+d}, v{56+4*s+d} row_shl:8 row_mask:0xf bank_mask:0xf bound_ctrl:1")
    if wolast: a("s_waitcnt lgkmcnt(0)")
    def omf(s, t):
        c = "0" if s == 0 else f"v[{72+4*t}:{75+4*t}]"
        r = 88 + (s*4+t)*4
        return f"v_mfma_f32_16x16x32_bf16 v[{72+4*t}:{75+4*t}], v[{56+4*s}:{59+4*s}], v[{r}:{r+3}], {c}"
    P = ["quad_perm:[1,0,3,2]", "quad_perm:[2,3,0,1]", "row_half_mirror"]
    wv = [f"v_max_f32_dpp v19, v18, v18 {P[0]} {dp}", f"v_max_f32_dpp v19, v19, v19 {P[1]} {dp}", f"v_max_f32_dpp v19, v19, v19 {P[2]} {dp}",
          "v_sub_f32 v18, v18, v19", "v_exp_f32 v18, v18",
          f"v_add_f32_dpp v19, v18, v18 {P[0]} {dp}", f"v_add_f32_dpp v19, v19, v19 {P[1]} {dp}", f"v_add_f32_dpp v19, v19, v19 {P[2]} {dp}",
          "v_rcp_f32 v19, v19", "v_mul_f32 v18, v18, v19"]
    wv.append("\n".join(f"v_mov_b32_dpp v{32+i}, v18 row_newbcast:{i} row_mask:0x5 bank_mask:0xf" for i in range(4)))
    wv.append("\n".join(f"v_mov_b32_dpp v{32+i}, v18 row_newbcast:{4+i} row_mask:0xa bank_mask:0xf" for i in range(4)))
    T4 = [52, 36, 37, 38]
    def wsum(t): return f"v_mul_f32 v{T4[t]}, v32, v{72+4*t}\n" + "\n".join(f"v_fmac_f32 v{T4[t]}, v{32+i}, v{72+4*t+i}" for i in range(1, 4))
    order = [(s, t) for th in (0, 2) for s in range(4) for t in (th, th + 1)]
    for i, (s, t) in enumerate(order):
        a(omf(s, t))
        if i < len(wv): a(wv[i])
        pad('C')
        if i == 13: a(wsum(0))
        if i == 14: a(wsum(1))
    a("v_permlane16_swap_b32 v52, v36")
    a(wsum(2)); a("v_add_f32 v52, v52, v36"); a(wsum(3))
    pad('C', True)
    a("""v_permlane16_swap_b32 v37, v38
    v_add_f32 v37, v37, v38
    v_permlane32_swap_b32 v52, v37
    v_mov_b32_dpp v36, v52 quad_perm:[1,0,3,2] row_mask:0xf bank_mask:0xf
    s_mov_b32 exec_lo, 0x55555555
    s_mov_b32 exec_hi, 0x55555555
    v_cvt_pk_bf16_f32 v52, v52, v36
    buffer_store_dwordx2 v[52:53], v45, s[40:43], s68 offen sc1""")
    stamp(10)
    if cbar: a("s_barrier")
    end()
    a("L_ofar:\nbuffer_store_dwordx4 v[40:43], v44, s[40:43], s66 offen sc1\ns_branch L_onear")
    a.close_chains()
    errs = full_check(a)
    assert not errs, "\n".join(errs)
    nv = 232 if (stamps or lite) else 184
    a.raw(f""".section .rodata,"a"
.p2align 6
.amdhsa_kernel {name}
  .amdhsa_next_free_vgpr {nv}
  .amdhsa_next_free_sgpr 102
  .amdhsa_accum_offset {nv}
  .amdhsa_group_segment_fixed_size 0
  .amdhsa_kernarg_size 104
  .amdhsa_user_sgpr_count 2
  .amdhsa_user_sgpr_kernarg_segment_ptr 1
  .amdhsa_system_sgpr_workgroup_id_x 1
.end_amdhsa_kernel""")
    return a.text()

if __name__ == "__main__":
    out = sys.argv[1]
    kw = eval("dict(%s)" % (sys.argv[2] if len(sys.argv) > 2 else ""))
    open(out, "w").write(gen(**kw))
```
